```python
import torch

def _softmax(x, axis=-1):
    return torch.softmax(x, dim=axis)

def _gelu(x):
    return torch.nn.functional.gelu(x, approximate='tanh')

def _silu(x):
    return torch.nn.functional.silu(x)

def _sigmoid(x):
    return torch.sigmoid(x)

def _layernorm(x, axis=-1, eps=1e-05):
    m = x.mean(dim=axis, keepdim=True)
    v = x.var(dim=axis, keepdim=True, unbiased=False)
    return (x - m) / torch.sqrt(v + eps)

def _scatter_add(tgt, idx, src, axis=0):
    return tgt.clone().index_add_(axis, idx, src)

def _segment_sum(src, seg, n):
    out = torch.zeros((n,) + src.shape[1:], dtype=src.dtype)
    return out.index_add_(0, seg, src)

def _pad(x, pw):
    flat = tuple((v for pair in reversed(pw) for v in pair))
    return torch.nn.functional.pad(x, flat)
kernel_name = 'interleave_layers__memory_aug_recurrent_mem_tr__softmax_full_mha__prompt'

def setup_inputs():

    _w = lambda a: (lambda t: t.to(torch.bfloat16) if t.is_floating_point() else t)(torch.as_tensor(a))

    def _A_setup():
        B, S, Dm = (1, 2048, 640)
        H, Dh = (32, 192)
        M, seg = (8, 32)
        seg = min(seg, S)
        S = S // seg * seg
        return {'x': _w((lambda *s: torch.randn(*s, dtype=torch.bfloat16) * 0.05)(B, S, Dm)), 'mem0': _w((lambda *s: torch.randn(*s, dtype=torch.bfloat16) * 0.8)(B, M, Dm)), 'Wq': _w((lambda *s: torch.randn(*s, dtype=torch.bfloat16) * 0.8)(Dm, H, Dh) * Dm ** (-0.5)), 'Wk': _w((lambda *s: torch.randn(*s, dtype=torch.bfloat16) * 0.8)(Dm, H, Dh) * Dm ** (-0.5)), 'Wv': _w((lambda *s: torch.randn(*s, dtype=torch.bfloat16) * 0.8)(Dm, H, Dh) * Dm ** (-0.5)), 'Wo': _w((lambda *s: torch.randn(*s, dtype=torch.bfloat16) * 0.8)(H, Dh, Dm) * (H * Dh) ** (-0.5)), 'seg_len': seg}
    _A_in = _A_setup()

    def _B_setup():
        B, S, D = (1, 2048, 640)
        return {'x': _w((lambda *s: torch.randn(*s, dtype=torch.bfloat16) * 0.05)(B, S, D)), 'wqkv': _w((lambda *s: torch.randn(*s, dtype=torch.bfloat16) * 0.05)(D, 3 * D)), 'wo': _w((lambda *s: torch.randn(*s, dtype=torch.bfloat16) * 0.05)(D, D))}
    _B_in = _B_setup()
    return {'A_x': _A_in['x'], 'A_mem0': _A_in['mem0'], 'A_Wq': _A_in['Wq'], 'A_Wk': _A_in['Wk'], 'A_Wv': _A_in['Wv'], 'A_Wo': _A_in['Wo'], 'A_seg_len': _A_in['seg_len'], 'B_x': _B_in['x'], 'B_wqkv': _B_in['wqkv'], 'B_wo': _B_in['wo']}

def reference(A_x, A_mem0, A_Wq, A_Wk, A_Wv, A_Wo, A_seg_len, B_x, B_wqkv, B_wo):

    def _A_ref(x, mem0, Wq, Wk, Wv, Wo, seg_len):
        B, S, Dm = x.shape
        H, Dh = (Wq.shape[1], Wq.shape[2])
        M = mem0.shape[1]
        scale = Dh ** (-0.5)
        n_seg = S // seg_len
        L = M + seg_len
        idx = torch.arange(L)
        mask = (idx[:, None] < M) | (idx[:, None] >= idx[None, :])
        mem = mem0
        outs = []
        for s in range(n_seg):
            xs = x[:, s * seg_len:(s + 1) * seg_len, :].clone()
            h = torch.concatenate([mem, xs], axis=1)
            q = torch.einsum('btd,dhe->bhte', h, Wq)
            k = torch.einsum('btd,dhe->bhte', h, Wk)
            v = torch.einsum('btd,dhe->bhte', h, Wv)
            scores = torch.einsum('bhqe,bhke->bhqk', q, k) * scale
            scores = torch.where(mask[None, None], scores, -1000000000.0)
            p = _softmax(scores, axis=-1)
            o = torch.einsum('bhqk,bhke->bhqe', p, v)
            o = torch.einsum('bhte,hed->btd', o, Wo)
            mem = o[:, :M, :].clone()
            outs.append(o[:, M:, :])
        return torch.concatenate(outs, axis=1)

    def _B_ref(x, wqkv, wo):
        B, S, D = x.shape
        H = 32
        Dh = D // H
        qkv = (lambda x, *d: x.permute(*d))((x @ wqkv).reshape(B, S, 3, H, Dh), 2, 0, 3, 1, 4)
        q, k, v = (qkv[0], qkv[1], qkv[2])
        scale = Dh ** (-0.5)
        scores = torch.einsum('bhqd,bhkd->bhqk', q, k) * scale
        p = _softmax(scores, axis=-1)
        o = torch.einsum('bhqk,bhkd->bhqd', p, v)
        return (lambda x, *d: x.permute(*d))(o, 0, 2, 1, 3).reshape(B, S, D) @ wo
    x = A_x
    x = x + _A_ref(_layernorm(x, axis=-1), A_mem0, A_Wq, A_Wk, A_Wv, A_Wo, A_seg_len)
    x = x + _B_ref(_layernorm(x, axis=-1), B_wqkv, B_wo)
    x = x + _A_ref(_layernorm(x, axis=-1), A_mem0, A_Wq, A_Wk, A_Wv, A_Wo, A_seg_len)
    x = x + _B_ref(_layernorm(x, axis=-1), B_wqkv, B_wo)
    return x
```

```python
import hazard

NAME = 'interleave_layers__memory_aug_recurrent_mem_tr__softmax_full_mha__prompt'

def vr(base, n=1):
    return 'v%d' % base if n == 1 else 'v[%d:%d]' % (base, base + n - 1)
def ar(base, n=1):
    return 'a%d' % base if n == 1 else 'a[%d:%d]' % (base, base + n - 1)
def sr(base, n=1):
    return 's%d' % base if n == 1 else 's[%d:%d]' % (base, base + n - 1)

class Kernel:
    def __init__(self, name, vgpr=256, agpr=0, sgpr=102, wgy=False):
        self.name = name; self.lines = []; self.vgpr = vgpr; self.agpr = agpr; self.sgpr = sgpr
        self.nlabel = 0; self.wgy = wgy
    def e(self, s):
        for l in s.split('\n'):
            l = l.strip()
            if not l: continue
            if l.endswith(':'): self.lines.append(l)
            else: self.lines.append('  ' + l)
    def c(self, s): self.lines.append('  ; ' + s)
    def label(self, base='L'):
        self.nlabel += 1
        return '%s_%s%d' % (self.name.replace('_kernel', ''), base, self.nlabel)
    def finish(self, fix=True, verbose=False):
        lines = self.lines
        n = 0
        if fix:
            lines, n = hazard.fix(lines, verbose)
        head = ['.globl %s' % self.name, '.p2align 8', '.type %s,@function' % self.name, '%s:' % self.name]
        body = head + lines
        acc = ((self.vgpr + 3) // 4) * 4
        nfv = acc + self.agpr if self.agpr else self.vgpr
        desc = ['.p2align 6', '.amdhsa_kernel %s' % self.name,
                '  .amdhsa_next_free_vgpr %d' % nfv,
                '  .amdhsa_next_free_sgpr %d' % self.sgpr,
                '  .amdhsa_accum_offset %d' % acc,
                '  .amdhsa_group_segment_fixed_size 0',
                '  .amdhsa_kernarg_size 104',
                '  .amdhsa_user_sgpr_count 2',
                '  .amdhsa_user_sgpr_kernarg_segment_ptr 1',
                '  .amdhsa_system_sgpr_workgroup_id_x 1']
        if self.wgy: desc.append('  .amdhsa_system_sgpr_workgroup_id_y 1')
        desc += ['  .amdhsa_float_denorm_mode_32 3', '.end_amdhsa_kernel']
        return body, desc, n

HEADER = open('/code/' + NAME + '.s.ref').read().split('\n')

def build_file(launches, kernels, verbose=False):
    out = []
    for l in HEADER:
        if l.startswith('; @launch') or l.startswith('; Override') or l.startswith('; grid='): continue
        if not l.startswith(';'): break
        out.append(l)
    for (k, g, b, lds) in launches:
        out.append('; @launch kernel=%s grid=(%d,%d,%d) block=(%d,%d,%d) lds=%d' % (k, *g, *b, lds))
    out.append('.amdgcn_target "amdgcn-amd-amdhsa--gfx950"')
    out.append('.text')
    descs = []
    for k in kernels:
        body, desc, n = k.finish(verbose=verbose)
        if n: print('; %s: hazard fixer inserted %d wait states' % (k.name, n))
        out += body
        descs += desc
    out.append('.section .rodata,"a"')
    out += descs
    return '\n'.join(out) + '\n'
```

```python
import math, struct
from asmgen import *
import layout as L
OOB = 0x80000000

def gen(name='attna_kernel'):
    k = Kernel(name, vgpr=248, agpr=0, sgpr=48); e = k.e
    srd = 's[4:7]'
    vL16, vL16b, vL16c, vKM, vVM, vT0, vT1, vT2 = 1, 2, 3, 4, 5, 6, 7, 8
    vOOB = 9
    vCM, vCD, vONES = 12, 16, 20
    vS = 24
    vP = 44
    vLs = 54
    vO = 64
    vOp = 80
    vQ, vK, vKm = 88, 136, 184
    vV, vVm = 88, 136
    vInv = 60 + 2
    Lx = k.label('exit')
    cexp = (192 ** -0.5) * math.log2(math.e)
    cbits = struct.unpack('<I', struct.pack('<f', cexp))[0]
    e(f'''s_cmp_ge_u32 s2, 512
    s_cbranch_scc1 {Lx}
    s_load_dwordx2 s[8:9], s[0:1], 96
    v_lshrrev_b32 v{vT0}, 6, v0
    v_and_b32 v{vT1}, 63, v0
    s_nop 0
    v_readfirstlane_b32 s12, v{vT0}
    v_lshlrev_b32 v{vL16}, 4, v{vT1}
    v_add_u32 v{vL16b}, 0x1000, v{vL16}
    v_add_u32 v{vL16c}, 0x2000, v{vL16}
    s_and_b32 s13, s2, 7
    s_lshr_b32 s14, s2, 3
    s_and_b32 s15, s14, 3
    s_lshl_b32 s13, s13, 2
    s_add_u32 s15, s15, s13
    s_lshr_b32 s14, s14, 2
    s_lshl_b32 s14, s14, 2
    s_add_u32 s14, s14, s12
    s_waitcnt lgkmcnt(0)
    s_mov_b32 s4, s8
    s_mov_b32 s5, s9
    s_mov_b32 s6, 0x10000000
    s_mov_b32 s7, 0x20000''')
    e(f'''s_lshl_b32 s16, s15, 6
    s_add_u32 s16, s16, s14
    s_mul_i32 s16, s16, 12288
    s_add_u32 s20, s16, {L.QT}
    s_add_u32 s21, s16, {L.KT}
    s_add_u32 s22, s16, {L.VT}
    s_lshl_b32 s17, s14, 5
    s_add_u32 s17, s17, s15
    s_mul_i32 s17, s17, 3072
    s_add_u32 s23, s17, {L.KM}
    s_add_u32 s24, s17, {L.VM}
    s_lshl_b32 s17, s14, 1
    s_mul_i32 s17, s17, {192*1024}
    s_mul_i32 s18, s15, 6144
    s_add_u32 s17, s17, s18
    s_add_u32 s25, s17, {L.OT}
    s_add_u32 s26, s25, {192*1024}
    s_mov_b32 s27, {cbits:#x}''')
    i16, g = vT0, vT2
    e(f'''v_and_b32 v{i16}, 15, v{vT1}
    v_lshrrev_b32 v{g}, 4, v{vT1}
    v_mov_b32 v{vOOB}, {OOB:#x}
    v_lshlrev_b32 v10, 4, v{i16}
    v_lshl_add_u32 v10, v{g}, 7, v10
    v_cmp_gt_u32 vcc, 8, v{i16}
    v_cndmask_b32 v{vKM}, v{vOOB}, v10, vcc
    v_lshlrev_b32 v10, 3, v{vT1}
    v_cmp_gt_u32 vcc, 32, v{vT1}
    v_cndmask_b32 v{vVM}, v{vOOB}, v10, vcc''')
    vLs_ = [vL16, vL16b, vL16c]
    for i in range(12):
        e(f'buffer_load_dwordx4 v[{vK+4*i}:{vK+4*i+3}], v{vLs_[i//4]}, {srd}, s21 offen offset:{(i%4)*1024}')
    for j in range(6):
        e(f'buffer_load_dwordx4 v[{vKm+4*j}:{vKm+4*j+3}], v{vKM}, {srd}, s23 offen offset:{j*512}')
    for i in range(12):
        e(f'buffer_load_dwordx4 v[{vQ+4*i}:{vQ+4*i+3}], v{vLs_[i//4]}, {srd}, s20 offen offset:{(i%4)*1024}')
    e(f'''v_mov_b32 v10, 0xf149f2ca
    v_cmp_le_u32 vcc, 2, v{g}
    v_cndmask_b32 v{vCM}, 0, v10, vcc
    v_mov_b32 v{vCM+1}, v{vCM}
    v_mov_b32 v{vCM+2}, v{vCM}
    v_mov_b32 v{vCM+3}, v{vCM}
    v_lshlrev_b32 v11, 2, v{g}''')
    for r in range(4):
        e(f'''v_add_u32 v{vT1}, {r}, v11
        v_cmp_gt_u32 vcc, v{vT1}, v{i16}
        v_cndmask_b32 v{vCD+r}, 0, v10, vcc''')
    for r in range(4): e(f'v_mov_b32 v{vONES+r}, 0x3f803f80')
    SM0, S00, SM1, S10, S11 = vS, vS + 4, vS + 8, vS + 12, vS + 16
    e('s_waitcnt vmcnt(0)')
    def R(b, n=4): return f'v[{b}:{b+n-1}]'
    for j in range(6):
        q0 = R(vQ + 4 * j); q1 = R(vQ + 24 + 4 * j); k0 = R(vK + 4 * j); k1 = R(vK + 24 + 4 * j); km = R(vKm + 4 * j)
        f = j == 0
        e(f'v_mfma_f32_16x16x32_bf16 {R(SM0)}, {km}, {q0}, {R(vCM) if f else R(SM0)}')
        e(f'v_mfma_f32_16x16x32_bf16 {R(S00)}, {k0}, {q0}, {R(vCD) if f else R(S00)}')
        e(f'v_mfma_f32_16x16x32_bf16 {R(SM1)}, {km}, {q1}, {R(vCM) if f else R(SM1)}')
        e(f'v_mfma_f32_16x16x32_bf16 {R(S10)}, {k0}, {q1}, ' + ('0' if f else R(S10)))
        e(f'v_mfma_f32_16x16x32_bf16 {R(S11)}, {k1}, {q1}, {R(vCD) if f else R(S11)}')
    e('s_nop 7')
    for i in range(12):
        e(f'buffer_load_dwordx4 v[{vV+4*i}:{vV+4*i+3}], v{vLs_[i//4]}, {srd}, s22 offen offset:{(i%4)*1024}')
    for i in range(12):
        e(f'buffer_load_dwordx2 v[{vVm+2*i}:{vVm+2*i+1}], v{vVM}, {srd}, s24 offen offset:{i*256}')
    def softmax(regs, mx, t):
        e(f'v_max3_f32 v{mx}, v{regs[0]}, v{regs[1]}, v{regs[2]}')
        r = regs[3:]
        while r:
            if len(r) >= 2: e(f'v_max3_f32 v{mx}, v{mx}, v{r[0]}, v{r[1]}'); r = r[2:]
            else: e(f'v_max_f32 v{mx}, v{mx}, v{r[0]}'); r = r[1:]
        e(f'''v_mov_b32 v{t}, v{mx}
        v_permlane32_swap_b32 v{mx}, v{t}
        v_max_f32 v{mx}, v{mx}, v{t}
        v_mov_b32 v{t}, v{mx}
        v_permlane16_swap_b32 v{mx}, v{t}
        v_max_f32 v{mx}, v{mx}, v{t}
        v_mul_f32 v{mx}, s27, v{mx}''')
        for x in regs: e(f'v_fma_f32 v{x}, v{x}, s27, -v{mx}')
        for x in regs: e(f'v_exp_f32 v{x}, v{x}')
    softmax(list(range(SM0, SM0 + 8)), vT0, vT1)
    softmax(list(range(SM1, SM1 + 12)), vT2, 10)
    PM0, PT0, PM1, PT1 = vP, vP + 2, vP + 4, vP + 6
    for (dst, src) in ((PM0, SM0), (PT0, S00), (PM1, SM1), (PT1, S10), (PT1 + 2, S11)):
        e(f'v_cvt_pk_bf16_f32 v{dst}, v{src}, v{src+1}')
        e(f'v_cvt_pk_bf16_f32 v{dst+1}, v{src+2}, v{src+3}')
    L0, L1 = vLs + 2, vLs + 6
    e(f'''v_mfma_f32_16x16x16_bf16 {R(L0)}, {R(vONES,2)}, {R(PM0,2)}, 0
    v_mfma_f32_16x16x16_bf16 {R(L1)}, {R(vONES,2)}, {R(PM1,2)}, 0
    v_mfma_f32_16x16x16_bf16 {R(L0)}, {R(vONES,2)}, {R(PT0,2)}, {R(L0)}
    v_mfma_f32_16x16x32_bf16 {R(L1)}, {R(vONES)}, {R(PT1)}, {R(L1)}
    v_rcp_f32 v10, v{L0}
    v_rcp_f32 v11, v{L1}
    s_waitcnt vmcnt(0)''')
    for j in range(6):
        for t in range(2):
            et = 2 * j + t
            o0 = vO + 8 * t; o1 = o0 + 4
            vt = vV + 4 * et; vm = vVm + 2 * et
            e(f'v_mfma_f32_16x16x16_bf16 {R(o0)}, {R(vm,2)}, {R(PM0,2)}, 0')
            e(f'v_mfma_f32_16x16x16_bf16 {R(o1)}, {R(vm,2)}, {R(PM1,2)}, 0')
            e(f'v_mfma_f32_16x16x16_bf16 {R(o0)}, {R(vt,2)}, {R(PT0,2)}, {R(o0)}')
            e(f'v_mfma_f32_16x16x32_bf16 {R(o1)}, {R(vt)}, {R(PT1)}, {R(o1)}')
        for Tq in range(2):
            inv = 10 + Tq
            p = vOp + 4 * Tq
            for t in range(2):
                o = vO + 8 * t + 4 * Tq
                for r in range(4): e(f'v_mul_f32 v{o+r}, v{o+r}, v{inv}')
                e(f'v_cvt_pk_bf16_f32 v{p+2*t}, v{o}, v{o+1}')
                e(f'v_cvt_pk_bf16_f32 v{p+2*t+1}, v{o+2}, v{o+3}')
            so = 's25' if Tq == 0 else 's26'
            e(f'buffer_store_dwordx4 {R(p)}, v{[vL16, vL16b][j//4]}, {srd}, {so} offen offset:{(j%4)*1024}')
    e(Lx + ':')
    e('s_endpgm')
    return k

if __name__ == '__main__':
    k = gen()
    open('out_attna.s', 'w').write(build_file([('attna_kernel', (512, 1, 1), (256, 1, 1), 0)], [k], verbose=True))
```

```python
import struct
from asmgen import *
import layout as L
def fbits(x): return struct.unpack('<I', struct.pack('<f', x))[0]

def gen(name='attnb_kernel', force_fallback=False):
    k = Kernel(name, vgpr=200, agpr=0, sgpr=48); e = k.e
    srd = 's[4:7]'
    vL16, vT0, vT1, vT2 = 1, 2, 3, 4
    vQ = 8
    vC = 24
    vO = 56
    vS = 88
    vP = 120
    vKV = 136
    R = lambda b, n=4: f'v[{b}:{b+n-1}]'
    Lx = k.label('exit')
    e(f'''s_cmp_ge_u32 s2, 256
    s_cbranch_scc1 {Lx}
    s_load_dwordx2 s[12:13], s[0:1], 96
    v_lshrrev_b32 v{vT0}, 6, v0
    v_and_b32 v{vT1}, 63, v0
    s_nop 0
    v_readfirstlane_b32 s16, v{vT0}
    v_lshlrev_b32 v{vL16}, 4, v{vT1}
    s_and_b32 s17, s2, 7
    s_lshl_b32 s17, s17, 2
    s_lshr_b32 s18, s2, 3
    s_and_b32 s19, s18, 3
    s_add_u32 s17, s17, s19
    s_lshr_b32 s18, s18, 2
    s_waitcnt lgkmcnt(0)
    s_mov_b32 s4, s12
    s_mov_b32 s5, s13
    s_mov_b32 s6, 0x10000000
    s_mov_b32 s7, 0x20000
    s_lshl_b32 s20, s17, 17
    s_add_u32 s21, s20, {L.KB}
    s_add_u32 s22, s20, {L.VB}
    s_lshl_b32 s23, s18, 3
    s_lshl_b32 s24, s16, 1
    s_add_u32 s23, s23, s24
    s_lshl_b32 s24, s23, 11
    s_add_u32 s24, s24, s20
    s_add_u32 s24, s24, {L.QB}''')
    for q in range(4):
        e(f'buffer_load_dwordx4 {R(vQ+4*q)}, v{vL16}, {srd}, s24 offen offset:{q*1024}')
    def kvload(slot, sK, sV):
        b = vKV + 16 * slot
        e(f'''buffer_load_dwordx4 {R(b)}, v{vL16}, {srd}, s{sK} offen
        buffer_load_dwordx4 {R(b+4)}, v{vL16}, {srd}, s{sK} offen offset:1024
        buffer_load_dwordx4 {R(b+8)}, v{vL16}, {srd}, s{sV} offen
        buffer_load_dwordx4 {R(b+12)}, v{vL16}, {srd}, s{sV} offen offset:1024
        s_add_u32 s{sK}, s{sK}, 2048
        s_add_u32 s{sV}, s{sV}, 2048''')
    def smfma(qt, slot, cin):
        b = vKV + 16 * slot; s = vS + 16 * qt
        e(f'v_mfma_f32_32x32x16_bf16 {R(s,16)}, {R(b)}, {R(vQ+8*qt)}, {cin}')
        e(f'v_mfma_f32_32x32x16_bf16 {R(s,16)}, {R(b+4)}, {R(vQ+8*qt+4)}, {R(s,16)}')
    def rowmax(qt, dst):
        s = vS + 16 * qt
        e(f'v_max3_f32 v{dst}, v{s}, v{s+1}, v{s+2}')
        for i in range(3, 15, 2): e(f'v_max3_f32 v{dst}, v{dst}, v{s+i}, v{s+i+1}')
        e(f'v_max_f32 v{dst}, v{dst}, v{s+15}')
    def xhalfmax(dst):
        e(f'''v_mov_b32 v{vT2}, v{dst}
        v_permlane32_swap_b32 v{dst}, v{vT2}
        v_max_f32 v{dst}, v{dst}, v{vT2}''')
    def setC(qt, m):
        for i in range(16): e(f'v_sub_f32 v{vC+16*qt+i}, 0, v{m}')
    e(f's_mov_b32 s25, s21\ns_mov_b32 s26, s22')
    kvload(0, 25, 26)
    e('s_waitcnt vmcnt(0)')
    for qt in range(2): smfma(qt, 0, '0')
    for qt in range(2):
        rowmax(qt, vT0 + qt); xhalfmax(vT0 + qt); setC(qt, vT0 + qt)
    Lmain = k.label('main'); Lloop = k.label('loop'); Lfb = k.label('fb'); Ldone = k.label('done')
    e('s_mov_b32 s28, 0')
    e(Lmain + ':')
    e(f's_mov_b32 s25, s21\ns_mov_b32 s26, s22')
    kvload(0, 25, 26); kvload(1, 25, 26)
    for i in range(32): e(f'v_mov_b32 v{vO+i}, 0')
    def softexp(qt):
        s = vS + 16 * qt; p = vP + 8 * qt
        for i in range(16): e(f'v_exp_f32 v{s+i}, v{s+i}')
        for i in range(8): e(f'v_cvt_pk_bf16_f32 v{p+i}, v{s+2*i}, v{s+2*i+1}')
    def pv(qt, slot):
        b = vKV + 16 * slot; o = vO + 16 * qt; p = vP + 8 * qt
        e(f'v_mfma_f32_32x32x16_bf16 {R(o,16)}, {R(b+8)}, {R(p)}, {R(o,16)}')
        e(f'v_mfma_f32_32x32x16_bf16 {R(o,16)}, {R(b+12)}, {R(p+4)}, {R(o,16)}')
    def tile(slot, nxt_load):
        if nxt_load is not None:
            kvload(nxt_load, 25, 26); e('s_waitcnt vmcnt(8)')
        smfma(0, slot, R(vC, 16))
        smfma(1, slot, R(vC + 16, 16))
        softexp(0); pv(0, slot)
        softexp(1); pv(1, slot)
    e('s_mov_b32 s27, 0')
    e(Lloop + ':')
    for slot in range(3): tile(slot, (slot + 2) % 3)
    e(f's_add_u32 s27, s27, 1\ns_cmp_lt_u32 s27, 20\ns_cbranch_scc1 {Lloop}')
    tile(0, 2); tile(1, 0)
    e('s_waitcnt vmcnt(4)'); tile(2, None)
    e('s_waitcnt vmcnt(0)'); tile(0, None)
    for qt in range(2):
        l = vT0 + qt
        e(f'''v_mov_b32 v{l}, v{vO+16*qt+8}
        v_mov_b32 v{vT2}, v{l}
        v_permlane32_swap_b32 v{vT2}, v{l}''')
    e(f'''s_cmp_eq_u32 s28, 1
    s_cbranch_scc1 {Ldone}
    v_max_f32 v{vT2}, v{vT0}, v{vT1}
    v_cmp_nge_f32 vcc, {fbits(2.0**40):#x}, v{vT2}
    v_cmp_u_f32 s[30:31], v{vT0}, v{vT1}
    s_or_b64 vcc, vcc, s[30:31]''')
    if force_fallback: e('s_mov_b64 vcc, -1')
    e(f's_cbranch_vccz {Ldone}')
    e(f'''s_mov_b32 s25, s21
    s_mov_b32 s27, 0
    v_mov_b32 v{vP}, 0xff800000
    v_mov_b32 v{vP+1}, 0xff800000''')
    e(Lfb + ':')
    e(f'''buffer_load_dwordx4 {R(vKV)}, v{vL16}, {srd}, s25 offen
    buffer_load_dwordx4 {R(vKV+4)}, v{vL16}, {srd}, s25 offen offset:1024
    s_add_u32 s25, s25, 2048
    s_waitcnt vmcnt(0)''')
    for qt in range(2): smfma(qt, 0, '0')
    for qt in range(2):
        rowmax(qt, vT0 + qt)
        e(f'v_max_f32 v{vP+qt}, v{vP+qt}, v{vT0+qt}')
    e(f's_add_u32 s27, s27, 1\ns_cmp_lt_u32 s27, 64\ns_cbranch_scc1 {Lfb}')
    for qt in range(2):
        xhalfmax(vP + qt); setC(qt, vP + qt)
    e(f's_mov_b32 s28, 1\ns_branch {Lmain}')
    e(Ldone + ':')
    e(f'''v_and_b32 v{vKV}, 63, v0
    v_and_b32 v{vKV+1}, 15, v{vKV}
    v_lshlrev_b32 v{vKV+1}, 4, v{vKV+1}
    v_lshrrev_b32 v{vKV+2}, 5, v{vKV}
    v_lshl_add_u32 v{vKV+1}, v{vKV+2}, 8, v{vKV+1}
    v_bfe_u32 v{vKV+2}, v{vKV}, 4, 1
    v_lshl_add_u32 v{vKV+1}, v{vKV+2}, 15, v{vKV+1}
    s_lshl_b32 s24, s23, 16
    s_lshl_b32 s25, s17, 10
    s_add_u32 s24, s24, s25
    s_add_u32 s24, s24, {L.OB2}''')
    for qt in range(2):
        o = vO + 16 * qt; p = vP + 8 * qt
        e(f'v_rcp_f32 v{vT2}, v{vT0+qt}')
        for i in range(16): e(f'v_mul_f32 v{o+i}, v{o+i}, v{vT2}')
        for i in range(8): e(f'v_cvt_pk_bf16_f32 v{p+i}, v{o+2*i}, v{o+2*i+1}')
        if qt: e('s_add_u32 s24, s24, 65536')
        e(f'buffer_store_dwordx4 {R(p)}, v{vKV+1}, {srd}, s24 offen')
        e(f'buffer_store_dwordx4 {R(p+4)}, v{vKV+1}, {srd}, s24 offen offset:512')
    e(Lx + ':')
    e('s_endpgm')
    return k, 0
```

```python
import re

REG_RE = re.compile(r'^(-|\|)?(abs\()?([vas])(\d+|\[(\d+):(\d+)\])\)?\|?$')

def regs_of(tok):
    tok = tok.strip()
    t = tok
    if t.startswith('-'): t = t[1:]
    if t.startswith('abs(') and t.endswith(')'): t = t[4:-1]
    if t.startswith('|') and t.endswith('|'): t = t[1:-1]
    if t.startswith('neg(') and t.endswith(')'): t = t[4:-1]
    if t in ('vcc',): return {('s', 'vcc_lo'), ('s', 'vcc_hi')}
    if t in ('vcc_lo', 'vcc_hi'): return {('s', t)}
    if t == 'exec': return {('s', 'exec_lo'), ('s', 'exec_hi')}
    if t in ('exec_lo', 'exec_hi'): return {('s', t)}
    if t == 'm0': return {('s', 'm0')}
    m = re.match(r'^([vas])(\d+)$', t)
    if m: return {(m.group(1), int(m.group(2)))}
    m = re.match(r'^([vas])\[(\d+):(\d+)\]$', t)
    if m: return {(m.group(1), i) for i in range(int(m.group(2)), int(m.group(3)) + 1)}
    return set()

TRANS = ('v_exp_f32', 'v_log_f32', 'v_rcp_f32', 'v_rsq_f32', 'v_sqrt_f32', 'v_sin_f32', 'v_cos_f32', 'v_rcp_iflag_f32')

def mfma_passes(op):
    if '32x32x16' in op or '32x32x8' in op: return 8
    if '16x16x32' in op or '16x16x16' in op: return 4
    if op.startswith('v_smfmac'):
        if '16x16x64' in op: return 8
        if '32x32x32' in op: return 16
    if '4x4x4' in op: return 2
    raise ValueError('unknown mfma ' + op)

class Ins:
    __slots__ = ('text', 'op', 'ops', 'mods', 'defs', 'uses', 'kind', 'ws', 'A', 'B', 'C', 'passes', 'dpp',
                 'sdefs', 'store_data', 'vmem_sgpr', 'label', 'target', 'is_branch', 'uncond', 'lane_sel', 'wide')
    def __init__(self, text):
        self.text = text
        self.label = None
        self.target = None
        self.is_branch = False
        self.uncond = False
        self.defs = set(); self.uses = set()
        self.A = set(); self.B = set(); self.C = set()
        self.passes = 0; self.dpp = False; self.store_data = set(); self.vmem_sgpr = set()
        self.kind = 'none'; self.ws = 0; self.op = ''; self.lane_sel = set(); self.wide = False
        s = text.split(';')[0].split('//')[0].strip()
        if not s: return
        if s.endswith(':'):
            self.label = s[:-1]; return
        if s.startswith('.'):
            return
        parts = s.split(None, 1)
        op = parts[0]; self.op = op
        rest = parts[1] if len(parts) > 1 else ''
        toks = []
        depth = 0; cur = ''
        for ch in rest:
            if ch in '[(': depth += 1
            if ch in '])': depth -= 1
            if ch == ',' and depth == 0:
                toks.append(cur.strip()); cur = ''
            else: cur += ch
        if cur.strip(): toks.append(cur.strip())
        mods = ''
        if toks:
            last = toks[-1].split(None, 1)
            toks[-1] = last[0]
            if len(last) > 1: mods = last[1]
        self.ops = toks; self.mods = mods
        self.ws = 1
        base = re.sub(r'_(e32|e64|dpp|sdwa)$', '', op)
        R = [regs_of(t) for t in toks]
        if op == 's_nop':
            self.ws = int(toks[0], 0) + 1; self.kind = 'nop'; return
        if op.startswith('v_mfma') or op.startswith('v_smfmac'):
            self.kind = 'mfma'; self.passes = mfma_passes(op)
            self.defs = R[0]; self.A = R[1]; self.B = R[2]
            if op.startswith('v_smfmac'):
                self.C = R[0]; self.B = R[2] | R[3]
            else:
                self.C = R[3]
            self.uses = self.A | self.B | self.C
            return
        if op.startswith('v_'):
            self.kind = 'valu'
            if re.search(r'quad_perm|row_shl|row_shr|row_ror|wave_|row_mirror|row_half_mirror|row_bcast|row_newbcast', mods):
                self.dpp = True
            if base.startswith('v_cmp'):
                self.defs = R[0]
                if base.startswith('v_cmpx'): self.defs = self.defs | regs_of('exec')
                for r in R[1:]: self.uses |= r
            elif base in ('v_permlane32_swap_b32', 'v_permlane16_swap_b32', 'v_swap_b32'):
                self.defs = R[0] | R[1]; self.uses = R[0] | R[1]
            elif base in ('v_add_co_u32', 'v_sub_co_u32', 'v_subrev_co_u32', 'v_addc_co_u32', 'v_subb_co_u32', 'v_mad_u64_u32', 'v_div_scale_f32'):
                self.defs = R[0] | R[1]
                for r in R[2:]: self.uses |= r
            elif base in ('v_readlane_b32', 'v_writelane_b32'):
                self.defs = R[0]; self.uses = R[1] | R[2]; self.lane_sel = R[2]
                if base == 'v_writelane_b32': self.uses |= R[0]
            elif base in ('v_nop',):
                pass
            else:
                self.defs = R[0]
                for r in R[1:]: self.uses |= r
                if base in ('v_fmac_f32', 'v_mac_f32', 'v_pk_fmac_f16', 'v_dot2c_f32_bf16', 'v_fmaak_f32') or base.startswith('v_accvgpr_mov'):
                    if base != 'v_fmaak_f32': self.uses |= R[0]
                if self.dpp or 'op_sel' in mods and base in ('v_cvt_pk_bf16_f32',):
                    self.uses |= R[0]
            return
        if op.startswith('ds_'):
            self.kind = 'ds'
            if op.startswith('ds_read') or op.startswith('ds_bpermute') or op.startswith('ds_permute') or op.startswith('ds_swizzle') or '_rtn_' in op:
                self.defs = R[0]
                for r in R[1:]: self.uses |= r
            else:
                for r in R: self.uses |= r
            return
        if op.startswith('global_') or op.startswith('buffer_') or op.startswith('flat_'):
            self.kind = 'vmem'
            lds = bool(re.search(r'\blds\b', mods)) or 'load_lds' in op
            if op in ('buffer_inv', 'buffer_wbl2'):
                return
            if op.startswith('buffer_'):
                if 'load' in op and not lds:
                    self.defs = R[0]; idx = 1
                elif 'load' in op and lds:
                    idx = 0
                elif 'store' in op:
                    self.store_data = R[0]; self.uses |= R[0]; idx = 1
                    self.wide = op.endswith('x3') or op.endswith('x4')
                elif 'atomic' in op:
                    self.store_data = R[0]; self.uses |= R[0]; idx = 1
                    if 'sc0' in mods: self.defs = R[0]
                for r in R[idx:]:
                    self.uses |= r
                    self.vmem_sgpr |= {x for x in r if x[0] == 's'}
            else:
                if 'load' in op and not lds:
                    self.defs = R[0]; idx = 1
                elif 'load' in op and lds:
                    idx = 0
                elif 'store' in op:
                    self.store_data = R[1]; idx = 0
                    self.wide = op.endswith('x3') or op.endswith('x4')
                elif 'atomic' in op:
                    if 'sc0' in mods.split():
                        self.defs = R[0]; idx = 1
                    else:
                        idx = 0
                for r in R[idx:]:
                    self.uses |= r
                    self.vmem_sgpr |= {x for x in r if x[0] == 's'}
            if lds: self.uses |= {('s', 'm0')}; self.mods += ' <ldsdma>'
            return
        if op.startswith('s_'):
            self.kind = 'salu'
            if op in ('s_branch',):
                self.is_branch = True; self.uncond = True; self.target = toks[0]; return
            if op.startswith('s_cbranch'):
                self.is_branch = True; self.target = toks[0]; return
            if op == 's_endpgm':
                self.uncond = True; self.is_branch = True; self.target = None; return
            if op in ('s_waitcnt', 's_barrier', 's_setprio', 's_sleep', 's_sethalt', 's_setpc_b64'):
                return
            if op.startswith('s_cmp') or op.startswith('s_bitcmp'):
                for r in R: self.uses |= r
                return
            if op.startswith('s_load') or op.startswith('s_buffer_load') or op in ('s_memtime', 's_memrealtime'):
                self.kind = 'smem'
            self.defs = R[0] if R else set()
            for r in R[1:]: self.uses |= r
            if 'saveexec' in op: self.defs |= regs_of('exec')
            return
        raise ValueError('hazard.py: unknown instruction: ' + text)

def vregs(s): return {x for x in s if x[0] in 'va'}
def sregs(s): return {x for x in s if x[0] == 's'}

XDL_C_OVERLAP = {2: 4, 4: 6, 8: 10, 16: 18}
XDL_AB = {2: 5, 4: 8, 8: 12, 16: 20}
XDL_VALU = {2: 5, 4: 8, 8: 12, 16: 20}
XDL_WAR_C = {2: 1, 4: 3, 8: 7, 16: 15}

def need(p, c):
    n = 0
    if p.kind == 'valu':
        pv = vregs(p.defs); ps = sregs(p.defs)
        if c.kind == 'mfma' and pv & c.uses: n = max(n, 2)
        if c.kind == 'mfma' and ('s', 'exec_lo') in ps: n = max(n, 4)
        if c.kind == 'valu':
            if c.dpp and pv & c.uses: n = max(n, 2)
            if c.dpp and ('s', 'exec_lo') in ps: n = max(n, 5)
            cb = re.sub(r'_(e32|e64|dpp|sdwa)$', '', c.op)
            if cb in ('v_readlane_b32', 'v_readfirstlane_b32') and pv & c.uses: n = max(n, 1)
            if cb.startswith('v_permlane') and pv & c.uses: n = max(n, 2)
            if ps & c.lane_sel: n = max(n, 4)
            if ps & sregs(c.uses): n = max(n, 2)
            if ('s', 'exec_lo') in ps and cb in ('v_readlane_b32', 'v_readfirstlane_b32', 'v_writelane_b32', ) : n = max(n, 4)
            if ('s', 'exec_lo') in ps and cb.startswith('v_permlane'): n = max(n, 4)
            pb = re.sub(r'_(e32|e64|dpp|sdwa)$', '', p.op)
            if pb in TRANS and cb not in TRANS and pv & (c.uses | c.defs): n = max(n, 1)
            if pb in TRANS and cb in TRANS and pv & c.uses: n = max(n, 1)
        if c.kind == 'vmem' and ps & c.vmem_sgpr: n = max(n, 5)
        if c.kind == 'salu' or c.kind == 'smem':
            if ps & c.uses: n = max(n, 4)
    if p.kind == 'mfma':
        d = p.defs
        if c.kind == 'mfma':
            if d & c.C:
                if not (c.C == d and c.passes == p.passes): n = max(n, XDL_C_OVERLAP[p.passes])
                elif p.passes == 2: n = max(n, 2)
            if d & (c.A | c.B): n = max(n, XDL_AB[p.passes])
            if d & c.defs and not (d & c.C):
                if not (c.defs == d and c.passes == p.passes): n = max(n, XDL_C_OVERLAP[p.passes])
        elif c.kind in ('valu', 'vmem', 'ds'):
            if d & (c.uses | c.defs): n = max(n, XDL_VALU[p.passes])
        if c.kind == 'valu' and p.C & vregs(c.defs): n = max(n, XDL_WAR_C[p.passes])
        if c.kind in ('vmem', 'ds') and p.C & vregs(c.defs): n = max(n, XDL_WAR_C[p.passes])
    if p.kind == 'vmem' and p.wide and p.store_data:
        if p.store_data & vregs(c.defs):
            n = max(n, 2 if c.kind in ('valu', 'mfma') else 1)
    if p.kind == 'ds' and p.op in ('ds_write_b128', 'ds_write_b96'):
        pass
    if p.kind == 'salu' and ('s', 'm0') in p.defs:
        if c.kind == 'vmem' and '<ldsdma>' in c.mods: n = max(n, 1)
        if c.kind == 'ds' and 'addtid' in c.op: n = max(n, 1)
    return n

MAXW = 20

def build(lines):
    ins = [Ins(l) for l in lines]
    labels = {}
    for i, x in enumerate(ins):
        if x.label: labels[x.label] = i
    preds = [[] for _ in ins]
    for i, x in enumerate(ins):
        if x.is_branch:
            if x.target is not None and x.target in labels: preds[labels[x.target]].append(i)
            if x.uncond: continue
        if i + 1 < len(ins): preds[i + 1].append(i)
    return ins, preds

def violations(lines):
    ins, preds = build(lines)
    out = []
    for i, c in enumerate(ins):
        if c.ws == 0 or c.kind in ('nop', 'none'): continue
        worst = 0; who = None
        stack = [(p, 0) for p in preds[i]]
        seen = {}
        while stack:
            j, dist = stack.pop()
            if dist >= MAXW: continue
            if j in seen and seen[j] <= dist: continue
            seen[j] = dist
            p = ins[j]
            if p.ws and p.kind != 'nop':
                n = need(p, c)
                if n > dist and n - dist > worst:
                    worst = n - dist; who = j
            for q in preds[j]:
                stack.append((q, dist + p.ws))
        if worst: out.append((i, worst, who))
    return out

def fix(lines, verbose=False):
    lines = list(lines)
    total = 0
    for it in range(400):
        v = violations(lines)
        if not v: return lines, total
        sel = []; last = -1000
        for (i, w, who) in sorted(v):
            if i - last > 24:
                sel.append((i, w, who)); last = i
        for (i, w, who) in reversed(sel):
            if verbose: print('hazard: %d states: %s  ->  %s' % (w, lines[who].strip(), lines[i].strip()))
            k = w
            nops = []
            while k > 0:
                m = min(k, 16); nops.append('  s_nop %d' % (m - 1)); k -= m
            lines[i:i] = nops
            total += w
    raise RuntimeError('hazard fix did not converge')

if __name__ == '__main__':
    import sys
    L = open(sys.argv[1]).read().split('\n')
    v = violations(L)
    for (i, w, who) in v: print('line %d: need %d more: %s -> %s' % (i + 1, w, L[who].strip(), L[i].strip()))
    print(len(v), 'violations')
```

```python
S = 2048; D = 640; H = 32; DH = 192; M = 8; SEG = 32; NSEG = 64
_off = 0
R = {}
def _r(name, size, align=4096):
    global _off
    _off = (_off + align - 1) // align * align
    R[name] = (_off, size)
    _off += size
    return R[name][0]

FR = 1024
MEMB = _r('MEMB', 8 * 4 * 10240)
QK   = _r('QK', 32 * 4 * 6144)
OB   = _r('OB', 8 * 4 * 12288)
PROG = _r('PROG', 4096 * 8)
PROG2 = _r('PROG2', 4096 * 2, align=4096)
EXCH_END = _off
FLIP = _r('FLIP', 4096)
EXCH_SIZE = EXCH_END - MEMB
PARTR = _r('PARTR', 4 << 20, align=2 << 20)
PART_SIZE = 32 * 49152
PROBE_OFF = PART_SIZE
WQP = _r('WQP', 32 * 12 * 20 * FR)
WKP = _r('WKP', 32 * 12 * 20 * FR)
WVP = _r('WVP', 32 * 12 * 20 * FR)
WOP = _r('WOP', 40 * 192 * FR)
KT  = _r('KT', 32 * 64 * 12 * FR)
VT  = _r('VT', 32 * 64 * 12 * FR)
QT  = _r('QT', 32 * 64 * 12 * FR)
KM  = _r('KM', 64 * 32 * 6 * 512)
VM  = _r('VM', 64 * 32 * 6 * 512)
OT  = _r('OT', 128 * 192 * FR)
X1  = _r('X1', 2048 * 640 * 2)
XNF = _r('XNF', 64 * 40 * FR)
WB1 = _r('WB1', 3 * 32 * 40 * FR)
WB2 = _r('WB2', 40 * 32 * FR)
QB  = _r('QB', 32 * 64 * 2 * FR)
KB  = _r('KB', 32 * 64 * 2 * FR)
VB  = _r('VB', 32 * 128 * FR)
OB2 = _r('OB2', 128 * 32 * FR)
PARTO = _r('PARTO', 8 * 128 * 20 * FR)
XNB = _r('XNB', 64 * 40 * FR)
STAMP = _r('STAMP', 1 << 20)
WS_USED = _off
WS_SIZE = 268435456
def pi(g, jj):
    return 4 * g + jj if jj < 4 else 16 + 4 * g + (jj - 4)
if __name__ == '__main__':
    for k, v in R.items(): print(k, hex(v[0]), v[1])
    print('used', WS_USED)
```

```python
import struct
from asmgen import *
import layout as L
OOB = 0x80000000
def fbits(x): return struct.unpack('<I', struct.pack('<f', x))[0]

def gen(name, from_input):
    k = Kernel(name, vgpr=80, agpr=0, sgpr=32); e = k.e
    vX = 8
    vF = 28
    vA, vT0, vT1, vS, vLd = 1, 2, 3, 4, 5
    Lx = k.label('exit')
    e(f'''s_cmp_ge_u32 s2, 128
    s_cbranch_scc1 {Lx}
    s_load_dwordx2 s[12:13], s[0:1], 96
    s_load_dwordx2 s[14:15], s[0:1], 0
    v_lshrrev_b32 v{vT0}, 6, v0
    v_and_b32 v{vT1}, 63, v0
    s_nop 0
    v_readfirstlane_b32 s16, v{vT0}
    s_waitcnt lgkmcnt(0)
    s_mov_b32 s4, s12
    s_mov_b32 s5, s13
    s_mov_b32 s6, 0x10000000
    s_mov_b32 s7, 0x20000''')
    if from_input:
        e(f's_mov_b32 s8, s14\ns_mov_b32 s9, s15\ns_mov_b32 s10, {2048*1280}\ns_mov_b32 s11, 0x20000\ns_mov_b32 s20, 0')
    else:
        e(f's_mov_b32 s8, s12\ns_mov_b32 s9, s13\ns_mov_b32 s10, 0x10000000\ns_mov_b32 s11, 0x20000\ns_mov_b32 s20, {L.X1}')
    e(f'''v_and_b32 v{vT0}, 15, v{vT1}
    v_lshrrev_b32 v{vS}, 4, v{vT1}
    s_lshl_b32 s17, s2, 4
    v_add_u32 v{vA}, s17, v{vT0}
    v_mul_u32_u24 v{vA}, 1280, v{vA}
    v_lshl_add_u32 v{vA}, v{vS}, 4, v{vA}
    s_mul_i32 s17, s16, 320
    s_add_u32 s20, s20, s17''')
    for q in range(5):
        e(f'buffer_load_dwordx4 v[{vX+4*q}:{vX+4*q+3}], v{vA}, s[8:11], s20 offen offset:{q*64}')
    e(f'''v_lshlrev_b32 v{vLd}, 2, v{vT0}
    s_lshl_b32 s17, s16, 6
    v_add_u32 v{vA}, s17, v{vLd}
    s_waitcnt vmcnt(0)''')
    for i in range(20):
        e(f'v_lshlrev_b32 v{vF+2*i}, 16, v{vX+i}')
        e(f'v_and_b32 v{vF+2*i+1}, 0xffff0000, v{vX+i}')
    def reduce_row(off):
        e(f'''v_mov_b32 v{vT0}, v{vS}
        v_permlane32_swap_b32 v{vS}, v{vT0}
        v_add_f32 v{vS}, v{vS}, v{vT0}
        v_mov_b32 v{vT0}, v{vS}
        v_permlane16_swap_b32 v{vS}, v{vT0}
        v_add_f32 v{vS}, v{vS}, v{vT0}
        ds_write_b32 v{vA}, v{vS} offset:{off}
        s_waitcnt lgkmcnt(0)
        s_barrier
        ds_read_b32 v{vS}, v{vLd} offset:{off}
        ds_read_b32 v{vT0}, v{vLd} offset:{off+64}
        ds_read_b32 v{vT1}, v{vLd} offset:{off+128}
        ds_read_b32 v6, v{vLd} offset:{off+192}
        s_waitcnt lgkmcnt(0)
        v_add_f32 v{vS}, v{vS}, v{vT0}
        v_add_f32 v{vT1}, v{vT1}, v6
        v_add_f32 v{vS}, v{vS}, v{vT1}''')
    e(f'v_pk_add_f32 v[6:7], v[{vF}:{vF+1}], v[{vF+2}:{vF+3}]')
    for i in range(2, 20):
        e(f'v_pk_add_f32 v[6:7], v[6:7], v[{vF+2*i}:{vF+2*i+1}]')
    e(f'v_add_f32 v{vS}, v6, v7')
    reduce_row(0)
    e(f'v_mul_f32 v{vS}, {fbits(1/640):#x}, v{vS}')
    for i in range(40):
        e(f'v_sub_f32 v{vF+i}, v{vF+i}, v{vS}')
    e(f'v_mul_f32 v6, v{vF}, v{vF}')
    e(f'v_mul_f32 v7, v{vF+1}, v{vF+1}')
    for i in range(1, 20):
        e(f'v_fmac_f32 v6, v{vF+2*i}, v{vF+2*i}')
        e(f'v_fmac_f32 v7, v{vF+2*i+1}, v{vF+2*i+1}')
    e(f'v_add_f32 v{vS}, v6, v7')
    reduce_row(256)
    e(f'''v_mov_b32 v{vT0}, {fbits(1e-5):#x}
    v_fmac_f32 v{vT0}, {fbits(1/640):#x}, v{vS}
    v_rsq_f32 v{vS}, v{vT0}''')
    for i in range(40):
        e(f'v_mul_f32 v{vF+i}, v{vF+i}, v{vS}')
    for i in range(20):
        e(f'v_cvt_pk_bf16_f32 v{vX+i}, v{vF+2*i}, v{vF+2*i+1}')
    e(f'''v_and_b32 v{vT1}, 63, v0
    v_lshlrev_b32 v{vA}, 4, v{vT1}
    s_mul_i32 s17, s2, 20480
    s_mul_i32 s18, s16, 5120
    s_add_u32 s17, s17, s18
    s_add_u32 s17, s17, {L.XNF}''')
    for q in range(5):
        if q == 4: e('s_add_u32 s17, s17, 4096')
        e(f'buffer_store_dwordx4 v[{vX+4*q}:{vX+4*q+3}], v{vA}, s[4:7], s17 offen offset:{(q%4)*1024}')
    e(Lx + ':')
    e('s_endpgm')
    return k, 512
```

```python
from asmgen import *
import layout as L
OOB = 0x80000000
NCH = 48
ABUF = 20480
LDS_SIZE = 3 * ABUF

def gen(name, res_from_input, nk=192, wbase=None, abase=None, out_to_dout=False):
    k = Kernel(name, vgpr=128, agpr=0, sgpr=64); e = k.e
    wbase = L.WOP if wbase is None else wbase; abase = L.OT if abase is None else abase
    nch = nk // 4; assert nch % 3 != 1 or True
    srd = 's[4:7]'; srdx = 's[8:11]'
    vL16, vA, vT0, vT1, vRd, vX = 1, 2, 3, 4, 5, 6
    vAcc = 8
    vB = 32
    vAf = 80
    Lx = k.label('exit')
    e(f'''s_cmp_ge_u32 s2, 256
    s_cbranch_scc1 {Lx}
    s_load_dwordx2 s[12:13], s[0:1], 96
    s_load_dwordx2 s[14:15], s[0:1], 0
    s_load_dwordx2 s[48:49], s[0:1], 80
    v_lshrrev_b32 v{vT0}, 6, v0
    v_and_b32 v{vT1}, 63, v0
    s_nop 0
    v_readfirstlane_b32 s16, v{vT0}
    v_lshlrev_b32 v{vL16}, 4, v{vT1}
    s_and_b32 s17, s2, 7
    s_lshl_b32 s17, s17, 2
    s_lshr_b32 s18, s2, 3
    s_and_b32 s19, s18, 3
    s_add_u32 s17, s17, s19
    s_lshr_b32 s18, s18, 2
    s_waitcnt lgkmcnt(0)
    s_mov_b32 s4, s12
    s_mov_b32 s5, s13
    s_mov_b32 s6, 0x10000000
    s_mov_b32 s7, 0x20000''')
    if res_from_input:
        e(f's_mov_b32 s8, s14\ns_mov_b32 s9, s15\ns_mov_b32 s10, {2048*1280}\ns_mov_b32 s11, 0x20000\ns_mov_b32 s20, 0')
    else:
        e(f's_mov_b32 s8, s12\ns_mov_b32 s9, s13\ns_mov_b32 s10, 0x10000000\ns_mov_b32 s11, 0x20000\ns_mov_b32 s20, {L.X1}')
    e(f's_mov_b32 s52, s48\ns_mov_b32 s53, s49\ns_mov_b32 s54, {2048*1280}\ns_mov_b32 s55, 0x20000')
    e(f'''s_mul_i32 s21, s18, 5
    s_mul_i32 s21, s21, {nk*1024}
    s_add_u32 s24, s21, {wbase}
    s_add_u32 s25, s24, {nk*1024}
    s_add_u32 s26, s25, {nk*1024}
    s_add_u32 s27, s26, {nk*1024}
    s_add_u32 s28, s27, {nk*1024}
    s_lshl_b32 s21, s17, 2
    s_add_u32 s21, s21, s16
    s_mul_i32 s22, s21, {nk*1024}
    s_add_u32 s22, s22, {abase}
    s_lshl_b32 s23, s16, 10
    v_add_u32 v{vA}, s23, v{vL16}
    s_mul_i32 s29, s16, 5120''')
    def issue(c_slot):
        for i in range(5):
            e(f's_add_u32 m0, s29, {c_slot*ABUF + i*1024}')
            e('s_nop 0')
            e(f'buffer_load_dwordx4 v{vA}, {srd}, s{24+i} offen lds')
        for q in range(4):
            b = vB + 16 * c_slot + 4 * q
            e(f'buffer_load_dwordx4 v[{b}:{b+3}], v{vL16}, {srd}, s22 offen offset:{q*1024}')
        e(f'''v_add_u32 v{vA}, 0x1000, v{vA}
        s_add_u32 s22, s22, 4096''')
    issue(0); issue(1)
    def compute(slot, first):
        def rd(q):
            for i in range(5):
                b = vAf + 20 * (q % 2) + 4 * i
                e(f'ds_read_b128 v[{b}:{b+3}], v{vL16} offset:{slot*ABUF + (q*5+i)*1024}')
        rd(0)
        for q in range(4):
            if q < 3:
                rd(q + 1); e('s_waitcnt lgkmcnt(5)')
            else: e('s_waitcnt lgkmcnt(0)')
            bb = vB + 16 * slot + 4 * q
            for i in range(5):
                a = vAf + 20 * (q % 2) + 4 * i
                acc = f'v[{vAcc+4*i}:{vAcc+4*i+3}]'
                c = '0' if (first and q == 0) else acc
                e(f'v_mfma_f32_16x16x32_bf16 {acc}, v[{a}:{a+3}], v[{bb}:{bb+3}], {c}')
    e('s_waitcnt vmcnt(9)\ns_barrier')
    issue(2); compute(0, True)
    rem = nch - 3
    trips, extra = rem // 3, rem % 3
    Ll = k.label('loop')
    if trips:
        e('s_mov_b32 s30, 0')
        e(Ll + ':')
        for slot in (1, 2, 0):
            e('s_waitcnt vmcnt(9)\ns_barrier')
            issue((slot + 2) % 3); compute(slot, False)
        e(f's_add_u32 s30, s30, 1\ns_cmp_lt_u32 s30, {trips}\ns_cbranch_scc1 {Ll}')
    c = 1 + 3 * trips
    for _ in range(extra):
        e('s_waitcnt vmcnt(9)\ns_barrier')
        issue((c + 2) % 3); compute(c % 3, False); c += 1
    e('s_waitcnt vmcnt(9)\ns_barrier'); compute(c % 3, False); c += 1
    e('s_waitcnt vmcnt(0)\ns_barrier'); compute(c % 3, False)
    e(f'''v_and_b32 v{vT0}, 63, v0
    v_and_b32 v{vT1}, 15, v{vT0}
    v_lshrrev_b32 v{vT0}, 4, v{vT0}
    s_lshl_b32 s21, s17, 6
    s_lshl_b32 s23, s16, 4
    s_add_u32 s21, s21, s23
    v_add_u32 v{vT1}, s21, v{vT1}
    v_mul_u32_u24 v{vX}, 1280, v{vT1}
    v_lshl_add_u32 v{vX}, v{vT0}, 4, v{vX}
    s_mul_i32 s21, s18, 5''')
    for i in range(5):
        e(f'''s_add_u32 s23, s21, {i}
        s_lshr_b32 s31, s23, 1
        s_lshl_b32 s31, s31, 6
        s_and_b32 s23, s23, 1
        s_lshl_b32 s23, s23, 3
        s_add_u32 s{32+i}, s31, s23
        s_add_u32 s{40+i}, s{32+i}, s20
        buffer_load_dwordx2 v[{vB+2*i}:{vB+2*i+1}], v{vX}, {srdx}, s{40+i} offen''')
    e('s_waitcnt vmcnt(0)')
    for i in range(5):
        a = vAcc + 4 * i; xr = vB + 2 * i; t = vAf
        e(f'''v_cvt_pk_bf16_f32 v{t}, v{a}, v{a+1}
        v_cvt_pk_bf16_f32 v{t+1}, v{a+2}, v{a+3}
        v_lshlrev_b32 v{a}, 16, v{t}
        v_and_b32 v{a+1}, 0xffff0000, v{t}
        v_lshlrev_b32 v{a+2}, 16, v{t+1}
        v_and_b32 v{a+3}, 0xffff0000, v{t+1}
        v_lshlrev_b32 v{t+2}, 16, v{xr}
        v_and_b32 v{t+3}, 0xffff0000, v{xr}
        v_lshlrev_b32 v{t+4}, 16, v{xr+1}
        v_and_b32 v{t+5}, 0xffff0000, v{xr+1}
        v_add_f32 v{a}, v{a}, v{t+2}
        v_add_f32 v{a+1}, v{a+1}, v{t+3}
        v_add_f32 v{a+2}, v{a+2}, v{t+4}
        v_add_f32 v{a+3}, v{a+3}, v{t+5}
        v_cvt_pk_bf16_f32 v{xr}, v{a}, v{a+1}
        v_cvt_pk_bf16_f32 v{xr+1}, v{a+2}, v{a+3}
        ''')
        if out_to_dout:
            e(f'buffer_store_dwordx2 v[{xr}:{xr+1}], v{vX}, s[52:55], s{32+i} offen')
        else:
            e(f'''s_add_u32 s23, s{32+i}, {L.X1}
            buffer_store_dwordx2 v[{xr}:{xr+1}], v{vX}, {srd}, s23 offen''')
    e(Lx + ':')
    e('s_endpgm')
    return k
```

```python
from asmgen import *
import layout as L
OOB = 0x80000000
N1, N2, N3, N4 = 3 * 96 * 20, 10 * 192, 3 * 8 * 40, 10 * 32
NW = N1 + N2 + N3 + N4
NWG = NW // 4

def gen(name='prep_kernel'):
    k = Kernel(name, vgpr=64, agpr=0, sgpr=64); e = k.e
    ws = 's[4:7]'; src = 's[8:11]'
    vL, vI, vG, vA, vL16, vT = 1, 2, 3, 4, 5, 6
    vD = 16
    vPk = 48
    Lx = k.label('exit'); S2 = k.label('s2'); S3 = k.label('s3'); S4 = k.label('s4')
    e(f'''s_cmp_ge_u32 s2, {NWG}
    s_cbranch_scc1 {Lx}
    s_load_dwordx2 s[12:13], s[0:1], 96
    s_load_dwordx4 s[16:19], s[0:1], 16
    s_load_dwordx4 s[20:23], s[0:1], 32
    s_load_dwordx4 s[24:27], s[0:1], 64
    v_lshrrev_b32 v{vT}, 6, v0
    v_and_b32 v{vL}, 63, v0
    s_nop 0
    v_readfirstlane_b32 s14, v{vT}
    v_lshlrev_b32 v{vL16}, 4, v{vL}
    s_lshl_b32 s15, s2, 2
    s_add_u32 s15, s15, s14
    s_waitcnt lgkmcnt(0)
    s_mov_b32 s4, s12
    s_mov_b32 s5, s13
    s_mov_b32 s6, 0x10000000
    s_mov_b32 s7, 0x20000
    s_mov_b32 s11, 0x20000
    v_and_b32 v{vI}, 15, v{vL}
    v_lshrrev_b32 v{vG}, 4, v{vL}''')
    def gather_pack_store(jj_off, frag_off, frag_dst, addr_regs=None):
        for i in range(4):
            for jj in range(8):
                off = frag_off[i] + jj_off[jj]
                va = vA if addr_regs is None else addr_regs[jj]
                e(f's_mov_b32 s29, {off}')
                e(f'buffer_load_ushort v{vD+8*i+jj}, v{va}, {src}, s29 offen')
        for i in range(4):
            e(f's_waitcnt vmcnt({8*(3-i) + i})')
            for q in range(4):
                e(f'v_lshl_or_b32 v{vPk+4*i+q}, v{vD+8*i+2*q+1}, 16, v{vD+8*i+2*q}')
            frag_dst(i)
            e(f'buffer_store_dwordx4 v[{vPk+4*i}:{vPk+4*i+3}], v{vL16}, {ws}, s30 offen')
    e(f'''s_cmp_ge_u32 s15, {N1}
    s_cbranch_scc1 {S2}''')
    e(f'''s_mul_hi_u32 s31, s15, {(1<<32)//1920 + 1}
    s_mul_i32 s32, s31, 1920
    s_sub_u32 s32, s15, s32
    s_mul_hi_u32 s33, s32, {(1<<32)//20 + 1}
    s_mul_i32 s34, s33, 20
    s_sub_u32 s34, s32, s34
    s_cmp_eq_u32 s31, 0
    s_cselect_b32 s8, s16, s18
    s_cselect_b32 s9, s17, s19
    s_cmp_eq_u32 s31, 2
    s_cselect_b32 s8, s20, s8
    s_cselect_b32 s9, s21, s9
    s_mov_b32 s10, {640*12288}
    s_mul_i32 s35, s31, {L.WKP - L.WQP}
    s_add_u32 s35, s35, {L.WQP}''')
    assert L.WVP - L.WKP == L.WKP - L.WQP
    e(f'''v_lshlrev_b32 v{vT}, 3, v{vG}
    s_lshl_b32 s36, s34, 5
    v_add_u32 v{vT}, s36, v{vT}
    s_mov_b32 s37, 12288
    v_mul_lo_u32 v{vA}, v{vT}, s37
    s_lshl_b32 s36, s33, 7
    v_lshl_add_u32 v{vA}, v{vI}, 1, v{vA}
    v_add_u32 v{vA}, s36, v{vA}''')
    def d1(i):
        e(f'''s_lshl_b32 s30, s33, 2
        s_add_u32 s30, s30, {i}
        s_mul_i32 s30, s30, 20
        s_add_u32 s30, s30, s34
        s_lshl_b32 s30, s30, 10
        s_add_u32 s30, s30, s35''')
    gather_pack_store([jj * 12288 for jj in range(8)], [32 * i for i in range(4)], d1)
    e(f's_branch {Lx}')
    e(S2 + ':')
    e(f'''s_sub_u32 s15, s15, {N1}
    s_cmp_ge_u32 s15, {N2}
    s_cbranch_scc1 {S3}''')
    e(f'''s_mul_hi_u32 s33, s15, {(1<<32)//192 + 1}
    s_mul_i32 s34, s33, 192
    s_sub_u32 s34, s15, s34
    s_mov_b32 s8, s22
    s_mov_b32 s9, s23
    s_mov_b32 s10, {6144*1280}''')
    e(f'''v_lshlrev_b32 v{vT}, 2, v{vG}
    s_lshl_b32 s36, s34, 5
    v_add_u32 v{vT}, s36, v{vT}
    v_mul_u32_u24 v{vA}, 1280, v{vT}
    v_lshrrev_b32 v{vT}, 2, v{vI}
    v_lshl_add_u32 v{vA}, v{vT}, 4, v{vA}
    v_and_b32 v{vT}, 3, v{vI}
    v_lshl_add_u32 v{vA}, v{vT}, 1, v{vA}
    s_lshl_b32 s36, s33, 7
    v_add_u32 v{vA}, s36, v{vA}''')
    def d2(i):
        e(f'''s_lshl_b32 s30, s33, 2
        s_add_u32 s30, s30, {i}
        s_mul_i32 s30, s30, 192
        s_add_u32 s30, s30, s34
        s_lshl_b32 s30, s30, 10
        s_add_u32 s30, s30, {L.WOP}''')
    gather_pack_store([(jj if jj < 4 else 16 + jj - 4) * 1280 for jj in range(8)], [(32 * (i >> 1) + 4 * (i & 1)) * 2 for i in range(4)], d2)
    e(f's_branch {Lx}')
    e(S3 + ':')
    e(f'''s_sub_u32 s15, s15, {N2}
    s_cmp_ge_u32 s15, {N3}
    s_cbranch_scc1 {S4}''')
    e(f'''s_mul_hi_u32 s33, s15, {(1<<32)//40 + 1}
    s_mul_i32 s34, s33, 40
    s_sub_u32 s34, s15, s34
    s_mov_b32 s8, s24
    s_mov_b32 s9, s25
    s_mov_b32 s10, {640*3840}''')
    e(f'''v_lshrrev_b32 v{vT}, 5, v{vL}
    v_lshlrev_b32 v{vT}, 3, v{vT}
    s_lshl_b32 s36, s34, 4
    v_add_u32 v{vT}, s36, v{vT}
    v_mul_u32_u24 v{vA}, 3840, v{vT}
    v_and_b32 v{vT}, 31, v{vL}
    v_lshl_add_u32 v{vA}, v{vT}, 1, v{vA}
    s_mul_i32 s36, s33, 160
    v_add_u32 v{vA}, s36, v{vA}
    v_cmp_gt_u32 vcc, 20, v{vT}
    v_mov_b32 v{vT}, {OOB:#x}
    v_cndmask_b32 v{vA}, v{vT}, v{vA}, vcc''')
    def d3(i):
        e(f'''s_lshl_b32 s30, s33, 2
        s_add_u32 s30, s30, {i}
        s_mul_i32 s30, s30, 40
        s_add_u32 s30, s30, s34
        s_lshl_b32 s30, s30, 10
        s_add_u32 s30, s30, {L.WB1}''')
    gather_pack_store([jj * 3840 for jj in range(8)], [40 * i for i in range(4)], d3)
    e(f's_branch {Lx}')
    e(S4 + ':')
    e(f'''s_sub_u32 s15, s15, {N3}
    s_mul_hi_u32 s33, s15, {(1<<32)//32}
    s_and_b32 s34, s15, 31
    s_lshr_b32 s33, s15, 5
    s_mov_b32 s8, s26
    s_mov_b32 s9, s27
    s_mov_b32 s10, {640*1280}''')
    e(f'''v_lshrrev_b32 v{vT}, 1, v{vG}
    v_lshlrev_b32 v{vT}, 4, v{vT}
    v_and_b32 v7, 1, v{vG}
    v_lshl_add_u32 v{vT}, v7, 2, v{vT}
    v_mov_b32 v8, v{vT}
    s_mul_i32 s36, s34, 20
    v_add_u32 v{vT}, s36, v{vT}
    v_mul_u32_u24 v{vA}, 1280, v{vT}
    v_lshrrev_b32 v{vT}, 2, v{vI}
    v_lshl_add_u32 v{vA}, v{vT}, 4, v{vA}
    v_and_b32 v{vT}, 3, v{vI}
    v_lshl_add_u32 v{vA}, v{vT}, 1, v{vA}
    s_lshl_b32 s36, s33, 7
    v_add_u32 v{vA}, s36, v{vA}
    v_mov_b32 v9, {OOB:#x}
    v_cmp_gt_u32 vcc, 17, v8
    v_cndmask_b32 v10, v9, v{vA}, vcc
    v_cmp_gt_u32 vcc, 9, v8
    v_cndmask_b32 v11, v9, v{vA}, vcc''')
    def d4(i):
        e(f'''s_lshl_b32 s30, s33, 2
        s_add_u32 s30, s30, {i}
        s_lshl_b32 s30, s30, 5
        s_add_u32 s30, s30, s34
        s_lshl_b32 s30, s30, 10
        s_add_u32 s30, s30, {L.WB2}''')
    gather_pack_store([(8 * (jj >> 2) + (jj & 3)) * 1280 for jj in range(8)], [(32 * (i >> 1) + 4 * (i & 1)) * 2 for i in range(4)], d4,
                      addr_regs=[10] * 4 + [11] * 4)
    e(Lx + ':')
    e('s_endpgm')
    return k, NWG
```

```python
from asmgen import *
import layout as L

OOB = 0x80000000
LDS_X = 0
XBUF = 40960
LDS_SIZE = 2 * XBUF

PLAN = [
    [('pair', 'k', 0), ('pair', 'k', 1), ('v', 0)],
    [('pair', 'k', 2), ('v', 1), ('v', 2), ('v', 3)],
    [('pair', 'q', 0), ('v', 4), ('v', 5)],
    [('pair', 'q', 1), ('pair', 'q', 2)],
]

def emit(k, sWS, sX, sC, sW, sTO, Lexit, nseg, LEAD, stflag=''):
    e = k.e
    sH, sHalf, sS, sT0, sT1, sT2, sT3 = 15, 16, 17, 34, 35, 36, 37
    sXs, sOutK, sOutQ, sOutV, sFlag, sProg, sBuf = 20, 21, 22, 23, 24, 25, 26
    vL16, vZ, vT0, vT1, vRd = 1, 4, 5, 6, 7
    vAcc = 8
    vXf = 48
    vPk = 72
    vW = 96
    srd = f's[{sWS}:{sWS+3}]'
    def wreg(slot, ks):
        if slot < 3: return f'a[{slot*80+4*ks}:{slot*80+4*ks+3}]'
        b = vW + (slot - 3) * 80 + 4 * ks
        return f'v[{b}:{b+3}]'
    e(f'''s_sub_u32 s{sT0}, s{sC}, 24
    s_lshr_b32 s{sT1}, s{sT0}, 1
    s_and_b32 s{sHalf}, s{sT0}, 1
    s_lshl_b32 s{sH}, s{sX}, 2
    s_add_u32 s{sH}, s{sH}, s{sT1}
    s_lshl_b32 s{sFlag}, s{sX}, 3
    s_add_u32 s{sFlag}, s{sFlag}, s{sT0}
    s_lshl_b32 s{sFlag}, s{sFlag}, 7
    s_add_u32 s{sFlag}, s{sFlag}, {L.PROG2}
    s_lshl_b32 s{sProg}, s{sX}, 7
    s_add_u32 s{sProg}, s{sProg}, {L.PROG}
    v_and_b32 v{vT0}, 63, v0
    v_lshlrev_b32 v{vL16}, 4, v{vT0}
    v_mov_b32 v{vT1}, {OOB:#x}
    v_cmp_eq_u32 vcc, 0, v{vT0}
    v_mov_b32 v{vZ}, 0
    v_cndmask_b32 v{vZ}, v{vT1}, v{vZ}, vcc''')
    Lw = [k.label('pw%d_' % w) for w in range(4)]
    for w in range(3):
        e(f's_cmp_eq_u32 s{sW}, {w}\ns_cbranch_scc1 {Lw[w]}')
    e(f's_branch {Lw[3]}')

    def dma(w, sSeg, bufreg):
        e(f'''s_mul_i32 s{sXs}, s{sSeg}, {XBUF}
        s_add_u32 s{sXs}, s{sXs}, {L.XNF + w*10240}''')
        for grp in range(3):
            e(f's_add_u32 m0, s{bufreg}, {LDS_X + w*10240 + grp*4096}')
            e('s_nop 0')
            for q in range(4 if grp < 2 else 2):
                e(f'buffer_load_dwordx4 v{vL16}, {srd}, s{sXs} offen offset:{q*1024} lds')
            if grp < 2: e(f's_add_u32 s{sXs}, s{sXs}, 4096')

    for w in range(4):
        plan = PLAN[w]
        slots = []
        for u in plan:
            if u[0] == 'pair': slots += [(u[1], 2 * u[2]), (u[1], 2 * u[2] + 1)]
            else: slots.append(('v', u[1]))
        e(Lw[w] + ':')
        nld = 0
        for si, (mat, etl) in enumerate(slots):
            base = {'q': L.WQP, 'k': L.WKP, 'v': L.WVP}[mat]
            e(f'''s_mul_i32 s{sT0}, s{sH}, 12
            s_mul_i32 s{sT1}, s{sHalf}, 6
            s_add_u32 s{sT0}, s{sT0}, s{sT1}
            s_add_u32 s{sT0}, s{sT0}, {etl}
            s_mul_i32 s{sT0}, s{sT0}, 20480
            s_add_u32 s{sT0}, s{sT0}, {base}''')
            for ks in range(20):
                if ks and ks % 4 == 0: e(f's_add_u32 s{sT0}, s{sT0}, 4096')
                e(f'buffer_load_dwordx4 {wreg(si, ks)}, v{vL16}, {srd}, s{sT0} offen offset:{(ks%4)*1024}')
                nld += 1
                if nld % 20 == 0 and nld >= 40: e('s_waitcnt vmcnt(20)')
        e(f's_mov_b32 s{sS}, 0\ns_mov_b32 s{sBuf}, 0')
        dma(w, sS, sBuf)
        Ltop = k.label('ptop'); Lgo = k.label('pgo'); Lpl = k.label('ppoll'); Lnd = k.label('pnodma')
        e(Ltop + ':')
        e(f'''s_cmp_lt_u32 s{sS}, {LEAD}
        s_cbranch_scc1 {Lgo}
        s_sub_u32 s{sT2}, s{sS}, {LEAD}''')
        e(Lpl + ':')
        e(f'''buffer_load_dword v{vT0}, v{vZ}, {srd}, s{sProg} offen sc1
        s_waitcnt vmcnt(0)
        v_readfirstlane_b32 s{sT0}, v{vT0}
        s_cmp_ge_i32 s{sT0}, s{sT2}
        s_cbranch_scc1 {Lgo}
        s_sleep 8
        s_sub_u32 s{sTO}, s{sTO}, 1
        s_cbranch_scc0 {Lpl}
        s_mov_b32 s{sTO}, 0''')
        e(Lgo + ':')
        e(f'''s_waitcnt vmcnt(0)
        s_barrier
        v_add_u32 v{vRd}, s{sBuf}, v{vL16}
        s_xor_b32 s{sBuf}, s{sBuf}, {XBUF}
        s_add_u32 s{sT3}, s{sS}, 1
        s_cmp_ge_u32 s{sT3}, {nseg}
        s_cbranch_scc1 {Lnd}''')
        dma(w, sT3, sBuf)
        e(Lnd + ':')
        e(f'''s_lshl_b32 s{sT0}, s{sH}, 6
        s_add_u32 s{sT0}, s{sT0}, s{sS}
        s_mul_i32 s{sT0}, s{sT0}, 12288
        s_mul_i32 s{sT1}, s{sHalf}, 3072
        s_add_u32 s{sT1}, s{sT1}, s{sT0}
        s_add_u32 s{sOutK}, s{sT1}, {L.KT}
        s_add_u32 s{sOutQ}, s{sT1}, {L.QT}
        s_mul_i32 s{sT1}, s{sHalf}, 6144
        s_add_u32 s{sT1}, s{sT1}, s{sT0}
        s_add_u32 s{sOutV}, s{sT1}, {L.VT}''')
        def xr(ks, T):
            b = vXf + (ks % 3) * 8 + T * 4
            return f'v[{b}:{b+3}]'
        def rd(ks):
            for T in range(2):
                e(f'ds_read_b128 {xr(ks, T)}, v{vRd} offset:{LDS_X + (T*20+ks)*1024}')
        rd(0); rd(1)
        for ks in range(20):
            if ks + 2 < 20:
                rd(ks + 2); e('s_waitcnt lgkmcnt(4)')
            elif ks + 1 < 20: e('s_waitcnt lgkmcnt(2)')
            else: e('s_waitcnt lgkmcnt(0)')
            for si, (mat, etl) in enumerate(slots):
                for T in range(2):
                    acc = f'v[{vAcc+8*si+4*T}:{vAcc+8*si+4*T+3}]'
                    c = '0' if ks == 0 else acc
                    if mat == 'v': e(f'v_mfma_f32_16x16x32_bf16 {acc}, {xr(ks, T)}, {wreg(si, ks)}, {c}')
                    else: e(f'v_mfma_f32_16x16x32_bf16 {acc}, {wreg(si, ks)}, {xr(ks, T)}, {c}')
        si = 0; pk = 0
        for u in plan:
            if u[0] == 'pair':
                so = sOutK if u[1] == 'k' else sOutQ
                for T in range(2):
                    a0 = vAcc + 8 * si + 4 * T; a1 = a0 + 8
                    p = vPk + 4 * (pk % 2); pk += 1
                    e(f'''v_cvt_pk_bf16_f32 v{p}, v{a0}, v{a0+1}
                    v_cvt_pk_bf16_f32 v{p+1}, v{a0+2}, v{a0+3}
                    v_cvt_pk_bf16_f32 v{p+2}, v{a1}, v{a1+1}
                    v_cvt_pk_bf16_f32 v{p+3}, v{a1+2}, v{a1+3}''')
                    off = T * 6144 + u[2] * 1024
                    e(f's_add_u32 s{sT0}, s{so}, {off}')
                    e(f'buffer_store_dwordx4 v[{p}:{p+3}], v{vL16}, {srd}, s{sT0} offen {stflag}')
                si += 2
            else:
                a0 = vAcc + 8 * si; a1 = a0 + 4
                p = vPk + 4 * (pk % 2); pk += 1
                e(f'''v_cvt_pk_bf16_f32 v{p}, v{a0}, v{a0+1}
                v_cvt_pk_bf16_f32 v{p+1}, v{a0+2}, v{a0+3}
                v_cvt_pk_bf16_f32 v{p+2}, v{a1}, v{a1+1}
                v_cvt_pk_bf16_f32 v{p+3}, v{a1+2}, v{a1+3}''')
                e(f's_add_u32 s{sT0}, s{sOutV}, {u[1]*1024}')
                e(f'buffer_store_dwordx4 v[{p}:{p+3}], v{vL16}, {srd}, s{sT0} offen {stflag}')
                si += 1
        e(f'''s_waitcnt vmcnt(0)
        s_barrier
        s_add_u32 s{sS}, s{sS}, 1''')
        if w == 0:
            e(f'''v_mov_b32 v{vT0}, s{sS}
            buffer_store_dword v{vT0}, v{vZ}, {srd}, s{sFlag} offen {stflag}''')
        e(f'''s_cmp_lt_u32 s{sS}, {nseg}
        s_cbranch_scc1 {Ltop}
        s_branch {Lexit}''')
    return LDS_SIZE
```

```python
import struct, math
from asmgen import *
import layout as L
OOB = 0x80000000
def fbits(x): return struct.unpack('<I', struct.pack('<f', x))[0]
LDS_X = 0
LDS_ST = 81920
LDS_SIZE = LDS_ST + 1024

def gen(name='qkvb_kernel'):
    k = Kernel(name, vgpr=256, agpr=0, sgpr=48); e = k.e
    srd = 's[4:7]'
    vA, vT0, vT1, vS, vLd, vL16, vRd = 1, 2, 3, 4, 5, 8, 9
    vRaw = 16
    vF = 96
    Lx = k.label('exit')
    e(f'''s_cmp_ge_u32 s2, 256
    s_cbranch_scc1 {Lx}
    s_load_dwordx2 s[12:13], s[0:1], 96
    v_lshrrev_b32 v{vT0}, 6, v0
    v_and_b32 v{vT1}, 63, v0
    s_nop 0
    v_readfirstlane_b32 s16, v{vT0}
    v_lshlrev_b32 v{vL16}, 4, v{vT1}
    s_and_b32 s17, s2, 7
    s_lshr_b32 s18, s2, 3
    s_waitcnt lgkmcnt(0)
    s_mov_b32 s4, s12
    s_mov_b32 s5, s13
    s_mov_b32 s6, 0x10000000
    s_mov_b32 s7, 0x20000''')
    e(f'''s_and_b32 s19, s16, 1
    s_lshr_b32 s20, s16, 1
    v_and_b32 v{vT0}, 31, v{vT1}
    v_lshrrev_b32 v{vS}, 5, v{vT1}
    s_lshl_b32 s21, s18, 6
    s_lshl_b32 s22, s19, 5
    s_add_u32 s21, s21, s22
    v_add_u32 v{vA}, s21, v{vT0}
    v_mul_u32_u24 v{vA}, 1280, v{vA}
    v_lshl_add_u32 v{vA}, v{vS}, 4, v{vA}
    s_mul_i32 s21, s20, 640
    s_add_u32 s21, s21, {L.X1}''')
    for q in range(20):
        e(f'buffer_load_dwordx4 v[{vRaw+4*q}:{vRaw+4*q+3}], v{vA}, {srd}, s21 offen offset:{q*32}')
    e(f'''s_lshl_b32 s23, s17, 2
    s_add_u32 s23, s23, s16
    s_mul_i32 s24, s23, 40960
    s_add_u32 s24, s24, {L.WB1}
    s_add_u32 s25, s24, {32*40960}
    s_add_u32 s26, s25, {32*40960}''')
    e(f'''s_lshl_b32 s21, s19, 7
    s_add_u32 s21, s21, {LDS_ST}
    v_lshlrev_b32 v{vLd}, 2, v{vT0}
    v_add_u32 v{vLd}, s21, v{vLd}
    s_lshl_b32 s21, s20, 8
    v_add_u32 v{vA}, s21, v{vLd}
    s_waitcnt vmcnt(0)''')
    for i in range(80):
        e(f'v_lshlrev_b32 v{vF+2*i}, 16, v{vRaw+i}')
        e(f'v_and_b32 v{vF+2*i+1}, 0xffff0000, v{vRaw+i}')
    def reduce_row(off):
        e(f'''v_mov_b32 v{vT0}, v{vS}
        v_permlane32_swap_b32 v{vS}, v{vT0}
        v_add_f32 v{vS}, v{vS}, v{vT0}
        ds_write_b32 v{vA}, v{vS} offset:{off}
        s_waitcnt lgkmcnt(0)
        s_barrier
        ds_read_b32 v{vS}, v{vLd} offset:{off}
        ds_read_b32 v{vT0}, v{vLd} offset:{off+256}
        s_waitcnt lgkmcnt(0)
        v_add_f32 v{vS}, v{vS}, v{vT0}''')
    e(f'v_pk_add_f32 v[6:7], v[{vF}:{vF+1}], v[{vF+2}:{vF+3}]')
    for i in range(2, 80):
        e(f'v_pk_add_f32 v[6:7], v[6:7], v[{vF+2*i}:{vF+2*i+1}]')
    e(f'v_add_f32 v{vS}, v6, v7')
    reduce_row(0)
    e(f'v_mul_f32 v{vS}, {fbits(1/640):#x}, v{vS}')
    for i in range(160): e(f'v_sub_f32 v{vF+i}, v{vF+i}, v{vS}')
    e(f'v_mul_f32 v6, v{vF}, v{vF}\nv_mul_f32 v7, v{vF+1}, v{vF+1}')
    for i in range(1, 80):
        e(f'v_fmac_f32 v6, v{vF+2*i}, v{vF+2*i}')
        e(f'v_fmac_f32 v7, v{vF+2*i+1}, v{vF+2*i+1}')
    e(f'v_add_f32 v{vS}, v6, v7')
    reduce_row(512)
    e(f'''v_mov_b32 v{vT0}, {fbits(1e-5):#x}
    v_fmac_f32 v{vT0}, {fbits(1/640):#x}, v{vS}
    v_rsq_f32 v{vS}, v{vT0}''')
    for i in range(160): e(f'v_mul_f32 v{vF+i}, v{vF+i}, v{vS}')
    for i in range(80): e(f'v_cvt_pk_bf16_f32 v{vRaw+i}, v{vF+2*i}, v{vF+2*i+1}')
    e(f'''s_mul_i32 s21, s19, 40960
    s_mul_i32 s22, s20, 20480
    s_add_u32 s21, s21, s22
    v_add_u32 v{vA}, s21, v{vL16}''')
    for q in range(20):
        e(f'ds_write_b128 v{vA}, v[{vRaw+4*q}:{vRaw+4*q+3}] offset:{q*1024}')
    vAcc = 96
    vW = 192
    vXf = 16
    def wl(kk):
        for m in range(3):
            b = vW + 12 * (kk % 4) + 4 * m
            e(f'buffer_load_dwordx4 v[{b}:{b+3}], v{vL16}, {srd}, s{24+m} offen offset:{(kk%4)*1024}')
        if kk % 4 == 3:
            for m in range(3): e(f's_add_u32 s{24+m}, s{24+m}, 4096')
    def xl(kk):
        for T in range(2):
            b = vXf + 8 * (kk % 3) + 4 * T
            e(f'ds_read_b128 v[{b}:{b+3}], v{vL16 if T == 0 else vRd} offset:{kk*1024}')
    e(f'v_add_u32 v{vRd}, 40960, v{vL16}')
    e('s_waitcnt lgkmcnt(0)\ns_barrier')
    for kk in range(3): wl(kk)
    xl(0); xl(1)
    for kk in range(40):
        if kk + 3 < 40: wl(kk + 3); e('s_waitcnt vmcnt(9)')
        else: e(f's_waitcnt vmcnt({3*(39-kk)})')
        if kk + 2 < 40: xl(kk + 2); e('s_waitcnt lgkmcnt(4)')
        else: e(f's_waitcnt lgkmcnt({2*(39-kk)})')
        for m in range(3):
            w = f'v[{vW+12*(kk%4)+4*m}:{vW+12*(kk%4)+4*m+3}]'
            for T in range(2):
                x = f'v[{vXf+8*(kk%3)+4*T}:{vXf+8*(kk%3)+4*T+3}]'
                acc = f'v[{vAcc+32*m+16*T}:{vAcc+32*m+16*T+15}]'
                c = '0' if kk == 0 else acc
                if m < 2: e(f'v_mfma_f32_32x32x16_bf16 {acc}, {w}, {x}, {c}')
                else: e(f'v_mfma_f32_32x32x16_bf16 {acc}, {x}, {w}, {c}')
    cq = (20 ** -0.5) * math.log2(math.e)
    e(f'''s_lshl_b32 s21, s18, 1
    s_lshl_b32 s22, s23, 6
    s_add_u32 s21, s21, s22
    s_lshl_b32 s21, s21, 11
    s_add_u32 s27, s21, {L.QB}
    s_add_u32 s28, s21, {L.KB}
    s_add_u32 s29, s21, {L.VB}
    s_mov_b32 s30, {fbits(cq):#x}
    v_and_b32 v{vT0}, 31, v0
    v_cmp_eq_u32 s[32:33], 20, v{vT0}
    v_mov_b32 v{vT1}, 0x3f803f80''')
    for m in range(3):
        for T in range(2):
            a = vAcc + 32 * m + 16 * T
            if m == 0:
                for i in range(16): e(f'v_mul_f32 v{a+i}, s30, v{a+i}')
            p = vXf + 8 * (T % 2)
            for i in range(8): e(f'v_cvt_pk_bf16_f32 v{p+i}, v{a+2*i}, v{a+2*i+1}')
            if m == 2:
                for i in range(8): e(f'v_cndmask_b32 v{p+i}, v{p+i}, v{vT1}, s[32:33]')
            for hf in range(2):
                e(f'buffer_store_dwordx4 v[{p+4*hf}:{p+4*hf+3}], v{vL16}, {srd}, s{27+m} offen offset:{T*2048+hf*1024}')
    e(Lx + ':')
    e('s_endpgm')
    return k, LDS_SIZE
```

```python
import math
from asmgen import *
import layout as L
import proj

OOB = 0x80000000
STAMPI = 's_memtime'
sWS = 4
sAUX = 8
sW, sX, sC, sH, sJ, sS, sTO, sKH = 12, 13, 14, 15, 16, 17, 18, 19
sA, sB, sO_, sPg, sE, sPp = 20, 21, 22, 23, 24, 25
sA2, sB2, sO2, sP2 = 26, 27, 28, 29
sKM, sVM, sKT, sVT = 30, 31, 32, 33
sT0, sT1, sT2, sT3 = 34, 35, 36, 37
sMEMBx, sQKh, sOBx = 38, 39, 40
sCexp = 41
sKVrd = 42
sST = 58
sSTB = 46
sPTR = 48
sMASK = 54
sPARTB, sNEAR = 56, 57

LDS_MEM = 0
LDS_VP = 10240
LDS_KV = 16384
KVSZ = 14336
LDS_MISC = 13312
LDS_SIZE = LDS_KV + 2 * KVSZ

def gen(name='rec_kernel', stamps=False, nsteps=64, D1=0, D2=0, D3=0, D4=0, LEAD=3, WARM=0, PFW3=1, NEAR=None, NPROBE=2, PROJ=0, PLEAD=6):
    k = Kernel(name, vgpr=256, agpr=256)
    e = k.e
    vL16, vL16b, vL16c = 1, 2, 3
    vMld, vMld2 = 4, 5
    vMrdA, vMrdB = 6, 7
    vXst, vKMst, vVMst, vOst = 8, 9, 10, 11
    vOld, vOldb, vOldc = 12, 13, 14
    vPst, vMst, vVP, vKVrd = 15, 16, 17, 18
    vZ = 19
    vFl = 233
    vPst2 = 232
    vPld = 20
    vT0, vT1, vT2, vT3 = 28, 29, 30, 31
    vNEG1 = 32
    vONES = 36
    vCM = 40
    vACC, vACV = 44, 48
    vQK = 52
    vVPr = 56
    vVMf = 68
    vS = 72
    vP = 84
    vO = 92
    vLs = 100
    vOp = 104
    vD1, vD2 = 108, 112
    vR = 116
    vH3 = 128
    MEMR = 128
    vX = 208; vKT = MEMR; vVT = MEMR + 48
    vG2 = MEMR
    aW1, aWV, aW2 = 0, 80, 120

    NST = 14
    def stamp(idx, wait=False):
        if not stamps: return
        e(f'{STAMPI} s[{64+2*idx}:{65+2*idx}]')
        if wait: e('s_waitcnt lgkmcnt(0)')
    def stamp_flush():
        if not stamps: return
        e('s_waitcnt lgkmcnt(0)')
        for i in range(NST):
            e(f'v_writelane_b32 v{vT0}, s{64+2*i}, {i}')
        e(f'''v_and_b32 v{vT1}, 63, v0
        v_lshlrev_b32 v{vT1}, 2, v{vT1}
        v_cmp_gt_u32 vcc, {NST}, v{vT1}
        v_mov_b32 v{vT2}, {OOB:#x}
        v_cmp_gt_u32 vcc, {NST*4}, v{vT1}
        v_cndmask_b32 v{vT1}, v{vT2}, v{vT1}, vcc
        s_lshl_b32 s{sT3}, s{sS}, 8
        s_add_u32 s{sT3}, s{sT3}, s{sSTB}
        buffer_store_dword v{vT0}, v{vT1}, s[{sWS}:{sWS+3}], s{sT3} offen''')
        for i in range(NST):
            e(f's_mov_b32 s{64+2*i}, 0')

    npoll = [0]
    def poll(loads, regs, flag='sc1', cnt=None):
        lp = k.label('poll'); ld = k.label('pdone')
        e(lp + ':')
        for x in loads: e(x)
        e('s_waitcnt vmcnt(0)')
        r = list(regs)
        t = vT0
        e(f'v_max3_u32 v{t}, v{r[0]}, v{r[1]}, v{r[2]}' if len(r) >= 3 else f'v_max_u32 v{t}, v{r[0]}, v{r[1]}')
        r = r[3:]
        t2 = None
        if len(r) >= 5:
            t2 = vT1
            e(f'v_max3_u32 v{t2}, v{r[0]}, v{r[1]}, v{r[2]}'); r = r[3:]
        flip = 0
        while r:
            tt = t2 if (t2 is not None and flip) else t
            flip ^= 1
            if len(r) >= 2:
                e(f'v_max3_u32 v{tt}, v{tt}, v{r[0]}, v{r[1]}'); r = r[2:]
            else:
                e(f'v_max_u32 v{tt}, v{tt}, v{r[0]}'); r = r[1:]
        if t2 is not None: e(f'v_max_u32 v{t}, v{t}, v{t2}')
        e(f'''v_cmp_eq_u32 vcc, -1, v{t}
        s_cbranch_vccz {ld}''')
        if stamps and cnt is not None: e(f's_add_u32 s{64+2*cnt}, s{64+2*cnt}, 1')
        e(f'''s_sub_u32 s{sTO}, s{sTO}, 1
        s_cbranch_scc0 {lp}
        s_mov_b32 s{sTO}, 0''')
        e(ld + ':')

    Lexit = k.label('exit'); Lwarm = k.label('warm')
    e(f'''s_cmp_ge_u32 s2, 256
    s_cbranch_scc1 {Lexit}
    s_load_dwordx2 s[{sPTR}:{sPTR+1}], s[0:1], 96
    s_load_dwordx2 s[{sPTR+2}:{sPTR+3}], s[0:1], 88
    s_load_dwordx2 s[{sPTR+4}:{sPTR+5}], s[0:1], 8
    s_getreg_b32 s{sX}, hwreg(HW_REG_XCC_ID, 0, 3)
    v_lshrrev_b32 v{vT0}, 6, v0
    v_and_b32 v1, 63, v0
    s_nop 0
    v_readfirstlane_b32 s{sW}, v{vT0}
    v_lshlrev_b32 v{vL16}, 4, v1
    s_mov_b32 s{sTO}, 0x100000
    s_waitcnt lgkmcnt(0)
    s_mov_b32 s{sWS}, s{sPTR}
    s_mov_b32 s{sWS+1}, s{sPTR+1}
    s_mov_b32 s{sWS+2}, 0x10000000
    s_mov_b32 s{sWS+3}, 0x20000
    s_mov_b32 s{sAUX}, s{sPTR+2}
    s_mov_b32 s{sAUX+1}, s{sPTR+3}
    s_mov_b32 s{sAUX+2}, 256
    s_mov_b32 s{sAUX+3}, 0x20000''')
    e(f'v_and_b32 v{vT1}, 63, v0')
    e(f'''v_add_u32 v{vL16b}, 0x1000, v{vL16}
    v_add_u32 v{vL16c}, 0x2000, v{vL16}
    v_mov_b32 v{vNEG1}, -1
    v_mov_b32 v{vNEG1+1}, -1
    v_mov_b32 v{vNEG1+2}, -1
    v_mov_b32 v{vNEG1+3}, -1''')
    per = L.EXCH_SIZE // 256
    assert per * 256 == L.EXCH_SIZE and 4096 <= per <= 8192 and per % 16 == 0
    per2 = L.PART_SIZE // 256
    assert per2 == 6144
    e(f'''s_sub_u32 s{sPARTB}, 0, s{sPTR}
    s_and_b32 s{sPARTB}, s{sPARTB}, 0x1fffff
    s_add_u32 s{sPARTB}, s{sPARTB}, {L.PARTR}''')
    e(f'''v_cmp_eq_u32 vcc, 0, v0
    s_lshl_b32 s{sT0}, s{sX}, 2
    v_mov_b32 v{vT2}, s{sT0}
    v_mov_b32 v{vT3}, {OOB:#x}
    v_cndmask_b32 v{vT2}, v{vT3}, v{vT2}, vcc
    v_mov_b32 v{vACC}, 1
    buffer_atomic_add v{vACC}, v{vT2}, s[{sAUX}:{sAUX+3}], 0 offen sc0
    s_mul_i32 s{sT0}, s2, {per}
    s_add_u32 s{sT0}, s{sT0}, {L.MEMB}
    s_mul_i32 s{sT1}, s2, {per2}
    s_add_u32 s{sT1}, s{sT1}, s{sPARTB}
    v_lshlrev_b32 v{vACV}, 4, v0
    v_add_u32 v{vACV+1}, 0x1000, v{vACV}
    v_mov_b32 v{vACV+2}, v{vACV+1}
    v_cmp_gt_u32 vcc, {(per - 4096) // 16}, v0
    v_cndmask_b32 v{vACV+1}, v{vT3}, v{vACV+1}, vcc
    v_cmp_gt_u32 vcc, {(per2 - 4096) // 16}, v0
    v_cndmask_b32 v{vACV+2}, v{vT3}, v{vACV+2}, vcc
    buffer_store_dwordx4 v[{vNEG1}:{vNEG1+3}], v{vACV}, s[{sWS}:{sWS+3}], s{sT0} offen sc1
    buffer_store_dwordx4 v[{vNEG1}:{vNEG1+3}], v{vACV+1}, s[{sWS}:{sWS+3}], s{sT0} offen sc1
    buffer_store_dwordx4 v[{vNEG1}:{vNEG1+3}], v{vACV}, s[{sWS}:{sWS+3}], s{sT1} offen sc1
    buffer_store_dwordx4 v[{vNEG1}:{vNEG1+3}], v{vACV+2}, s[{sWS}:{sWS+3}], s{sT1} offen sc1
    ''')
    Lnp1 = k.label('noprobe')
    e(f'''s_cmp_lg_u32 s{sW}, 1
    s_cbranch_scc1 {Lnp1}
    s_lshr_b32 s{sT0}, s2, 4
    s_lshl_b32 s{sT0}, s{sT0}, 14
    s_and_b32 s{sT1}, s2, 15
    s_lshl_b32 s{sT1}, s{sT1}, 9
    s_add_u32 s{sT0}, s{sT0}, s{sT1}
    s_add_u32 s{sT0}, s{sT0}, {L.PROBE_OFF}
    s_add_u32 s{sT0}, s{sT0}, s{sPARTB}
    v_and_b32 v{vT0}, 63, v0
    v_and_b32 v{vT1}, 3, v{vT0}
    v_lshlrev_b32 v{vT1}, 7, v{vT1}
    v_lshrrev_b32 v{vT2}, 2, v{vT0}
    v_lshl_add_u32 v{vT1}, v{vT2}, 13, v{vT1}
    v_cmp_gt_u32 vcc, 8, v{vT0}
    v_cndmask_b32 v{vT1}, v{vT3}, v{vT1}, vcc
    buffer_store_dword v{vNEG1}, v{vT1}, s[{sWS}:{sWS+3}], s{sT0} offen sc1
    v_cmp_eq_u32 vcc, 0, v{vT0}
    v_mov_b32 v{vT1}, 0
    v_cndmask_b32 v{vT1}, v{vT3}, v{vT1}, vcc
    s_mov_b32 s{sA}, 0
    s_mov_b32 s{sB}, 0
    s_waitcnt vmcnt(0)''')
    for q in range(NPROBE):
        for par in range(2):
            acc = sB if par else sA
            e(f'''s_add_u32 s{sT1}, s{sT0}, {par*8192 + q*128}
            s_memtime s[{sST}:{sST+1}]
            s_waitcnt lgkmcnt(0)
            buffer_load_dword v{vT2}, v{vT1}, s[{sWS}:{sWS+3}], s{sT1} offen sc1
            s_waitcnt vmcnt(0)
            s_memtime s[{sST+2}:{sST+3}]
            s_waitcnt lgkmcnt(0)
            s_sub_u32 s{sT2}, s{sST+2}, s{sST}
            s_add_u32 s{acc}, s{acc}, s{sT2}''')
    e(f'''s_cmp_lt_u32 s{sB}, s{sA}
    s_cselect_b32 s{sT0}, 1, 0
    s_lshr_b32 s{sT1}, s{sX}, 2
    s_xor_b32 s{sT0}, s{sT0}, s{sT1}
    v_mov_b32 v{vT1}, {LDS_MISC+4}
    v_mov_b32 v{vT2}, s{sT0}
    ds_write_b32 v{vT1}, v{vT2}
    s_waitcnt lgkmcnt(0)''')
    e(Lnp1 + ':')
    e('s_waitcnt vmcnt(0)')
    e('s_barrier')
    Lw0 = k.label('w0done'); Lrp = k.label('rdy')
    e(f'''s_cmp_lg_u32 s{sW}, 0
    s_cbranch_scc1 {Lw0}
    v_readfirstlane_b32 s{sC}, v{vACC}
    v_cmp_eq_u32 vcc, 0, v0
    v_mov_b32 v{vT2}, 32
    v_cndmask_b32 v{vT2}, v{vT3}, v{vT2}, vcc
    v_mov_b32 v{vT1}, {LDS_MISC+4}
    ds_read_b32 v{vACC}, v{vT1}
    s_waitcnt lgkmcnt(0)
    v_lshlrev_b32 v{vACC}, 16, v{vACC}
    v_add_u32 v{vACC}, 1, v{vACC}
    buffer_atomic_add v{vACC}, v{vT2}, s[{sAUX}:{sAUX+3}], 0 offen
    v_lshlrev_b32 v{vT2}, 2, v0''')
    e(Lrp + ':')
    e(f'''buffer_load_dword v{vACC}, v{vT2}, s[{sAUX}:{sAUX+3}], 0 offen sc1
    s_waitcnt vmcnt(0)
    v_readlane_b32 s{sT1}, v{vACC}, 8
    s_and_b32 s{sT0}, s{sT1}, 0xffff
    s_cmp_eq_u32 s{sT0}, 256
    s_cbranch_scc1 {Lrp}_ok
    s_sub_u32 s{sTO}, s{sTO}, 1
    s_cbranch_scc0 {Lrp}
    s_mov_b32 s{sTO}, 0''')
    e(Lrp + '_ok:')
    e(f'''s_lshr_b32 s{sT1}, s{sT1}, 16
    s_cmp_gt_u32 s{sT1}, 128
    s_cselect_b32 s{sT1}, 1, 0
    s_lshr_b32 s{sT0}, s{sX}, 2
    s_xor_b32 s{sT1}, s{sT1}, s{sT0}''')
    if NEAR is not None:
        e(f'''s_xor_b32 s{sT1}, s{sT0}, {NEAR}''')
    e(f'''v_mov_b32 v{vT2}, {LDS_MISC}
    v_mov_b32 v{vACC}, s{sC}
    v_mov_b32 v{vACC+1}, s{sT1}
    ds_write_b64 v{vT2}, v[{vACC}:{vACC+1}]
    s_waitcnt lgkmcnt(0)''')
    e(Lw0 + ':')
    e(f'''s_barrier
    v_mov_b32 v{vT2}, {LDS_MISC}
    ds_read_b64 v[{vACC}:{vACC+1}], v{vT2}
    s_waitcnt lgkmcnt(0)
    v_readfirstlane_b32 s{sC}, v{vACC}
    v_readfirstlane_b32 s{sNEAR}, v{vACC+1}
    s_cmp_ge_u32 s{sC}, 24
    s_cbranch_scc1 {Lwarm}''')
    e(f'''s_mul_i32 s{sT0}, s{sC}, 43
    s_lshr_b32 s{sT0}, s{sT0}, 8
    s_mul_i32 s{sT1}, s{sT0}, 6
    s_sub_u32 s{sJ}, s{sC}, s{sT1}
    s_lshl_b32 s{sH}, s{sX}, 2
    s_add_u32 s{sH}, s{sH}, s{sT0}
    s_lshr_b32 s{sKH}, s{sW}, 1''')
    i16, g, lane = vT0, vT2, vT1
    e(f'''v_and_b32 v{lane}, 63, v0
    v_and_b32 v{i16}, 15, v{lane}
    v_lshrrev_b32 v{g}, 4, v{lane}
    v_mov_b32 v{vT3}, {OOB:#x}''')
    t = vACC; u = vACC + 1; a_ = vACC + 2
    e(f'''s_mul_i32 s{sT0}, s{sW}, 2560
    v_add_u32 v{vMld}, s{sT0}, v{vL16}
    v_and_b32 v{t}, 31, v{lane}
    v_lshlrev_b32 v{t}, 4, v{t}
    s_add_u32 s{sT0}, s{sT0}, 2048
    v_add_u32 v{vMld2}, s{sT0}, v{t}''')
    e(f'''v_and_b32 v{t}, 7, v{lane}
    v_lshlrev_b32 v{t}, 4, v{t}
    v_lshl_add_u32 v{t}, v{g}, 7, v{t}
    s_mul_i32 s{sT0}, s{sKH}, 5120
    v_add_u32 v{vMrdA}, s{sT0}, v{t}
    s_sub_u32 s{sT0}, 5120, s{sT0}
    v_add_u32 v{vMrdB}, s{sT0}, v{t}''')
    e(f'''v_lshrrev_b32 v{u}, 3, v{i16}
    v_lshl_add_u32 v{vOld}, v{u}, 9, v{t}
    v_add_u32 v{vOldb}, 0x1000, v{vOld}
    v_add_u32 v{vOldc}, 0x2000, v{vOld}''')
    e(f'v_cmp_gt_u32 s[{sMASK}:{sMASK+1}], 8, v{i16}')
    e(f'''s_lshl_b32 s{sT0}, s{sJ}, 10
    s_lshl_b32 s{sT1}, s{sKH}, 7
    s_add_u32 s{sT0}, s{sT0}, s{sT1}
    s_and_b32 s{sT1}, s{sW}, 1
    s_lshl_b32 s{sT2}, s{sT1}, 3
    s_add_u32 s{sT0}, s{sT0}, s{sT2}
    v_lshlrev_b32 v{t}, 4, v{i16}
    v_lshl_add_u32 v{u}, v{g}, 8, v{t}
    v_add_u32 v{u}, s{sT0}, v{u}
    v_cndmask_b32 v{vXst}, v{vT3}, v{u}, s[{sMASK}:{sMASK+1}]''')
    e(f'''v_lshl_add_u32 v{t}, v{g}, 7, v{t}
    v_add_u32 v{u}, s{sT2}, v{t}
    v_cndmask_b32 v{vKMst}, v{vT3}, v{u}, s[{sMASK}:{sMASK+1}]
    s_lshl_b32 s{sT0}, s{sC}, 9
    v_add_u32 v{u}, s{sT0}, v{t}
    v_cndmask_b32 v{vOst}, v{vT3}, v{u}, s[{sMASK}:{sMASK+1}]
    s_mul_i32 s{sT0}, s{sX}, 49152
    s_lshr_b32 s{sT1}, s{sC}, 3
    s_lshl_b32 s{sT1}, s{sT1}, 14
    s_add_u32 s{sT0}, s{sT0}, s{sT1}
    s_and_b32 s{sT1}, s{sC}, 7
    s_lshl_b32 s{sT1}, s{sT1}, 10
    s_add_u32 s{sT0}, s{sT0}, s{sT1}
    s_lshl_b32 s{sT1}, s{sW}, 9
    s_add_u32 s{sT0}, s{sT0}, s{sT1}
    v_add_u32 v{u}, s{sT0}, v{t}
    v_cndmask_b32 v{vPst}, v{vT3}, v{u}, s[{sMASK}:{sMASK+1}]''')
    e(f'''v_lshlrev_b32 v{u}, 3, v{lane}
    v_cmp_gt_u32 vcc, 32, v{lane}
    v_cndmask_b32 v{vVMst}, v{vT3}, v{u}, vcc''')
    e(f'''s_sub_u32 s{sT1}, s{sC}, 4
    s_cmp_lt_u32 s{sC}, 20
    s_cselect_b32 s{sT0}, s{sC}, s{sT1}
    s_lshr_b32 s{sT1}, s{sT0}, 3
    s_lshl_b32 s{sT1}, s{sT1}, 14
    s_and_b32 s{sT0}, s{sT0}, 7
    s_lshl_b32 s{sT0}, s{sT0}, 10
    s_add_u32 s{sT0}, s{sT0}, s{sT1}
    s_lshl_b32 s{sT1}, s{sNEAR}, 13
    s_add_u32 s{sT0}, s{sT0}, s{sT1}
    v_add_u32 v{vPld}, s{sT0}, v{vL16}''')
    for xx in range(1, 8):
        e(f'v_add_u32 v{vPld+xx}, {xx*49152}, v{vPld}')
    e(f'''v_lshrrev_b32 v{t}, 3, v{lane}
    v_and_b32 v{t}, 3, v{t}
    v_lshlrev_b32 v{t}, 7, v{t}
    v_and_b32 v{u}, 7, v{lane}
    v_lshl_add_u32 v{t}, v{u}, 4, v{t}
    v_lshrrev_b32 v{u}, 5, v{lane}
    v_lshl_add_u32 v{t}, v{u}, 3, v{t}
    s_lshl_b32 s{sT0}, s{sC}, 9
    s_cmp_lt_u32 s{sC}, 20
    s_cselect_b32 s{sT0}, s{sT0}, {OOB:#x}
    v_add_u32 v{vMst}, s{sT0}, v{t}''')
    e(f'''s_cmp_lt_u32 s{sC}, 20
    s_cselect_b32 s{sT0}, 0, {OOB:#x}
    v_or_b32 v{vPst}, s{sT0}, v{vPst}
    v_add_u32 v{vPst2}, 0x2000, v{vPst}''')
    e(f'''v_cmp_eq_u32 vcc, 0, v{lane}
    v_mov_b32 v{u}, 0
    v_cndmask_b32 v{vZ}, v{vT3}, v{u}, vcc''')
    e(f'''s_lshl_b32 s{sT0}, s{sH}, 1
    s_lshl_b32 s{sT0}, s{sT0}, 7
    s_add_u32 s{sT0}, s{sT0}, {L.PROG2}
    v_and_b32 v{u}, 1, v{lane}
    v_lshlrev_b32 v{u}, 7, v{u}
    v_add_u32 v{vFl}, s{sT0}, v{u}''')
    e(f'''s_lshl_b32 s{sT0}, s{sW}, 10
    s_add_u32 s{sT0}, s{sT0}, {LDS_VP}
    v_add_u32 v{vVP}, s{sT0}, v{vL16}''')
    e(f'''v_mov_b32 v{vONES}, 0x3f803f80
    v_mov_b32 v{vONES+1}, 0x3f803f80
    v_mov_b32 v{vONES+2}, 0x3f803f80
    v_mov_b32 v{vONES+3}, 0x3f803f80
    v_mov_b32 v{t}, 0xf149f2ca
    v_cmp_gt_u32 vcc, 2, v{g}
    v_cndmask_b32 v{vCM}, 0, v{t}, vcc
    v_mov_b32 v{vCM+1}, v{vCM}
    v_mov_b32 v{vCM+2}, v{vCM}
    v_mov_b32 v{vCM+3}, v{vCM}''')
    cexp = (192 ** -0.5) * math.log2(math.e)
    import struct
    cbits = struct.unpack('<I', struct.pack('<f', cexp))[0]
    e(f's_mov_b32 s{sCexp}, {cbits:#x}')
    e(f'''s_mul_i32 s{sMEMBx}, s{sX}, 40960
    s_add_u32 s{sMEMBx}, s{sMEMBx}, {L.MEMB}
    s_mul_i32 s{sQKh}, s{sH}, 24576
    s_add_u32 s{sQKh}, s{sQKh}, {L.QK}
    s_mul_i32 s{sOBx}, s{sX}, 49152
    s_add_u32 s{sOBx}, s{sOBx}, {L.OB}''')
    if stamps:
        e(f'''s_lshl_b32 s{sT0}, s{sC}, 2
        s_add_u32 s{sT0}, s{sT0}, s{sW}
        s_lshl_b32 s{sT0}, s{sT0}, 14
        s_add_u32 s{sSTB}, s{sT0}, {L.STAMP}
        s_cmp_eq_u32 s{sX}, 0
        s_cselect_b32 s{sSTB}, s{sSTB}, 0x7f000000
        s_cmp_lt_u32 s{sC}, 16
        s_cselect_b32 s{sSTB}, s{sSTB}, 0x7f000000''')
    e(f'''s_and_b32 s{sT3}, s{sW}, 1
    s_mul_i32 s{sT0}, s{sH}, 12
    s_lshl_b32 s{sT1}, s{sJ}, 1
    s_add_u32 s{sT0}, s{sT0}, s{sT1}
    s_add_u32 s{sT0}, s{sT0}, s{sT3}
    s_mul_i32 s{sT0}, s{sT0}, 20480
    s_mov_b32 s{sT1}, {L.WKP}
    s_cmp_eq_u32 s{sKH}, 0
    s_cselect_b32 s{sT1}, {L.WQP}, s{sT1}
    s_add_u32 s{sT1}, s{sT1}, s{sT0}
    s_mul_i32 s{sT2}, s{sKH}, 10240
    s_add_u32 s{sA}, s{sT1}, s{sT2}
    s_sub_u32 s{sT2}, 10240, s{sT2}
    s_add_u32 s{sB}, s{sT1}, s{sT2}
    s_add_u32 s{sO_}, s{sT0}, {L.WVP}
    s_mul_i32 s{sT2}, s{sKH}, 10240
    s_add_u32 s{sO_}, s{sO_}, s{sT2}''')
    vLs_ = [vL16, vL16b, vL16c]
    for b in range(20):
        bb = b % 10
        e(f'buffer_load_dwordx4 a[{aW1+4*b}:{aW1+4*b+3}], v{vLs_[bb//4]}, s[{sWS}:{sWS+3}], s{sA if b < 10 else sB} offen offset:{(bb%4)*1024}')
    for b in range(10):
        e(f'buffer_load_dwordx4 a[{aWV+4*b}:{aWV+4*b+3}], v{vLs_[b//4]}, s[{sWS}:{sWS+3}], s{sO_} offen offset:{(b%4)*1024}')
    Lnw2 = k.label('now2')
    e(f'''s_cmp_ge_u32 s{sC}, 20
    s_cbranch_scc1 {Lnw2}
    s_cmp_ge_u32 s{sW}, 2
    s_cbranch_scc1 {Lnw2}
    s_lshl_b32 s{sT0}, s{sC}, 1
    s_add_u32 s{sT0}, s{sT0}, s{sW}
    s_mul_i32 s{sT0}, s{sT0}, 192
    s_mul_i32 s{sT1}, s{sX}, 24
    s_add_u32 s{sT0}, s{sT0}, s{sT1}
    s_lshl_b32 s{sT0}, s{sT0}, 10
    s_add_u32 s{sT0}, s{sT0}, {L.WOP}''')
    for kk in range(24):
        if kk and kk % 12 == 0: e(f's_add_u32 s{sT0}, s{sT0}, 12288')
        q = kk % 12
        e(f'buffer_load_dwordx4 a[{aW2+4*kk}:{aW2+4*kk+3}], v{vLs_[q//4]}, s[{sWS}:{sWS+3}], s{sT0} offen offset:{(q%4)*1024}')
    e(Lnw2 + ':')
    def prefetch(s_seg_reg, par_reg_tmp):
        if PROJ:
            Lf = k.label('pf'); Lfo = k.label('pfok')
            e(f's_add_u32 s{sT3}, s{s_seg_reg}, 1')
            e(Lf + ':')
            e(f'''buffer_load_dword v{vT0}, v{vFl}, s[{sWS}:{sWS+3}], 0 offen sc1
            s_waitcnt vmcnt(0)
            v_cmp_gt_i32 vcc, s{sT3}, v{vT0}
            s_cbranch_vccz {Lfo}
            s_sleep 1
            s_sub_u32 s{sTO}, s{sTO}, 1
            s_cbranch_scc0 {Lf}
            s_mov_b32 s{sTO}, 0''')
            e(Lfo + ':')
        e(f'''s_lshl_b32 s{sT0}, s{sH}, 6
        s_add_u32 s{sT0}, s{sT0}, s{s_seg_reg}
        s_mul_i32 s{sT0}, s{sT0}, 12288
        s_add_u32 s{sKT}, s{sT0}, {L.KT}
        s_lshl_b32 s{sT1}, s{sJ}, 11
        s_add_u32 s{sT0}, s{sT0}, s{sT1}
        s_add_u32 s{sVT}, s{sT0}, {L.VT}
        s_and_b32 s{sT1}, s{s_seg_reg}, 1
        s_mul_i32 s{sT1}, s{sT1}, {KVSZ}
        s_add_u32 s{sT1}, s{sT1}, {LDS_KV}''')
        for grp in range(3):
            e(f's_add_u32 m0, s{sT1}, {grp*4096}')
            e('s_nop 0')
            for q in range(4):
                e(f'buffer_load_dwordx4 v{vL16}, s[{sWS}:{sWS+3}], s{sKT} offen offset:{q*1024} lds')
            if grp < 2: e(f's_add_u32 s{sKT}, s{sKT}, 4096')
        e(f's_add_u32 m0, s{sT1}, 12288')
        e('s_nop 0')
        for q in range(2):
            e(f'buffer_load_dwordx4 v{vL16}, s[{sWS}:{sWS+3}], s{sVT} offen offset:{q*1024} lds')
    e(f's_mov_b32 s{sS}, 0')
    Lnp = k.label('nopf0')
    e(f'''s_cmp_lg_u32 s{sW}, 2
    s_cbranch_scc1 {Lnp}''')
    prefetch(sS, None)
    e(Lnp + ':')
    e(f'''s_mov_b32 s{sAUX}, s{sPTR+4}
    s_mov_b32 s{sAUX+1}, s{sPTR+5}
    s_mov_b32 s{sAUX+2}, 10240
    v_and_b32 v{lane}, 63, v0
    v_and_b32 v{t}, 7, v{lane}
    v_mul_u32_u24 v{t}, 1280, v{t}
    v_lshrrev_b32 v{u}, 3, v{lane}
    v_and_b32 v{u}, 3, v{u}
    v_lshl_add_u32 v{t}, v{u}, 4, v{t}
    s_mul_i32 s{sT0}, s{sW}, 320
    v_add_u32 v{t}, s{sT0}, v{t}
    v_add_u32 v{a_}, 256, v{t}
    v_lshrrev_b32 v{u}, 5, v{lane}
    v_lshl_add_u32 v{t}, v{u}, 6, v{t}
    buffer_load_dwordx4 v[{MEMR}:{MEMR+3}], v{t}, s[{sAUX}:{sAUX+3}], 0 offen
    buffer_load_dwordx4 v[{MEMR+4}:{MEMR+7}], v{t}, s[{sAUX}:{sAUX+3}], 0 offen offset:128
    buffer_load_dwordx4 v[{MEMR+8}:{MEMR+11}], v{a_}, s[{sAUX}:{sAUX+3}], 0 offen
    s_waitcnt vmcnt(0)''')
    Ltop = k.label('step'); Lafter = k.label('gotmem')
    e(f's_branch {Lafter}')
    ool = []
    def prog(n, load, chk, consume, cnt=None, extra=0):
        for i in range(n + 1):
            if i < n:
                e(f's_waitcnt vmcnt({n - 1 - i + extra})')
                r = chk(i)
                if len(r) == 1:
                    e(f'v_cmp_eq_u32 vcc, -1, v{r[0]}')
                else:
                    e(f'v_max_u32 v{vT1}, v{r[0]}, v{r[1]}')
                    e(f'v_cmp_eq_u32 vcc, -1, v{vT1}')
            if i > 0: consume(i - 1)
            if i < n:
                Lr = k.label('retry'); Lb = k.label('resume')
                e(f's_cbranch_vccnz {Lr}')
                e(Lb + ':')
                blk = [Lr + ':']
                if stamps and cnt is not None: blk.append(f's_add_u32 s{64+2*cnt}, s{64+2*cnt}, 1')
                blk += [f's_sub_u32 s{sTO}, s{sTO}, 1', f's_cbranch_scc1 {Lr}_to'] + [load(q) for q in range(i, n)] + [f's_waitcnt vmcnt({n - 1 - i})']
                if len(r) == 1:
                    blk.append(f'v_cmp_eq_u32 vcc, -1, v{r[0]}')
                else:
                    blk += [f'v_max_u32 v{vT1}, v{r[0]}, v{r[1]}', f'v_cmp_eq_u32 vcc, -1, v{vT1}']
                blk += [f's_cbranch_vccnz {Lr}', f's_branch {Lb}', Lr + '_to:', f's_mov_b32 s{sTO}, 0', 's_waitcnt vmcnt(0)', f's_branch {Lb}']
                ool.append(blk)
    def chk_fail_branch(t, Lretry, Lok):
        e(f"""v_cmp_eq_u32 vcc, -1, v{t}
        s_cbranch_vccz {Lok}
        s_sub_u32 s{sTO}, s{sTO}, 1
        s_cbranch_scc0 {Lretry}
        s_mov_b32 s{sTO}, 0""")
    e(Ltop + ':')
    e(f"""s_and_b32 s{sT0}, s{sS}, 3
    s_mul_i32 s{sA}, s{sT0}, 10240
    s_add_u32 s{sA}, s{sA}, s{sMEMBx}""")
    if D4: e(f's_sleep {D4}')
    mld = [f'buffer_load_dwordx4 v[{MEMR}:{MEMR+3}], v{vMld}, s[{sWS}:{sWS+3}], s{sA} offen sc1',
           f'buffer_load_dwordx4 v[{MEMR+4}:{MEMR+7}], v{vMld}, s[{sWS}:{sWS+3}], s{sA} offen offset:1024 sc1',
           f'buffer_load_dwordx4 v[{MEMR+8}:{MEMR+11}], v{vMld2}, s[{sWS}:{sWS+3}], s{sA} offen sc1']
    mwr = [f'ds_write_b128 v{vMld}, v[{MEMR}:{MEMR+3}]',
           f'ds_write_b128 v{vMld}, v[{MEMR+4}:{MEMR+7}] offset:1024',
           f'ds_write_b128 v{vMld2}, v[{MEMR+8}:{MEMR+11}]']
    for x in mld: e(x)
    prog(3, lambda i: mld[i], lambda i: [MEMR+4*i, MEMR+4*i+2], lambda i: e(mwr[i]), cnt=13)
    Lafter2 = k.label('gotmem2')
    e(f's_branch {Lafter2}')
    e(Lafter + ':')
    for x in mwr: e(x)
    e(Lafter2 + ':')
    stamp(0)
    e(f"""s_and_b32 s{sT0}, s{sS}, 3
    s_mul_i32 s{sB}, s{sT0}, 6144
    s_add_u32 s{sB}, s{sB}, s{sQKh}
    s_mul_i32 s{sO_}, s{sT0}, 12288
    s_add_u32 s{sO_}, s{sO_}, s{sOBx}
    s_mul_i32 s{sPp}, s{sT0}, 393216
    s_add_u32 s{sPp}, s{sPp}, s{sPARTB}
    s_add_u32 s{sT1}, s{sS}, 1
    s_and_b32 s{sT1}, s{sT1}, 3
    s_mul_i32 s{sE}, s{sT1}, 10240
    s_add_u32 s{sE}, s{sE}, s{sMEMBx}
    s_waitcnt lgkmcnt(0)
    s_barrier""")
    stamp(1, True)
    def memrd(b):
        return f'ds_read_b128 v[{MEMR+4*b}:{MEMR+4*b+3}], v{vMrdA if b < 10 else vMrdB} offset:{(b%10)*512}'
    NPRE = 12
    for b in range(NPRE): e(memrd(b))
    for b in range(20):
        nxt = b + NPRE
        if nxt < 20:
            e(memrd(nxt))
            e(f's_waitcnt lgkmcnt({NPRE})')
        else:
            e(f's_waitcnt lgkmcnt({19-b})')
        c = '0' if b == 0 else f'v[{vACC}:{vACC+3}]'
        e(f'v_mfma_f32_16x16x32_bf16 v[{vACC}:{vACC+3}], a[{aW1+4*b}:{aW1+4*b+3}], v[{MEMR+4*b}:{MEMR+4*b+3}], {c}')
    e(f'v_mfma_f32_16x16x32_bf16 v[{vACV}:{vACV+3}], v[{MEMR}:{MEMR+3}], a[{aWV}:{aWV+3}], 0')
    e(f"""s_lshl_b32 s{sT0}, s{sS}, 5
    s_add_u32 s{sT0}, s{sT0}, s{sH}
    s_mul_i32 s{sT0}, s{sT0}, 3072
    s_lshl_b32 s{sT1}, s{sJ}, 9
    s_add_u32 s{sT0}, s{sT0}, s{sT1}
    s_add_u32 s{sKM}, s{sT0}, {L.KM}
    s_add_u32 s{sVM}, s{sT0}, {L.VM}""")
    e(f"""v_cvt_pk_bf16_f32 v{vQK}, v{vACC}, v{vACC+1}
    v_cvt_pk_bf16_f32 v{vQK+1}, v{vACC+2}, v{vACC+3}
    buffer_store_dwordx2 v[{vQK}:{vQK+1}], v{vXst}, s[{sWS}:{sWS+3}], s{sB} offen""")
    stamp(2)
    for b in range(1, 10):
        e(f'v_mfma_f32_16x16x32_bf16 v[{vACV}:{vACV+3}], v[{MEMR+4*b}:{MEMR+4*b+3}], a[{aWV+4*b}:{aWV+4*b+3}], v[{vACV}:{vACV+3}]')
    LS = k.label('swave'); Lb2 = k.label('b2'); LSpre = k.label('spre')
    xloads = [f'buffer_load_dwordx4 v[{vX+4*i}:{vX+4*i+3}], v{[vL16, vL16b][i//4]}, s[{sWS}:{sWS+3}], s{sB} offen offset:{(i%4)*1024} sc1' for i in range(6)]
    e(f"""s_cmp_eq_u32 s{sW}, 3
    s_cbranch_scc1 {LSpre}
    ds_write_b128 v{vVP}, v[{vACV}:{vACV+3}]""")
    Lnk = k.label('nokm')
    e(f"""s_cmp_lg_u32 s{sS}, {nsteps-1}
    s_cbranch_scc1 {Lnk}
    s_cmp_lg_u32 s{sW}, 2
    s_cbranch_scc1 {Lnk}
    buffer_store_dwordx2 v[{vQK}:{vQK+1}], v{vKMst}, s[{sWS}:{sWS+3}], s{sKM} offen""")
    e(Lnk + ':')
    e(f"""s_waitcnt lgkmcnt(0)
    s_branch {Lb2}""")
    e(LSpre + ':')
    if D1: e(f's_sleep {D1}')
    for x in xloads: e(x)
    e(Lb2 + ':')
    e('s_barrier')
    e(f"""s_add_u32 s{sT0}, s{sS}, 2
    s_and_b32 s{sT0}, s{sT0}, 3
    s_mul_i32 s{sA2}, s{sT0}, 10240
    s_add_u32 s{sA2}, s{sA2}, s{sMEMBx}
    s_mul_i32 s{sB2}, s{sT0}, 6144
    s_add_u32 s{sB2}, s{sB2}, s{sQKh}
    s_mul_i32 s{sO2}, s{sT0}, 12288
    s_add_u32 s{sO2}, s{sO2}, s{sOBx}
    s_mul_i32 s{sP2}, s{sT0}, 393216
    s_add_u32 s{sP2}, s{sP2}, s{sPARTB}""")
    Lnext = k.label('next'); Lb3 = k.label('b3'); Lb4 = k.label('b4'); Lb5 = k.label('b5')
    e(f"""s_cmp_eq_u32 s{sW}, 3
    s_cbranch_scc1 {LS}""")
    e(f"""s_cmp_eq_u32 s{sS}, {nsteps-1}
    s_cbranch_scc1 {Lexit}
    s_barrier""")
    e(f'buffer_store_dwordx2 v[{vNEG1}:{vNEG1+1}], v{vXst}, s[{sWS}:{sWS+3}], s{sB2} offen')
    Lw01 = k.label('w01')
    e(f"""s_cmp_lg_u32 s{sW}, 2
    s_cbranch_scc1 {Lw01}""")
    e(f'buffer_store_dwordx2 v[{vQK}:{vQK+1}], v{vKMst}, s[{sWS}:{sWS+3}], s{sKM} offen')
    e(f'buffer_store_dwordx2 v[{vNEG1}:{vNEG1+1}], v{vMst}, s[{sWS}:{sWS+3}], s{sA2} offen')
    stamp_flush()
    Lnpg = k.label('noprog')
    e(f"""s_cmp_lg_u32 s{sC}, 0
    s_cbranch_scc1 {Lnpg}
    v_mov_b32 v{vT0}, s{sS}
    s_lshl_b32 s{sT0}, s{sX}, 7
    s_add_u32 s{sT0}, s{sT0}, {L.PROG}
    buffer_store_dword v{vT0}, v{vZ}, s[{sWS}:{sWS+3}], s{sT0} offen""")
    e(Lnpg + ':')
    e(f's_branch {Lb3}')
    e(Lw01 + ':')
    e(f's_branch {Lb3}')
    e(LS + ':')
    e(f"""s_and_b32 s{sT0}, s{sS}, 1
    s_mul_i32 s{sT0}, s{sT0}, {KVSZ}
    v_add_u32 v{vKVrd}, s{sT0}, v{vL16}
    ds_read_b128 v[{vVPr}:{vVPr+3}], v{vL16} offset:{LDS_VP}
    ds_read_b128 v[{vVPr+4}:{vVPr+7}], v{vL16} offset:{LDS_VP+1024}
    ds_read_b128 v[{vVPr+8}:{vVPr+11}], v{vL16} offset:{LDS_VP+2048}""")
    order = []
    for j in range(6): order += [j, 6 + j]
    for n, i in enumerate(order):
        e(f'ds_read_b128 v[{vKT+4*i}:{vKT+4*i+3}], v{vKVrd} offset:{LDS_KV+i*1024}')
        if n == 10: e('s_waitcnt lgkmcnt(8)')
    for i in range(2):
        e(f'ds_read_b128 v[{vVT+4*i}:{vVT+4*i+3}], v{vKVrd} offset:{LDS_KV+12288+i*1024}')
    for r in range(4):
        e(f'v_add_f32 v{vVPr+r}, v{vVPr+r}, v{vVPr+8+r}')
        e(f'v_add_f32 v{vVPr+4+r}, v{vVPr+4+r}, v{vACV+r}')
    e(f"""v_cvt_pk_bf16_f32 v{vVMf}, v{vVPr}, v{vVPr+1}
    v_cvt_pk_bf16_f32 v{vVMf+1}, v{vVPr+2}, v{vVPr+3}
    v_cvt_pk_bf16_f32 v{vVMf+2}, v{vVPr+4}, v{vVPr+5}
    v_cvt_pk_bf16_f32 v{vVMf+3}, v{vVPr+6}, v{vVPr+7}""")
    Lvmst = k.label('vmst')
    e(f"""s_cmp_lg_u32 s{sS}, {nsteps-1}
    s_cbranch_scc1 {Lvmst}
    buffer_store_dwordx2 v[{vQK}:{vQK+1}], v{vKMst}, s[{sWS}:{sWS+3}], s{sKM} offen
    buffer_store_dwordx2 v[{vVMf}:{vVMf+1}], v{vVMst}, s[{sWS}:{sWS+3}], s{sVM} offen
    buffer_store_dwordx2 v[{vVMf+2}:{vVMf+3}], v{vVMst}, s[{sWS}:{sWS+3}], s{sVM} offen offset:256
    s_branch {Lexit}""")
    e(Lvmst + ':')
    e('s_waitcnt lgkmcnt(0)')
    SM, S0, S1 = vS, vS + 4, vS + 8
    def sc_consume(j):
        X = f'v[{vX+4*j}:{vX+4*j+3}]'
        e(f'v_mfma_f32_16x16x32_bf16 v[{SM}:{SM+3}], {X}, {X}, ' + (f'v[{vCM}:{vCM+3}]' if j == 0 else f'v[{SM}:{SM+3}]'))
        e(f'v_mfma_f32_16x16x32_bf16 v[{S0}:{S0+3}], v[{vKT+4*j}:{vKT+4*j+3}], {X}, ' + ('0' if j == 0 else f'v[{S0}:{S0+3}]'))
        e(f'v_mfma_f32_16x16x32_bf16 v[{S1}:{S1+3}], v[{vKT+24+4*j}:{vKT+24+4*j+3}], {X}, ' + ('0' if j == 0 else f'v[{S1}:{S1+3}]'))
    prog(6, lambda j: xloads[j], lambda j: [vX+4*j, vX+4*j+2], sc_consume, cnt=10)
    e('s_barrier')
    stamp(4)
    e(f"""v_max3_f32 v{vT0}, v{SM}, v{SM+1}, v{SM+2}
    v_max3_f32 v{vT1}, v{S0}, v{S0+1}, v{S0+2}
    v_max3_f32 v{vT0}, v{vT0}, v{SM+3}, v{S0+3}
    v_max3_f32 v{vT1}, v{vT1}, v{S1}, v{S1+1}
    v_max3_f32 v{vT0}, v{vT0}, v{S1+2}, v{S1+3}
    v_max_f32 v{vT0}, v{vT0}, v{vT1}
    v_mov_b32 v{vT1}, v{vT0}
    v_permlane32_swap_b32 v{vT0}, v{vT1}
    v_max_f32 v{vT0}, v{vT0}, v{vT1}
    v_mov_b32 v{vT1}, v{vT0}
    v_permlane16_swap_b32 v{vT0}, v{vT1}
    v_max_f32 v{vT0}, v{vT0}, v{vT1}
    v_mul_f32 v{vT0}, s{sCexp}, v{vT0}""")
    for r in range(12):
        e(f'v_fma_f32 v{vS+r}, v{vS+r}, s{sCexp}, -v{vT0}')
    for r in range(12):
        e(f'v_exp_f32 v{vS+r}, v{vS+r}')
    e(f"""v_cvt_pk_bf16_f32 v{vP}, v{S0}, v{S0+1}
    v_cvt_pk_bf16_f32 v{vP+1}, v{S0+2}, v{S0+3}
    v_cvt_pk_bf16_f32 v{vP+2}, v{S1}, v{S1+1}
    v_cvt_pk_bf16_f32 v{vP+3}, v{S1+2}, v{S1+3}
    v_cvt_pk_bf16_f32 v{vP+4}, v{SM}, v{SM+1}
    v_cvt_pk_bf16_f32 v{vP+5}, v{SM+2}, v{SM+3}""")
    PT = f'v[{vP}:{vP+3}]'; PM = f'v[{vP+4}:{vP+5}]'
    e(f"""v_mfma_f32_16x16x32_bf16 v[{vLs}:{vLs+3}], v[{vONES}:{vONES+3}], {PT}, 0
    v_mfma_f32_16x16x32_bf16 v[{vO}:{vO+3}], v[{vVT}:{vVT+3}], {PT}, 0
    v_mfma_f32_16x16x32_bf16 v[{vO+4}:{vO+7}], v[{vVT+4}:{vVT+7}], {PT}, 0
    v_mfma_f32_16x16x16_bf16 v[{vLs}:{vLs+3}], v[{vONES}:{vONES+1}], {PM}, v[{vLs}:{vLs+3}]
    v_mfma_f32_16x16x16_bf16 v[{vO}:{vO+3}], v[{vVMf}:{vVMf+1}], {PM}, v[{vO}:{vO+3}]
    v_mfma_f32_16x16x16_bf16 v[{vO+4}:{vO+7}], v[{vVMf+2}:{vVMf+3}], {PM}, v[{vO+4}:{vO+7}]
    v_rcp_f32 v{vT0}, v{vLs}""")
    for r in range(8):
        e(f'v_mul_f32 v{vO+r}, v{vO+r}, v{vT0}')
    for r in range(4):
        e(f'v_cvt_pk_bf16_f32 v{vOp+r}, v{vO+2*r}, v{vO+2*r+1}')
    e(f'buffer_store_dwordx4 v[{vOp}:{vOp+3}], v{vOst}, s[{sWS}:{sWS+3}], s{sO_} offen')
    stamp(5)
    e(Lb3 + ':')
    e('s_barrier')
    Lnotg2 = k.label('notg2')
    e(f"""s_cmp_ge_u32 s{sW}, 2
    s_cbranch_scc1 {Lnotg2}""")
    if D2: e(f's_sleep {D2}')
    vO_ = [vOld, vOldb, vOldc]
    oloads = [f'buffer_load_dwordx4 v[{vG2+4*i}:{vG2+4*i+3}], v{vO_[i//4]}, s[{sWS}:{sWS+3}], s{sO_} offen offset:{(i%4)*1024} sc1' for i in range(12)]
    for x in oloads: e(x)
    def g2_consume(i):
        c1 = '0' if i == 0 else f'v[{vD1}:{vD1+3}]'
        c2 = '0' if i == 0 else f'v[{vD2}:{vD2+3}]'
        e(f'v_mfma_f32_16x16x32_bf16 v[{vD1}:{vD1+3}], a[{aW2+8*i}:{aW2+8*i+3}], v[{vG2+4*i}:{vG2+4*i+3}], {c1}')
        e(f'v_mfma_f32_16x16x32_bf16 v[{vD2}:{vD2+3}], a[{aW2+8*i+4}:{aW2+8*i+7}], v[{vG2+4*i}:{vG2+4*i+3}], {c2}')
    prog(12, lambda i: oloads[i], lambda i: [vG2+4*i], g2_consume, cnt=11)
    for r in range(4):
        e(f'v_add_f32_dpp v{vR+r}, v{vD2+r}, v{vD1+r} row_ror:8 row_mask:0xf bank_mask:0xf')
    e(f'buffer_store_dwordx4 v[{vR}:{vR+3}], v{vPst}, s[{sWS}:{sWS+3}], s{sPp} offen sc1')
    e(f'buffer_store_dwordx4 v[{vR}:{vR+3}], v{vPst2}, s[{sWS}:{sWS+3}], s{sPp} offen sc1')
    stamp(7)
    e(f'buffer_store_dwordx4 v[{vNEG1}:{vNEG1+3}], v{vPst}, s[{sWS}:{sWS+3}], s{sP2} offen sc1')
    e(f'buffer_store_dwordx4 v[{vNEG1}:{vNEG1+3}], v{vPst2}, s[{sWS}:{sWS+3}], s{sP2} offen sc1')
    e(f's_branch {Lb4}')
    e(Lnotg2 + ':')
    e(f"""s_cmp_lg_u32 s{sW}, 3
    s_cbranch_scc1 {Lb4}
    buffer_store_dwordx2 v[{vQK}:{vQK+1}], v{vKMst}, s[{sWS}:{sWS+3}], s{sKM} offen
    buffer_store_dwordx2 v[{vVMf}:{vVMf+1}], v{vVMst}, s[{sWS}:{sWS+3}], s{sVM} offen
    buffer_store_dwordx2 v[{vVMf+2}:{vVMf+3}], v{vVMst}, s[{sWS}:{sWS+3}], s{sVM} offen offset:256
    buffer_store_dwordx2 v[{vNEG1}:{vNEG1+1}], v{vXst}, s[{sWS}:{sWS+3}], s{sB2} offen
    buffer_store_dwordx4 v[{vNEG1}:{vNEG1+3}], v{vOst}, s[{sWS}:{sWS+3}], s{sO2} offen""")
    e(Lb4 + ':')
    Lnot2 = k.label('not2')
    e(f"""s_barrier
    s_cmp_lg_u32 s{sW}, 2
    s_cbranch_scc1 {Lnot2}""")
    if D3: e(f's_sleep {D3}')
    ploads = [f'buffer_load_dwordx4 v[{vH3+4*i}:{vH3+4*i+3}], v{vPld+i}, s[{sWS}:{sWS+3}], s{sPp} offen sc1' for i in range(8)]
    for x in ploads: e(x)
    def h3_consume(i):
        if i == 0: return
        e(f'v_pk_add_f32 v[{vR}:{vR+1}], ' + (f'v[{vH3}:{vH3+1}]' if i == 1 else f'v[{vR}:{vR+1}]') + f', v[{vH3+4*i}:{vH3+4*i+1}]')
        e(f'v_pk_add_f32 v[{vR+2}:{vR+3}], ' + (f'v[{vH3+2}:{vH3+3}]' if i == 1 else f'v[{vR+2}:{vR+3}]') + f', v[{vH3+4*i+2}:{vH3+4*i+3}]')
    prog(8, lambda i: ploads[i], lambda i: [vH3+4*i], h3_consume, cnt=12)
    e(f"""v_cvt_pk_bf16_f32 v{vH3+4}, v{vR}, v{vR+1}
    v_cvt_pk_bf16_f32 v{vH3+5}, v{vR+2}, v{vR+3}""")
    e(f'buffer_store_dwordx2 v[{vH3+4}:{vH3+5}], v{vMst}, s[{sWS}:{sWS+3}], s{sE} offen')
    stamp(9)
    e(f's_branch {Lb5}')
    e(Lnot2 + ':')
    stamp_flush()
    if not WARM or PFW3:
        e(f"""s_cmp_lg_u32 s{sW}, 3
        s_cbranch_scc1 {Lb5}
        s_add_u32 s{sT2}, s{sS}, 1
        s_cmp_ge_u32 s{sT2}, {nsteps-1}
        s_cbranch_scc1 {Lb5}""")
        prefetch(sT2, None)
    e(Lb5 + ':')
    e('s_barrier')
    e(Lnext + ':')
    e(f"""s_add_u32 s{sS}, s{sS}, 1
    s_branch {Ltop}""")
    for blk in ool:
        for x in blk: e(x)
    e(f's_branch {Lexit}')
    e(Lwarm + ':')
    if PROJ:
        e(f's_cmp_ge_u32 s{sC}, 32\ns_cbranch_scc1 {Lexit}')
        proj.emit(k, sWS, sX, sC, sW, sTO, Lexit, nsteps, LEAD=PLEAD)
    if not WARM: e(f's_branch {Lexit}')
    e(f'''s_cmp_ge_u32 s{sC}, 32
    s_cbranch_scc1 {Lexit}
    s_sub_u32 s{sT0}, s{sC}, 24
    s_lshr_b32 s{sT1}, s{sT0}, 1
    s_lshl_b32 s{sH}, s{sX}, 2
    s_add_u32 s{sH}, s{sH}, s{sT1}
    s_and_b32 s{sT0}, s{sT0}, 1
    s_mov_b32 s{sT1}, {L.VT}
    s_cmp_eq_u32 s{sT0}, 0
    s_cselect_b32 s{sT1}, {L.KT}, s{sT1}
    s_mul_i32 s{sT0}, s{sH}, {64*12288}
    s_add_u32 s{sA}, s{sT0}, s{sT1}
    s_mul_i32 s{sT0}, s{sW}, 3072
    s_add_u32 s{sA}, s{sA}, s{sT0}
    s_lshl_b32 s{sB}, s{sX}, 7
    s_add_u32 s{sB}, s{sB}, {L.PROG}
    v_mov_b32 v{vT1}, 0
    s_mov_b32 s{sS}, 0''')
    Lwt = k.label('wtop'); Lwp = k.label('wpoll'); Lwg = k.label('wgo')
    e(Lwt + ':')
    e(f'''s_cmp_lt_u32 s{sS}, {LEAD}
    s_cbranch_scc1 {Lwg}
    s_sub_u32 s{sT2}, s{sS}, {LEAD}''')
    e(Lwp + ':')
    e(f'''buffer_load_dword v{vT0}, v{vT1}, s[{sWS}:{sWS+3}], s{sB} offen sc1
    s_waitcnt vmcnt(0)
    v_readfirstlane_b32 s{sT0}, v{vT0}
    s_cmp_ge_i32 s{sT0}, s{sT2}
    s_cbranch_scc1 {Lwg}
    s_sleep 4
    s_sub_u32 s{sTO}, s{sTO}, 1
    s_cbranch_scc0 {Lwp}
    s_mov_b32 s{sTO}, 0''')
    e(Lwg + ':')
    for q in range(3):
        e(f'buffer_load_dwordx4 v[{MEMR+4*q}:{MEMR+4*q+3}], v{vL16}, s[{sWS}:{sWS+3}], s{sA} offen offset:{q*1024}')
    e(f'''s_add_u32 s{sA}, s{sA}, 12288
    s_add_u32 s{sS}, s{sS}, 1
    s_cmp_lt_u32 s{sS}, {nsteps-1}
    s_waitcnt vmcnt(0)
    s_cbranch_scc1 {Lwt}''')
    e(Lexit + ':')
    e('s_endpgm')
    return k, max(LDS_SIZE, proj.LDS_SIZE if PROJ else 0)

if __name__ == '__main__':
    import sys
    k, lds = gen(stamps='stamps' in sys.argv)
    txt = build_file([('rec_kernel', (256, 1, 1), (256, 1, 1), lds)], [k], verbose=True)
    open('out_rec.s', 'w').write(txt)
    print('written', len(txt))
```

```python
import sys; sys.path.insert(0, 'gen')
import prep, ln, rec, attn_a, outproj_a, qkv_b, attn_b, layout as L
from asmgen import *
def build(path, rec_kw=None, upto=None):
    rec_kw = dict(D1=1, D2=3, D3=8, D4=2, PROJ=1) if rec_kw is None else rec_kw
    kp, nwg = prep.gen('prep_kernel')
    kl1, lds_ln = ln.gen('ln1_kernel', True); kl2, _ = ln.gen('ln2_kernel', False)
    ka, lds_a = rec.gen('reca_kernel', **rec_kw)
    kat = attn_a.gen('attna_kernel')
    ko1 = outproj_a.gen('outa1_kernel', True); ko2 = outproj_a.gen('outa2_kernel', False)
    kq, lds_q = qkv_b.gen('qkvb_kernel'); kab, _ = attn_b.gen('attnb_kernel')
    kb1 = outproj_a.gen('outb1_kernel', False, nk=32, wbase=L.WB2, abase=L.OB2)
    kb2 = outproj_a.gen('outb2_kernel', False, nk=32, wbase=L.WB2, abase=L.OB2, out_to_dout=True)
    B = (256, 1, 1); G = lambda n: (n, 1, 1); lo = outproj_a.LDS_SIZE
    launches = [('prep_kernel', G(nwg), B, 0)]
    for layer in range(2):
        launches += [('ln1_kernel' if layer == 0 else 'ln2_kernel', G(128), B, lds_ln), ('reca_kernel', G(256), B, lds_a), ('attna_kernel', G(512), B, 0),
                     ('outa1_kernel' if layer == 0 else 'outa2_kernel', G(256), B, lo), ('qkvb_kernel', G(256), B, lds_q), ('attnb_kernel', G(256), B, 0),
                     ('outb1_kernel' if layer == 0 else 'outb2_kernel', G(256), B, lo)]
    txt = build_file(launches, [kp, kl1, kl2, ka, kat, ko1, ko2, kq, kab, kb1, kb2])
    open(path, 'w').write(txt)
    print('written', path, len(txt))
if __name__ == '__main__':
    build(sys.argv[1] if len(sys.argv) > 1 else '/code/' + NAME + '.s')
```

```python
import struct
from asmgen import *
import layout as L
OOB = 0x80000000
def fbits(x): return struct.unpack('<I', struct.pack('<f', x))[0]

def gen(name, from_input):
    k = Kernel(name, vgpr=80, agpr=0, sgpr=40); e = k.e
    vX = 8
    vF = 28
    vA, vT0, vT1, vS, vLd = 1, 2, 3, 4, 5
    Lx = k.label('exit')
    e(f'''s_cmp_ge_u32 s2, 128
    s_cbranch_scc1 {Lx}
    s_load_dwordx2 s[12:13], s[0:1], 96
    s_load_dwordx2 s[14:15], s[0:1], 0
    v_lshrrev_b32 v{vT0}, 6, v0
    v_and_b32 v{vT1}, 63, v0
    s_nop 0
    v_readfirstlane_b32 s16, v{vT0}
    s_waitcnt lgkmcnt(0)
    s_mov_b32 s4, s12
    s_mov_b32 s5, s13
    s_mov_b32 s6, 0x10000000
    s_mov_b32 s7, 0x20000''')
    if from_input:
        e(f's_mov_b32 s8, s14\ns_mov_b32 s9, s15\ns_mov_b32 s10, {2048*1280}\ns_mov_b32 s11, 0x20000\ns_mov_b32 s20, 0')
    else:
        e(f's_mov_b32 s8, s12\ns_mov_b32 s9, s13\ns_mov_b32 s10, 0x10000000\ns_mov_b32 s11, 0x20000\ns_mov_b32 s20, {L.X1}')
    e(f'''v_and_b32 v{vT0}, 15, v{vT1}
    v_lshrrev_b32 v{vS}, 4, v{vT1}
    s_lshl_b32 s17, s2, 4
    v_add_u32 v{vA}, s17, v{vT0}
    v_mul_u32_u24 v{vA}, 1280, v{vA}
    v_lshl_add_u32 v{vA}, v{vS}, 4, v{vA}
    s_mul_i32 s17, s16, 320
    s_add_u32 s20, s20, s17''')
    for q in range(5):
        e(f'buffer_load_dwordx4 v[{vX+4*q}:{vX+4*q+3}], v{vA}, s[8:11], s20 offen offset:{q*64}')
    e(f'''v_lshlrev_b32 v{vLd}, 2, v{vT0}
    s_lshl_b32 s17, s16, 6
    v_add_u32 v{vA}, s17, v{vLd}
    s_waitcnt vmcnt(0)''')
    for i in range(20):
        e(f'v_lshlrev_b32 v{vF+2*i}, 16, v{vX+i}')
        e(f'v_and_b32 v{vF+2*i+1}, 0xffff0000, v{vX+i}')
    def reduce_row(off):
        e(f'''v_mov_b32 v{vT0}, v{vS}
        v_permlane32_swap_b32 v{vS}, v{vT0}
        v_add_f32 v{vS}, v{vS}, v{vT0}
        v_mov_b32 v{vT0}, v{vS}
        v_permlane16_swap_b32 v{vS}, v{vT0}
        v_add_f32 v{vS}, v{vS}, v{vT0}
        ds_write_b32 v{vA}, v{vS} offset:{off}
        s_waitcnt lgkmcnt(0)
        s_barrier
        ds_read_b32 v{vS}, v{vLd} offset:{off}
        ds_read_b32 v{vT0}, v{vLd} offset:{off+64}
        ds_read_b32 v{vT1}, v{vLd} offset:{off+128}
        ds_read_b32 v6, v{vLd} offset:{off+192}
        s_waitcnt lgkmcnt(0)
        v_add_f32 v{vS}, v{vS}, v{vT0}
        v_add_f32 v{vT1}, v{vT1}, v6
        v_add_f32 v{vS}, v{vS}, v{vT1}''')
    e(f'v_pk_add_f32 v[6:7], v[{vF}:{vF+1}], v[{vF+2}:{vF+3}]')
    for i in range(2, 20):
        e(f'v_pk_add_f32 v[6:7], v[6:7], v[{vF+2*i}:{vF+2*i+1}]')
    e(f'v_add_f32 v{vS}, v6, v7')
    reduce_row(0)
    e(f'v_mul_f32 v{vS}, {fbits(1/640):#x}, v{vS}')
    for i in range(40):
        e(f'v_sub_f32 v{vF+i}, v{vF+i}, v{vS}')
    e(f'v_mul_f32 v6, v{vF}, v{vF}')
    e(f'v_mul_f32 v7, v{vF+1}, v{vF+1}')
    for i in range(1, 20):
        e(f'v_fmac_f32 v6, v{vF+2*i}, v{vF+2*i}')
        e(f'v_fmac_f32 v7, v{vF+2*i+1}, v{vF+2*i+1}')
    e(f'v_add_f32 v{vS}, v6, v7')
    reduce_row(256)
    e(f'''v_mov_b32 v{vT0}, {fbits(1e-5):#x}
    v_fmac_f32 v{vT0}, {fbits(1/640):#x}, v{vS}
    v_rsq_f32 v{vS}, v{vT0}''')
    for i in range(40):
        e(f'v_mul_f32 v{vF+i}, v{vF+i}, v{vS}')
    for i in range(20):
        e(f'v_cvt_pk_bf16_f32 v{vX+i}, v{vF+2*i}, v{vF+2*i+1}')
    e(f'''v_and_b32 v{vT1}, 63, v0
    v_lshlrev_b32 v{vA}, 4, v{vT1}
    s_mul_i32 s17, s2, 20480
    s_mul_i32 s18, s16, 5120
    s_add_u32 s17, s17, s18
    s_add_u32 s17, s17, {L.XNF}''')
    for q in range(5):
        if q == 4: e('s_add_u32 s17, s17, 4096')
        e(f'buffer_store_dwordx4 v[{vX+4*q}:{vX+4*q+3}], v{vA}, s[4:7], s17 offen offset:{(q%4)*1024}')
    per = L.EXCH_SIZE // 128; per2 = L.PART_SIZE // 128
    assert per % 16 == 0 and per2 % 4096 == 0
    e(f'''s_sub_u32 s21, 0, s12
    s_and_b32 s21, s21, 0x1fffff
    s_add_u32 s21, s21, {L.PARTR}
    v_mov_b32 v8, -1
    v_mov_b32 v9, -1
    v_mov_b32 v10, -1
    v_mov_b32 v11, -1
    v_lshlrev_b32 v12, 4, v0
    s_mul_i32 s22, s2, {per}
    s_add_u32 s22, s22, {L.MEMB}
    s_mul_i32 s23, s2, {per2}
    s_add_u32 s23, s23, s21''')
    for q in range(per // 4096):
        e(f'buffer_store_dwordx4 v[8:11], v12, s[4:7], s22 offen\ns_add_u32 s22, s22, 4096')
    rem = per % 4096
    if rem:
        e(f'''v_mov_b32 v13, {OOB:#x}
        v_cmp_gt_u32 vcc, {rem // 16}, v0
        v_cndmask_b32 v13, v13, v12, vcc
        buffer_store_dwordx4 v[8:11], v13, s[4:7], s22 offen''')
    for q in range(per2 // 4096):
        e(f'buffer_store_dwordx4 v[8:11], v12, s[4:7], s23 offen\ns_add_u32 s23, s23, 4096')
    Lnv = k.label('novote'); Lnl = k.label('notlast')
    e(f'''s_cmp_lg_u32 s16, 3
    s_cbranch_scc1 {Lnv}
    s_load_dwordx2 s[24:25], s[0:1], 88
    s_getreg_b32 s26, hwreg(HW_REG_XCC_ID, 0, 3)
    s_lshr_b32 s22, s2, 4
    s_lshl_b32 s22, s22, 14
    s_and_b32 s23, s2, 15
    s_lshl_b32 s23, s23, 9
    s_add_u32 s22, s22, s23
    s_add_u32 s22, s22, {L.PROBE_OFF}
    s_add_u32 s22, s22, s21
    v_and_b32 v13, 63, v0
    v_and_b32 v14, 3, v13
    v_lshlrev_b32 v14, 7, v14
    v_lshrrev_b32 v15, 2, v13
    v_lshl_add_u32 v14, v15, 13, v14
    v_mov_b32 v16, {OOB:#x}
    v_cmp_gt_u32 vcc, 8, v13
    v_cndmask_b32 v14, v16, v14, vcc
    buffer_store_dword v8, v14, s[4:7], s22 offen sc1
    v_cmp_eq_u32 vcc, 0, v13
    v_mov_b32 v14, 0
    v_cndmask_b32 v14, v16, v14, vcc
    s_mov_b32 s27, 0
    s_mov_b32 s28, 0
    s_waitcnt vmcnt(0) lgkmcnt(0)''')
    for q in range(2):
        for par in range(2):
            e(f'''s_add_u32 s23, s22, {par*8192 + q*128}
            s_memtime s[18:19]
            s_waitcnt lgkmcnt(0)
            buffer_load_dword v15, v14, s[4:7], s23 offen sc1
            s_waitcnt vmcnt(0)
            s_memtime s[30:31]
            s_waitcnt lgkmcnt(0)
            s_sub_u32 s29, s30, s18
            s_add_u32 s{27+par}, s{27+par}, s29''')
    e(f'''s_cmp_lt_u32 s28, s27
    s_cselect_b32 s27, 1, 0
    s_lshr_b32 s26, s26, 2
    s_xor_b32 s27, s27, s26
    s_lshl_b32 s27, s27, 16
    s_add_u32 s27, s27, 1
    s_mov_b32 s8, s24
    s_mov_b32 s9, s25
    s_mov_b32 s10, 256
    s_mov_b32 s11, 0x20000
    v_mov_b32 v15, s27
    buffer_atomic_add v15, v14, s[8:11], 0 offen sc0
    s_waitcnt vmcnt(0)
    v_readfirstlane_b32 s28, v15
    s_add_u32 s28, s28, s27
    s_and_b32 s29, s28, 0xffff
    s_cmp_lg_u32 s29, 128
    s_cbranch_scc1 {Lnv}
    s_lshr_b32 s28, s28, 16
    s_cmp_gt_u32 s28, 64
    s_cselect_b32 s28, 1, 0
    v_mov_b32 v15, s28
    s_mov_b32 s23, {L.FLIP}
    buffer_store_dword v15, v14, s[4:7], s23 offen''')
    e(Lnv + ':')
    e(Lx + ':')
    e('s_endpgm')
    return k, 512
```

```python
from asmgen import *
import layout as L

OOB = 0x80000000
LDS_X = 0
XBUF = 40960
LDS_SIZE = 2 * XBUF

PLAN = [
    [('pair', 'k', 0), ('pair', 'k', 1), ('v', 0)],
    [('pair', 'k', 2), ('v', 1), ('v', 2), ('v', 3)],
    [('pair', 'q', 0), ('v', 4), ('v', 5)],
    [('pair', 'q', 1), ('pair', 'q', 2)],
]

def emit(k, sWS, sX, sC, sW, sTO, Lexit, nseg, LEAD, census_wait, sMODE, preread=1):
    e = k.e
    sH, sHalf, sS, sT0, sT1, sT2, sT3 = 15, 16, 17, 34, 35, 36, 37
    sXs, sOutK, sOutQ, sOutV, sFlag, sProg, sBuf = 20, 21, 22, 23, 24, 25, 26
    sNK, sNV = 27, 28
    vL16, vZ, vRd = 1, 4, 7
    vT0, vT1 = 28, 29
    vAcc = 32
    vXf = 72
    vPk = 8
    vScr = 16
    vW = 96
    srd = f's[{sWS}:{sWS+3}]'
    def wreg(slot, ks):
        if slot < 3: return f'a[{slot*80+4*ks}:{slot*80+4*ks+3}]'
        b = vW + (slot - 3) * 80 + 4 * ks
        return f'v[{b}:{b+3}]'
    e(f'''s_sub_u32 s{sT0}, s{sC}, 24
    s_lshr_b32 s{sT1}, s{sT0}, 1
    s_and_b32 s{sHalf}, s{sT0}, 1
    s_lshl_b32 s{sH}, s{sX}, 2
    s_add_u32 s{sH}, s{sH}, s{sT1}
    s_lshl_b32 s{sFlag}, s{sX}, 3
    s_add_u32 s{sFlag}, s{sFlag}, s{sT0}
    s_lshl_b32 s{sFlag}, s{sFlag}, 7
    s_add_u32 s{sFlag}, s{sFlag}, {L.PROG2}
    s_lshl_b32 s{sProg}, s{sX}, 7
    s_add_u32 s{sProg}, s{sProg}, {L.PROG}
    v_and_b32 v{vT0}, 63, v0
    v_lshlrev_b32 v{vL16}, 4, v{vT0}
    v_mov_b32 v{vT1}, {OOB:#x}
    v_cmp_eq_u32 vcc, 0, v{vT0}
    v_mov_b32 v{vZ}, 0
    v_cndmask_b32 v{vZ}, v{vT1}, v{vZ}, vcc''')
    Lw = [k.label('pw%d_' % w) for w in range(4)]
    for w in range(3):
        e(f's_cmp_eq_u32 s{sW}, {w}\ns_cbranch_scc1 {Lw[w]}')
    e(f's_branch {Lw[3]}')

    def dma(w, sSeg, bufreg):
        e(f'''s_mul_i32 s{sXs}, s{sSeg}, {XBUF}
        s_add_u32 s{sXs}, s{sXs}, {L.XNF + w*10240}''')
        for grp in range(3):
            e(f's_add_u32 m0, s{bufreg}, {LDS_X + w*10240 + grp*4096}')
            e('s_nop 0')
            for q in range(4 if grp < 2 else 2):
                e(f'buffer_load_dwordx4 v{vL16}, {srd}, s{sXs} offen offset:{q*1024} lds')
            if grp < 2: e(f's_add_u32 s{sXs}, s{sXs}, 4096')
    def out_offsets(sSeg, dK, dQ, dV):
        e(f'''s_lshl_b32 s{sT0}, s{sH}, 6
        s_add_u32 s{sT0}, s{sT0}, s{sSeg}
        s_mul_i32 s{sT0}, s{sT0}, 12288
        s_mul_i32 s{sT1}, s{sHalf}, 3072
        s_add_u32 s{sT1}, s{sT1}, s{sT0}
        s_add_u32 s{dK}, s{sT1}, {L.KT}''')
        if dQ is not None: e(f's_add_u32 s{dQ}, s{sT1}, {L.QT}')
        e(f'''s_mul_i32 s{sT1}, s{sHalf}, 6144
        s_add_u32 s{sT1}, s{sT1}, s{sT0}
        s_add_u32 s{dV}, s{sT1}, {L.VT}''')
    def preread_blocks(plan, dK, dV):
        for u in plan:
            if u[0] == 'pair' and u[1] == 'k':
                for T in range(2):
                    e(f's_add_u32 s{sT0}, s{dK}, {T*6144 + u[2]*1024}')
                    e(f'buffer_load_dwordx4 v[{vScr}:{vScr+3}], v{vL16}, {srd}, s{sT0} offen sc1')
            elif u[0] == 'v':
                e(f's_add_u32 s{sT0}, s{dV}, {u[1]*1024}')
                e(f'buffer_load_dwordx4 v[{vScr}:{vScr+3}], v{vL16}, {srd}, s{sT0} offen sc1')

    for w in range(4):
        plan = PLAN[w]
        slots = []
        for u in plan:
            if u[0] == 'pair': slots += [(u[1], 2 * u[2]), (u[1], 2 * u[2] + 1)]
            else: slots.append(('v', u[1]))
        nst = sum(2 if u[0] == 'pair' else 1 for u in plan)
        e(Lw[w] + ':')
        e(f's_mov_b32 s{sS}, 0\ns_mov_b32 s{sBuf}, 0')
        dma(w, sS, sBuf)
        if preread:
            out_offsets(sS, sNK, None, sNV); preread_blocks(plan, sNK, sNV)
        nld = 0
        for si, (mat, etl) in enumerate(slots):
            base = {'q': L.WQP, 'k': L.WKP, 'v': L.WVP}[mat]
            e(f'''s_mul_i32 s{sT0}, s{sH}, 12
            s_mul_i32 s{sT1}, s{sHalf}, 6
            s_add_u32 s{sT0}, s{sT0}, s{sT1}
            s_add_u32 s{sT0}, s{sT0}, {etl}
            s_mul_i32 s{sT0}, s{sT0}, 20480
            s_add_u32 s{sT0}, s{sT0}, {base}''')
            for ks in range(20):
                if ks and ks % 4 == 0: e(f's_add_u32 s{sT0}, s{sT0}, 4096')
                e(f'buffer_load_dwordx4 {wreg(si, ks)}, v{vL16}, {srd}, s{sT0} offen offset:{(ks%4)*1024}')
                nld += 1
                if nld % 20 == 0 and nld >= 40: e('s_waitcnt vmcnt(20)')
        census_wait()
        Lsl = k.label('pslow')
        e(f's_cmp_lg_u32 s{sMODE}, 0\ns_cbranch_scc1 {Lsl}')
        for SF in ('', 'sc1'):
            if SF: e(Lsl + ':')
            Ltop = k.label('ptop'); Lgo = k.label('pgo'); Lpl = k.label('ppoll'); Lnd = k.label('pnodma'); Lnf = k.label('pnofl')
            e(Ltop + ':')
            e(f'''s_cmp_lt_u32 s{sS}, {LEAD}
            s_cbranch_scc1 {Lgo}
            s_sub_u32 s{sT2}, s{sS}, {LEAD}''')
            e(Lpl + ':')
            e(f'''buffer_load_dword v{vT0}, v{vZ}, {srd}, s{sProg} offen sc1
            s_waitcnt vmcnt(0)
            v_readfirstlane_b32 s{sT0}, v{vT0}
            s_cmp_ge_i32 s{sT0}, s{sT2}
            s_cbranch_scc1 {Lgo}
            s_sleep 8
            s_sub_u32 s{sTO}, s{sTO}, 1
            s_cbranch_scc0 {Lpl}
            s_mov_b32 s{sTO}, 0''')
            e(Lgo + ':')
            e(f'''s_waitcnt vmcnt(0)
            s_barrier
            v_add_u32 v{vRd}, s{sBuf}, v{vL16}
            s_xor_b32 s{sBuf}, s{sBuf}, {XBUF}
            s_add_u32 s{sT3}, s{sS}, 1
            s_cmp_ge_u32 s{sT3}, {nseg}
            s_cbranch_scc1 {Lnd}''')
            dma(w, sT3, sBuf)
            if preread:
                out_offsets(sT3, sNK, None, sNV); preread_blocks(plan, sNK, sNV)
            e(Lnd + ':')
            out_offsets(sS, sOutK, sOutQ, sOutV)
            def xr(ks, T):
                b = vXf + (ks % 3) * 8 + T * 4
                return f'v[{b}:{b+3}]'
            def rd(ks):
                for T in range(2):
                    e(f'ds_read_b128 {xr(ks, T)}, v{vRd} offset:{LDS_X + (T*20+ks)*1024}')
            rd(0); rd(1)
            for ks in range(20):
                if ks + 2 < 20:
                    rd(ks + 2); e('s_waitcnt lgkmcnt(4)')
                elif ks + 1 < 20: e('s_waitcnt lgkmcnt(2)')
                else: e('s_waitcnt lgkmcnt(0)')
                for si, (mat, etl) in enumerate(slots):
                    for T in range(2):
                        acc = f'v[{vAcc+8*si+4*T}:{vAcc+8*si+4*T+3}]'
                        c = '0' if ks == 0 else acc
                        if mat == 'v': e(f'v_mfma_f32_16x16x32_bf16 {acc}, {xr(ks, T)}, {wreg(si, ks)}, {c}')
                        else: e(f'v_mfma_f32_16x16x32_bf16 {acc}, {wreg(si, ks)}, {xr(ks, T)}, {c}')
            si = 0; pk = 0
            for u in plan:
                if u[0] == 'pair':
                    so = sOutK if u[1] == 'k' else sOutQ
                    for T in range(2):
                        a0 = vAcc + 8 * si + 4 * T; a1 = a0 + 8
                        p = vPk + 4 * (pk % 2); pk += 1
                        e(f'''v_cvt_pk_bf16_f32 v{p}, v{a0}, v{a0+1}
                        v_cvt_pk_bf16_f32 v{p+1}, v{a0+2}, v{a0+3}
                        v_cvt_pk_bf16_f32 v{p+2}, v{a1}, v{a1+1}
                        v_cvt_pk_bf16_f32 v{p+3}, v{a1+2}, v{a1+3}
                        s_add_u32 s{sT0}, s{so}, {T * 6144 + u[2] * 1024}
                        buffer_store_dwordx4 v[{p}:{p+3}], v{vL16}, {srd}, s{sT0} offen {SF if u[1] == 'k' else ''}''')
                    si += 2
                else:
                    a0 = vAcc + 8 * si; a1 = a0 + 4
                    p = vPk + 4 * (pk % 2); pk += 1
                    e(f'''v_cvt_pk_bf16_f32 v{p}, v{a0}, v{a0+1}
                    v_cvt_pk_bf16_f32 v{p+1}, v{a0+2}, v{a0+3}
                    v_cvt_pk_bf16_f32 v{p+2}, v{a1}, v{a1+1}
                    v_cvt_pk_bf16_f32 v{p+3}, v{a1+2}, v{a1+3}
                    s_add_u32 s{sT0}, s{sOutV}, {u[1]*1024}
                    buffer_store_dwordx4 v[{p}:{p+3}], v{vL16}, {srd}, s{sT0} offen {SF}''')
                    si += 1
            e(f'''s_waitcnt vmcnt(0)
            s_barrier
            s_add_u32 s{sS}, s{sS}, 1''')
            if w == 0:
                e(f'''v_mov_b32 v{vT0}, s{sS}
                buffer_store_dword v{vT0}, v{vZ}, {srd}, s{sFlag} offen {SF}''')
            e(f'''s_cmp_lt_u32 s{sS}, {nseg}
            s_cbranch_scc1 {Ltop}
            s_branch {Lexit}''')
    return LDS_SIZE
```

```python
import math, struct
from asmgen import *
import layout as L
import proj

OOB = 0x80000000
STAMPI = 's_memtime'
sWS, sAUX = 4, 8
sW, sX, sC, sH, sJ, sS, sTO, sKH = 12, 13, 14, 15, 16, 17, 18, 19
sA, sB, sO_, sE, sPp = 20, 21, 22, 24, 25
sA2, sB2, sO2, sP2 = 26, 27, 28, 29
sKM, sVM, sKT, sVT = 30, 31, 32, 33
sT0, sT1, sT2, sT3 = 34, 35, 36, 37
sMEMBx, sQKh, sOBx = 38, 39, 40
sCexp, sXCC, sMODE = 41, 42, 43
sSTB = 46
sPTR = 48
sMASK = 54
sPARTB, sNEAR = 56, 57
LDS_MEM, LDS_VP, LDS_KV, KVSZ = 0, 10240, 16384, 14336
LDS_SIZE = LDS_KV + 2 * KVSZ

def gen(name='reca_kernel', stamps=False, nsteps=64, D1=1, D2=3, D3=8, D4=2, PLEAD=6, TL=None, FORCE_SLOW=0, PROJ=1, PREREAD=1):
    k = Kernel(name, vgpr=256, agpr=256)
    e = k.e
    WS = f's[{sWS}:{sWS+3}]'
    vL16, vL16b, vL16c = 1, 2, 3
    vMld, vMld2, vMrdA, vMrdB = 4, 5, 6, 7
    vXst, vKMst, vVMst, vOst = 8, 9, 10, 11
    vOld, vOldb, vOldc = 12, 13, 14
    vPst, vMst, vVP, vKVrd, vZ = 15, 16, 17, 18, 19
    vPld = 20
    vT0, vT1, vT2, vT3 = 28, 29, 30, 31
    vNEG1, vONES, vCM = 32, 36, 40
    vACC, vACV, vQK = 44, 48, 52
    vVPr, vVMf, vS, vP = 56, 68, 72, 84
    vO, vLs, vOp = 92, 100, 104
    vD1, vD2, vR = 108, 112, 116
    MEMR = 128
    vH3 = MEMR; vKT = MEMR; vVT = MEMR + 48; vG2 = MEMR
    vX = 208
    vPst2, vFl = 232, 233
    aW1, aWV, aW2 = 0, 80, 120
    NST = 14
    def R(b, n=4): return f'v[{b}:{b+n-1}]'

    def stamp(idx, wait=False):
        if not stamps: return
        e(f'{STAMPI} s[{64+2*idx}:{65+2*idx}]')
        if wait: e('s_waitcnt lgkmcnt(0)')
    def stamp_flush():
        if not stamps: return
        e('s_waitcnt lgkmcnt(0)')
        for i in range(NST): e(f'v_writelane_b32 v{vT0}, s{64+2*i}, {i}')
        e(f'''v_and_b32 v{vT1}, 63, v0
        v_lshlrev_b32 v{vT1}, 2, v{vT1}
        v_mov_b32 v{vT2}, {OOB:#x}
        v_cmp_gt_u32 vcc, {NST*4}, v{vT1}
        v_cndmask_b32 v{vT1}, v{vT2}, v{vT1}, vcc
        s_lshl_b32 s{sT3}, s{sS}, 8
        s_add_u32 s{sT3}, s{sT3}, s{sSTB}
        buffer_store_dword v{vT0}, v{vT1}, {WS}, s{sT3} offen''')
        for i in range(NST): e(f's_mov_b32 s{64+2*i}, 0')
    def tl(i):
        if TL is None: return
        e(f's_memrealtime s[{92+2*i}:{93+2*i}]')
        if i >= 2: e(f's_memtime s[{84+2*(i-2)}:{85+2*(i-2)}]')
        if i == 0: e('s_mov_b32 s91, s2\ns_mov_b32 s94, 0\ns_mov_b32 s96, 0')
        e('s_waitcnt lgkmcnt(0)')

    Lexit = k.label('exit'); Lproj = k.label('proj'); Lexit2 = k.label('exitb')
    e(f'''s_cmp_ge_u32 s2, 256
    s_cbranch_scc1 {Lexit2}
    s_load_dwordx2 s[{sPTR}:{sPTR+1}], s[0:1], 96
    s_load_dwordx2 s[{sPTR+2}:{sPTR+3}], s[0:1], 88
    s_load_dwordx2 s[{sPTR+4}:{sPTR+5}], s[0:1], 8''')
    tl(0)
    e(f'''s_getreg_b32 s{sXCC}, hwreg(HW_REG_XCC_ID, 0, 3)
    v_lshrrev_b32 v{vT0}, 6, v0
    v_and_b32 v{vT1}, 63, v0
    s_and_b32 s{sX}, s2, 7
    v_readfirstlane_b32 s{sW}, v{vT0}
    v_lshlrev_b32 v{vL16}, 4, v{vT1}
    s_lshr_b32 s{sC}, s2, 3
    s_mov_b32 s{sTO}, 0x100000
    s_waitcnt lgkmcnt(0)
    s_mov_b32 s{sT0}, {L.FLIP}
    s_load_dword s{sNEAR}, s[{sPTR}:{sPTR+1}], s{sT0}
    s_mov_b32 s{sWS}, s{sPTR}
    s_mov_b32 s{sWS+1}, s{sPTR+1}
    s_mov_b32 s{sWS+2}, 0x10000000
    s_mov_b32 s{sWS+3}, 0x20000
    s_mov_b32 s{sAUX}, s{sPTR+2}
    s_mov_b32 s{sAUX+1}, s{sPTR+3}
    s_mov_b32 s{sAUX+2}, 256
    s_mov_b32 s{sAUX+3}, 0x20000
    v_add_u32 v{vL16b}, 0x1000, v{vL16}
    v_add_u32 v{vL16c}, 0x2000, v{vL16}
    v_mov_b32 v{vT3}, {OOB:#x}''')
    e(f'''s_lshl_b32 s{sT0}, s{sXCC}, 3
    s_lshl_b64 s[{sT2}:{sT2+1}], 1, s{sT0}
    s_lshl_b32 s{sT0}, s{sX}, 3
    v_cmp_eq_u32 vcc, 0, v0
    v_mov_b32 v{vT2}, s{sT0}
    v_cndmask_b32 v{vT2}, v{vT3}, v{vT2}, vcc
    v_mov_b32 v{vACC}, s{sT2}
    v_mov_b32 v{vACC+1}, s{sT2+1}
    buffer_atomic_add_x2 v[{vACC}:{vACC+1}], v{vT2}, s[{sAUX}:{sAUX+3}], 0 offen
    s_sub_u32 s{sPARTB}, 0, s{sPTR}
    s_and_b32 s{sPARTB}, s{sPARTB}, 0x1fffff
    s_add_u32 s{sPARTB}, s{sPARTB}, {L.PARTR}
    s_waitcnt lgkmcnt(0)
    s_and_b32 s{sNEAR}, s{sNEAR}, 1
    s_lshr_b32 s{sT0}, s{sXCC}, 2
    s_xor_b32 s{sNEAR}, s{sNEAR}, s{sT0}''')
    def census_wait():
        Lp = k.label('cens'); Lo = k.label('censok')
        e(f'''s_lshl_b32 s{sT0}, s{sX}, 3
        v_mov_b32 v{vT2}, s{sT0}''')
        e(Lp + ':')
        e(f'''buffer_load_dwordx2 v[{vT0}:{vT0+1}], v{vT2}, s[{sAUX}:{sAUX+3}], 0 offen sc1
        s_waitcnt vmcnt(0)
        v_readfirstlane_b32 s{sT1}, v{vT0}
        v_readfirstlane_b32 s{sT2}, v{vT1}
        v_sad_u8 v{vT0}, v{vT0}, 0, 0
        v_sad_u8 v{vT0}, v{vT1}, 0, v{vT0}
        v_readfirstlane_b32 s{sT0}, v{vT0}
        s_cmp_ge_u32 s{sT0}, 32
        s_cbranch_scc1 {Lo}
        s_sleep 8
        s_sub_u32 s{sTO}, s{sTO}, 1
        s_cbranch_scc0 {Lp}
        s_mov_b32 s{sTO}, 0''')
        e(Lo + ':')
        e(f'''s_lshl_b32 s{sT0}, s{sXCC}, 3
        s_mov_b32 s{sT3}, s{sT2}
        s_mov_b32 s{sT2}, s{sT1}
        s_lshr_b64 s[{sT2}:{sT2+1}], s[{sT2}:{sT2+1}], s{sT0}
        s_and_b32 s{sT2}, s{sT2}, 0xff
        s_cmp_eq_u32 s{sT2}, 32
        s_cselect_b32 s{sMODE}, 0, 1''')
        if FORCE_SLOW: e(f's_mov_b32 s{sMODE}, 1')
    e(f's_cmp_ge_u32 s{sC}, 24\ns_cbranch_scc1 {Lproj}')
    tl(1)
    e(f'''s_mul_i32 s{sT0}, s{sC}, 43
    s_lshr_b32 s{sT0}, s{sT0}, 8
    s_mul_i32 s{sT1}, s{sT0}, 6
    s_sub_u32 s{sJ}, s{sC}, s{sT1}
    s_lshl_b32 s{sH}, s{sX}, 2
    s_add_u32 s{sH}, s{sH}, s{sT0}
    s_lshr_b32 s{sKH}, s{sW}, 1''')
    e(f'''s_and_b32 s{sT3}, s{sW}, 1
    s_mul_i32 s{sT0}, s{sH}, 12
    s_lshl_b32 s{sT1}, s{sJ}, 1
    s_add_u32 s{sT0}, s{sT0}, s{sT1}
    s_add_u32 s{sT0}, s{sT0}, s{sT3}
    s_mul_i32 s{sT0}, s{sT0}, 20480
    s_mov_b32 s{sT1}, {L.WKP}
    s_cmp_eq_u32 s{sKH}, 0
    s_cselect_b32 s{sT1}, {L.WQP}, s{sT1}
    s_add_u32 s{sT1}, s{sT1}, s{sT0}
    s_mul_i32 s{sT2}, s{sKH}, 10240
    s_add_u32 s{sA}, s{sT1}, s{sT2}
    s_sub_u32 s{sT2}, 10240, s{sT2}
    s_add_u32 s{sB}, s{sT1}, s{sT2}
    s_add_u32 s{sO_}, s{sT0}, {L.WVP}
    s_mul_i32 s{sT2}, s{sKH}, 10240
    s_add_u32 s{sO_}, s{sO_}, s{sT2}''')
    vLs_ = [vL16, vL16b, vL16c]
    for b in range(20):
        bb = b % 10
        e(f'buffer_load_dwordx4 a[{aW1+4*b}:{aW1+4*b+3}], v{vLs_[bb//4]}, {WS}, s{sA if b < 10 else sB} offen offset:{(bb%4)*1024}')
    for b in range(10):
        e(f'buffer_load_dwordx4 a[{aWV+4*b}:{aWV+4*b+3}], v{vLs_[b//4]}, {WS}, s{sO_} offen offset:{(b%4)*1024}')
    Lnw2 = k.label('now2')
    e(f'''s_cmp_ge_u32 s{sC}, 20
    s_cbranch_scc1 {Lnw2}
    s_cmp_ge_u32 s{sW}, 2
    s_cbranch_scc1 {Lnw2}
    s_lshl_b32 s{sT0}, s{sC}, 1
    s_add_u32 s{sT0}, s{sT0}, s{sW}
    s_mul_i32 s{sT0}, s{sT0}, 192
    s_mul_i32 s{sT1}, s{sX}, 24
    s_add_u32 s{sT0}, s{sT0}, s{sT1}
    s_lshl_b32 s{sT0}, s{sT0}, 10
    s_add_u32 s{sT0}, s{sT0}, {L.WOP}''')
    for kk in range(24):
        if kk and kk % 12 == 0: e(f's_add_u32 s{sT0}, s{sT0}, 12288')
        q = kk % 12
        e(f'buffer_load_dwordx4 a[{aW2+4*kk}:{aW2+4*kk+3}], v{vLs_[q//4]}, {WS}, s{sT0} offen offset:{(q%4)*1024}')
    e(Lnw2 + ':')
    i16, g, lane = vT0, vT2, vT1
    t, u, a_ = vACC, vACC + 1, vACC + 2
    MK = f's[{sMASK}:{sMASK+1}]'
    e(f'''v_and_b32 v{lane}, 63, v0
    v_and_b32 v{i16}, 15, v{lane}
    v_lshrrev_b32 v{g}, 4, v{lane}
    v_mov_b32 v{vNEG1}, -1
    v_mov_b32 v{vNEG1+1}, -1
    v_mov_b32 v{vNEG1+2}, -1
    v_mov_b32 v{vNEG1+3}, -1
    s_mul_i32 s{sT0}, s{sW}, 2560
    v_add_u32 v{vMld}, s{sT0}, v{vL16}
    v_and_b32 v{t}, 31, v{lane}
    v_lshlrev_b32 v{t}, 4, v{t}
    s_add_u32 s{sT0}, s{sT0}, 2048
    v_add_u32 v{vMld2}, s{sT0}, v{t}
    v_and_b32 v{t}, 7, v{lane}
    v_lshlrev_b32 v{t}, 4, v{t}
    v_lshl_add_u32 v{t}, v{g}, 7, v{t}
    s_mul_i32 s{sT0}, s{sKH}, 5120
    v_add_u32 v{vMrdA}, s{sT0}, v{t}
    s_sub_u32 s{sT0}, 5120, s{sT0}
    v_add_u32 v{vMrdB}, s{sT0}, v{t}
    v_lshrrev_b32 v{u}, 3, v{i16}
    v_lshl_add_u32 v{vOld}, v{u}, 9, v{t}
    v_add_u32 v{vOldb}, 0x1000, v{vOld}
    v_add_u32 v{vOldc}, 0x2000, v{vOld}
    v_cmp_gt_u32 {MK}, 8, v{i16}
    s_lshl_b32 s{sT0}, s{sJ}, 10
    s_lshl_b32 s{sT1}, s{sKH}, 7
    s_add_u32 s{sT0}, s{sT0}, s{sT1}
    s_and_b32 s{sT1}, s{sW}, 1
    s_lshl_b32 s{sT2}, s{sT1}, 3
    s_add_u32 s{sT0}, s{sT0}, s{sT2}
    v_lshlrev_b32 v{t}, 4, v{i16}
    v_lshl_add_u32 v{u}, v{g}, 8, v{t}
    v_add_u32 v{u}, s{sT0}, v{u}
    v_cndmask_b32 v{vXst}, v{vT3}, v{u}, {MK}
    v_lshl_add_u32 v{t}, v{g}, 7, v{t}
    v_add_u32 v{u}, s{sT2}, v{t}
    v_cndmask_b32 v{vKMst}, v{vT3}, v{u}, {MK}
    s_lshl_b32 s{sT0}, s{sC}, 9
    v_add_u32 v{u}, s{sT0}, v{t}
    v_cndmask_b32 v{vOst}, v{vT3}, v{u}, {MK}
    s_mul_i32 s{sT0}, s{sX}, 49152
    s_lshr_b32 s{sT1}, s{sC}, 3
    s_lshl_b32 s{sT1}, s{sT1}, 14
    s_add_u32 s{sT0}, s{sT0}, s{sT1}
    s_and_b32 s{sT1}, s{sC}, 7
    s_lshl_b32 s{sT1}, s{sT1}, 10
    s_add_u32 s{sT0}, s{sT0}, s{sT1}
    s_lshl_b32 s{sT1}, s{sW}, 9
    s_add_u32 s{sT0}, s{sT0}, s{sT1}
    v_add_u32 v{u}, s{sT0}, v{t}
    v_cndmask_b32 v{vPst}, v{vT3}, v{u}, {MK}
    s_cmp_lt_u32 s{sC}, 20
    s_cselect_b32 s{sT0}, 0, {OOB:#x}
    v_or_b32 v{vPst}, s{sT0}, v{vPst}
    v_add_u32 v{vPst2}, 0x2000, v{vPst}
    v_lshlrev_b32 v{u}, 3, v{lane}
    v_cmp_gt_u32 vcc, 32, v{lane}
    v_cndmask_b32 v{vVMst}, v{vT3}, v{u}, vcc
    s_sub_u32 s{sT1}, s{sC}, 4
    s_cmp_lt_u32 s{sC}, 20
    s_cselect_b32 s{sT0}, s{sC}, s{sT1}
    s_lshr_b32 s{sT1}, s{sT0}, 3
    s_lshl_b32 s{sT1}, s{sT1}, 14
    s_and_b32 s{sT0}, s{sT0}, 7
    s_lshl_b32 s{sT0}, s{sT0}, 10
    s_add_u32 s{sT0}, s{sT0}, s{sT1}
    s_lshl_b32 s{sT1}, s{sNEAR}, 13
    s_add_u32 s{sT0}, s{sT0}, s{sT1}
    v_add_u32 v{vPld}, s{sT0}, v{vL16}''')
    for xx in range(1, 8): e(f'v_add_u32 v{vPld+xx}, {xx*49152}, v{vPld}')
    e(f'''v_lshrrev_b32 v{t}, 3, v{lane}
    v_and_b32 v{t}, 3, v{t}
    v_lshlrev_b32 v{t}, 7, v{t}
    v_and_b32 v{u}, 7, v{lane}
    v_lshl_add_u32 v{t}, v{u}, 4, v{t}
    v_lshrrev_b32 v{u}, 5, v{lane}
    v_lshl_add_u32 v{t}, v{u}, 3, v{t}
    s_lshl_b32 s{sT0}, s{sC}, 9
    s_cmp_lt_u32 s{sC}, 20
    s_cselect_b32 s{sT0}, s{sT0}, {OOB:#x}
    v_add_u32 v{vMst}, s{sT0}, v{t}
    v_cmp_eq_u32 vcc, 0, v{lane}
    v_mov_b32 v{u}, 0
    v_cndmask_b32 v{vZ}, v{vT3}, v{u}, vcc
    s_lshl_b32 s{sT0}, s{sH}, 8
    s_add_u32 s{sT0}, s{sT0}, {L.PROG2}
    v_and_b32 v{u}, 1, v{lane}
    v_lshlrev_b32 v{u}, 7, v{u}
    v_add_u32 v{vFl}, s{sT0}, v{u}
    s_lshl_b32 s{sT0}, s{sW}, 10
    s_add_u32 s{sT0}, s{sT0}, {LDS_VP}
    v_add_u32 v{vVP}, s{sT0}, v{vL16}
    v_mov_b32 v{vONES}, 0x3f803f80
    v_mov_b32 v{vONES+1}, 0x3f803f80
    v_mov_b32 v{vONES+2}, 0x3f803f80
    v_mov_b32 v{vONES+3}, 0x3f803f80
    v_mov_b32 v{t}, 0xf149f2ca
    v_cmp_gt_u32 vcc, 2, v{g}
    v_cndmask_b32 v{vCM}, 0, v{t}, vcc
    v_mov_b32 v{vCM+1}, v{vCM}
    v_mov_b32 v{vCM+2}, v{vCM}
    v_mov_b32 v{vCM+3}, v{vCM}''')
    cexp = (192 ** -0.5) * math.log2(math.e)
    cbits = struct.unpack('<I', struct.pack('<f', cexp))[0]
    e(f'''s_mov_b32 s{sCexp}, {cbits:#x}
    s_mul_i32 s{sMEMBx}, s{sX}, 40960
    s_add_u32 s{sMEMBx}, s{sMEMBx}, {L.MEMB}
    s_mul_i32 s{sQKh}, s{sH}, 24576
    s_add_u32 s{sQKh}, s{sQKh}, {L.QK}
    s_mul_i32 s{sOBx}, s{sX}, 49152
    s_add_u32 s{sOBx}, s{sOBx}, {L.OB}''')
    if stamps:
        e(f'''s_lshl_b32 s{sT0}, s{sC}, 2
        s_add_u32 s{sT0}, s{sT0}, s{sW}
        s_lshl_b32 s{sT0}, s{sT0}, 14
        s_add_u32 s{sSTB}, s{sT0}, {L.STAMP}
        s_cmp_eq_u32 s{sX}, 0
        s_cselect_b32 s{sSTB}, s{sSTB}, 0x7f000000
        s_cmp_lt_u32 s{sC}, 16
        s_cselect_b32 s{sSTB}, s{sSTB}, 0x7f000000''')
        for i in range(NST): e(f's_mov_b32 s{64+2*i}, 0')
    e(f'''s_mov_b32 s60, s{sPTR+4}
    s_mov_b32 s61, s{sPTR+5}
    s_mov_b32 s62, 10240
    s_mov_b32 s63, 0x20000
    v_and_b32 v{lane}, 63, v0
    v_and_b32 v{t}, 7, v{lane}
    v_mul_u32_u24 v{t}, 1280, v{t}
    v_lshrrev_b32 v{u}, 3, v{lane}
    v_and_b32 v{u}, 3, v{u}
    v_lshl_add_u32 v{t}, v{u}, 4, v{t}
    s_mul_i32 s{sT0}, s{sW}, 320
    v_add_u32 v{t}, s{sT0}, v{t}
    v_add_u32 v{a_}, 256, v{t}
    v_lshrrev_b32 v{u}, 5, v{lane}
    v_lshl_add_u32 v{t}, v{u}, 6, v{t}
    buffer_load_dwordx4 {R(MEMR)}, v{t}, s[60:63], 0 offen
    buffer_load_dwordx4 {R(MEMR+4)}, v{t}, s[60:63], 0 offen offset:128
    buffer_load_dwordx4 {R(MEMR+8)}, v{a_}, s[60:63], 0 offen''')
    census_wait()
    if stamps:
        for i in range(NST): e(f's_mov_b32 s{64+2*i}, 0')

    def prefetch(seg):
        if PROJ:
            Lf = k.label('pf'); Lfo = k.label('pfok')
            e(f's_add_u32 s{sT3}, s{seg}, 1')
            e(Lf + ':')
            e(f'''buffer_load_dword v{vT0}, v{vFl}, {WS}, 0 offen sc1
            s_waitcnt vmcnt(0)
            v_cmp_gt_i32 vcc, s{sT3}, v{vT0}
            s_cbranch_vccz {Lfo}
            s_sleep 1
            s_sub_u32 s{sTO}, s{sTO}, 1
            s_cbranch_scc0 {Lf}
            s_mov_b32 s{sTO}, 0''')
            e(Lfo + ':')
        e(f'''s_lshl_b32 s{sT0}, s{sH}, 6
        s_add_u32 s{sT0}, s{sT0}, s{seg}
        s_mul_i32 s{sT0}, s{sT0}, 12288
        s_add_u32 s{sKT}, s{sT0}, {L.KT}
        s_lshl_b32 s{sT1}, s{sJ}, 11
        s_add_u32 s{sT0}, s{sT0}, s{sT1}
        s_add_u32 s{sVT}, s{sT0}, {L.VT}
        s_and_b32 s{sT1}, s{seg}, 1
        s_mul_i32 s{sT1}, s{sT1}, {KVSZ}
        s_add_u32 s{sT1}, s{sT1}, {LDS_KV}''')
        for grp in range(3):
            e(f's_add_u32 m0, s{sT1}, {grp*4096}\ns_nop 0')
            for q in range(4):
                e(f'buffer_load_dwordx4 v{vL16}, {WS}, s{sKT} offen offset:{q*1024} sc1 lds')
            if grp < 2: e(f's_add_u32 s{sKT}, s{sKT}, 4096')
        e(f's_add_u32 m0, s{sT1}, 12288\ns_nop 0')
        for q in range(2):
            e(f'buffer_load_dwordx4 v{vL16}, {WS}, s{sVT} offen offset:{q*1024} sc1 lds')

    e(f's_mov_b32 s{sS}, 0')
    Lnp = k.label('nopf0')
    e(f's_cmp_lg_u32 s{sW}, 2\ns_cbranch_scc1 {Lnp}')
    prefetch(sS)
    e('s_waitcnt vmcnt(0)')
    e(Lnp + ':')
    tl(2)
    Lslow = k.label('slow')
    e(f's_cmp_lg_u32 s{sMODE}, 0\ns_cbranch_scc1 {Lslow}')

    def loop(SF):
        ool = []
        def prog(n, load, chk, consume, cnt=None):
            for i in range(n + 1):
                if i < n:
                    e(f's_waitcnt vmcnt({n - 1 - i})')
                    r = chk(i)
                    if len(r) == 1: e(f'v_cmp_eq_u32 vcc, -1, v{r[0]}')
                    else: e(f'v_max_u32 v{vT1}, v{r[0]}, v{r[1]}\nv_cmp_eq_u32 vcc, -1, v{vT1}')
                if i > 0: consume(i - 1)
                if i < n:
                    Lr = k.label('retry'); Lb = k.label('resume')
                    e(f's_cbranch_vccnz {Lr}')
                    e(Lb + ':')
                    blk = [Lr + ':']
                    if stamps and cnt is not None: blk.append(f's_add_u32 s{64+2*cnt}, s{64+2*cnt}, 1')
                    blk += [f's_sub_u32 s{sTO}, s{sTO}, 1', f's_cbranch_scc1 {Lr}_to'] + [load(q) for q in range(i, n)] + [f's_waitcnt vmcnt({n - 1 - i})']
                    if len(r) == 1: blk.append(f'v_cmp_eq_u32 vcc, -1, v{r[0]}')
                    else: blk += [f'v_max_u32 v{vT1}, v{r[0]}, v{r[1]}', f'v_cmp_eq_u32 vcc, -1, v{vT1}']
                    blk += [f's_cbranch_vccnz {Lr}', f's_branch {Lb}', Lr + '_to:', f's_mov_b32 s{sTO}, 0', 's_waitcnt vmcnt(0)', f's_branch {Lb}']
                    ool.append(blk)
        Ltop = k.label('step'); Lafter = k.label('gotmem'); Lafter2 = k.label('gotmem2')
        e(f's_branch {Lafter}')
        e(Ltop + ':')
        e(f'''s_and_b32 s{sT0}, s{sS}, 3
        s_mul_i32 s{sA}, s{sT0}, 10240
        s_add_u32 s{sA}, s{sA}, s{sMEMBx}''')
        if D4: e(f's_sleep {D4}')
        mld = [f'buffer_load_dwordx4 {R(MEMR)}, v{vMld}, {WS}, s{sA} offen sc1',
               f'buffer_load_dwordx4 {R(MEMR+4)}, v{vMld}, {WS}, s{sA} offen offset:1024 sc1',
               f'buffer_load_dwordx4 {R(MEMR+8)}, v{vMld2}, {WS}, s{sA} offen sc1']
        mwr = [f'ds_write_b128 v{vMld}, {R(MEMR)}', f'ds_write_b128 v{vMld}, {R(MEMR+4)} offset:1024', f'ds_write_b128 v{vMld2}, {R(MEMR+8)}']
        for x in mld: e(x)
        prog(3, lambda i: mld[i], lambda i: [MEMR+4*i, MEMR+4*i+2], lambda i: e(mwr[i]), cnt=13)
        e(f's_branch {Lafter2}')
        e(Lafter + ':')
        for x in mwr: e(x)
        e(Lafter2 + ':')
        stamp(0)
        e(f'''s_and_b32 s{sT0}, s{sS}, 3
        s_mul_i32 s{sB}, s{sT0}, 6144
        s_add_u32 s{sB}, s{sB}, s{sQKh}
        s_mul_i32 s{sO_}, s{sT0}, 12288
        s_add_u32 s{sO_}, s{sO_}, s{sOBx}
        s_mul_i32 s{sPp}, s{sT0}, 393216
        s_add_u32 s{sPp}, s{sPp}, s{sPARTB}
        s_add_u32 s{sT1}, s{sS}, 1
        s_and_b32 s{sT1}, s{sT1}, 3
        s_mul_i32 s{sE}, s{sT1}, 10240
        s_add_u32 s{sE}, s{sE}, s{sMEMBx}
        s_waitcnt lgkmcnt(0)
        s_barrier''')
        stamp(1, True)
        def memrd(b): return f'ds_read_b128 {R(MEMR+4*b)}, v{vMrdA if b < 10 else vMrdB} offset:{(b%10)*512}'
        NPRE = 12
        for b in range(NPRE): e(memrd(b))
        for b in range(20):
            nxt = b + NPRE
            if nxt < 20: e(memrd(nxt)); e(f's_waitcnt lgkmcnt({NPRE})')
            else: e(f's_waitcnt lgkmcnt({19-b})')
            c = '0' if b == 0 else R(vACC)
            e(f'v_mfma_f32_16x16x32_bf16 {R(vACC)}, a[{aW1+4*b}:{aW1+4*b+3}], {R(MEMR+4*b)}, {c}')
        e(f'v_mfma_f32_16x16x32_bf16 {R(vACV)}, {R(MEMR)}, a[{aWV}:{aWV+3}], 0')
        e(f'''s_lshl_b32 s{sT0}, s{sS}, 5
        s_add_u32 s{sT0}, s{sT0}, s{sH}
        s_mul_i32 s{sT0}, s{sT0}, 3072
        s_lshl_b32 s{sT1}, s{sJ}, 9
        s_add_u32 s{sT0}, s{sT0}, s{sT1}
        s_add_u32 s{sKM}, s{sT0}, {L.KM}
        s_add_u32 s{sVM}, s{sT0}, {L.VM}
        v_cvt_pk_bf16_f32 v{vQK}, v{vACC}, v{vACC+1}
        v_cvt_pk_bf16_f32 v{vQK+1}, v{vACC+2}, v{vACC+3}
        buffer_store_dwordx2 {R(vQK,2)}, v{vXst}, {WS}, s{sB} offen {SF}''')
        stamp(2)
        for b in range(1, 10):
            e(f'v_mfma_f32_16x16x32_bf16 {R(vACV)}, {R(MEMR+4*b)}, a[{aWV+4*b}:{aWV+4*b+3}], {R(vACV)}')
        LS = k.label('swave'); Lb2 = k.label('b2'); LSpre = k.label('spre'); Lnk = k.label('nokm')
        xloads = [f'buffer_load_dwordx4 {R(vX+4*i)}, v{[vL16, vL16b][i//4]}, {WS}, s{sB} offen offset:{(i%4)*1024} sc1' for i in range(6)]
        e(f'''s_cmp_eq_u32 s{sW}, 3
        s_cbranch_scc1 {LSpre}
        ds_write_b128 v{vVP}, {R(vACV)}
        s_cmp_lg_u32 s{sS}, {nsteps-1}
        s_cbranch_scc1 {Lnk}
        s_cmp_lg_u32 s{sW}, 2
        s_cbranch_scc1 {Lnk}
        buffer_store_dwordx2 {R(vQK,2)}, v{vKMst}, {WS}, s{sKM} offen''')
        e(Lnk + ':')
        e(f's_waitcnt lgkmcnt(0)\ns_branch {Lb2}')
        e(LSpre + ':')
        if D1: e(f's_sleep {D1}')
        for x in xloads: e(x)
        e(Lb2 + ':')
        e(f'''s_barrier
        s_add_u32 s{sT0}, s{sS}, 2
        s_and_b32 s{sT0}, s{sT0}, 3
        s_mul_i32 s{sA2}, s{sT0}, 10240
        s_add_u32 s{sA2}, s{sA2}, s{sMEMBx}
        s_mul_i32 s{sB2}, s{sT0}, 6144
        s_add_u32 s{sB2}, s{sB2}, s{sQKh}
        s_mul_i32 s{sO2}, s{sT0}, 12288
        s_add_u32 s{sO2}, s{sO2}, s{sOBx}
        s_mul_i32 s{sP2}, s{sT0}, 393216
        s_add_u32 s{sP2}, s{sP2}, s{sPARTB}''')
        Lb3 = k.label('b3'); Lb4 = k.label('b4'); Lb5 = k.label('b5'); Lnpg = k.label('noprog')
        e(f's_cmp_eq_u32 s{sW}, 3\ns_cbranch_scc1 {LS}')
        e(f'''s_cmp_eq_u32 s{sS}, {nsteps-1}
        s_cbranch_scc1 {Lexit}
        s_barrier
        buffer_store_dwordx2 {R(vNEG1,2)}, v{vXst}, {WS}, s{sB2} offen {SF}
        s_cmp_lg_u32 s{sW}, 2
        s_cbranch_scc1 {Lb3}
        buffer_store_dwordx2 {R(vQK,2)}, v{vKMst}, {WS}, s{sKM} offen
        buffer_store_dwordx2 {R(vNEG1,2)}, v{vMst}, {WS}, s{sA2} offen {SF}''')
        stamp_flush()
        e(f'''s_cmp_lg_u32 s{sC}, 0
        s_cbranch_scc1 {Lb3}
        v_mov_b32 v{vT0}, s{sS}
        s_lshl_b32 s{sT0}, s{sX}, 7
        s_add_u32 s{sT0}, s{sT0}, {L.PROG}
        buffer_store_dword v{vT0}, v{vZ}, {WS}, s{sT0} offen {SF}
        s_branch {Lb3}''')
        e(LS + ':')
        e(f'''s_and_b32 s{sT0}, s{sS}, 1
        s_mul_i32 s{sT0}, s{sT0}, {KVSZ}
        v_add_u32 v{vKVrd}, s{sT0}, v{vL16}
        ds_read_b128 {R(vVPr)}, v{vL16} offset:{LDS_VP}
        ds_read_b128 {R(vVPr+4)}, v{vL16} offset:{LDS_VP+1024}
        ds_read_b128 {R(vVPr+8)}, v{vL16} offset:{LDS_VP+2048}''')
        order = []
        for j in range(6): order += [j, 6 + j]
        for n, i in enumerate(order):
            e(f'ds_read_b128 {R(vKT+4*i)}, v{vKVrd} offset:{LDS_KV+i*1024}')
            if n == 10: e('s_waitcnt lgkmcnt(8)')
        for i in range(2): e(f'ds_read_b128 {R(vVT+4*i)}, v{vKVrd} offset:{LDS_KV+12288+i*1024}')
        for r in range(4):
            e(f'v_add_f32 v{vVPr+r}, v{vVPr+r}, v{vVPr+8+r}')
            e(f'v_add_f32 v{vVPr+4+r}, v{vVPr+4+r}, v{vACV+r}')
        Lvmst = k.label('vmst')
        e(f'''v_cvt_pk_bf16_f32 v{vVMf}, v{vVPr}, v{vVPr+1}
        v_cvt_pk_bf16_f32 v{vVMf+1}, v{vVPr+2}, v{vVPr+3}
        v_cvt_pk_bf16_f32 v{vVMf+2}, v{vVPr+4}, v{vVPr+5}
        v_cvt_pk_bf16_f32 v{vVMf+3}, v{vVPr+6}, v{vVPr+7}
        s_cmp_lg_u32 s{sS}, {nsteps-1}
        s_cbranch_scc1 {Lvmst}
        buffer_store_dwordx2 {R(vQK,2)}, v{vKMst}, {WS}, s{sKM} offen
        buffer_store_dwordx2 {R(vVMf,2)}, v{vVMst}, {WS}, s{sVM} offen
        buffer_store_dwordx2 {R(vVMf+2,2)}, v{vVMst}, {WS}, s{sVM} offen offset:256
        s_branch {Lexit}''')
        e(Lvmst + ':')
        e('s_waitcnt lgkmcnt(0)')
        SM, S0, S1 = vS, vS + 4, vS + 8
        def sc_consume(j):
            X = R(vX + 4 * j)
            e(f'v_mfma_f32_16x16x32_bf16 {R(SM)}, {X}, {X}, ' + (R(vCM) if j == 0 else R(SM)))
            e(f'v_mfma_f32_16x16x32_bf16 {R(S0)}, {R(vKT+4*j)}, {X}, ' + ('0' if j == 0 else R(S0)))
            e(f'v_mfma_f32_16x16x32_bf16 {R(S1)}, {R(vKT+24+4*j)}, {X}, ' + ('0' if j == 0 else R(S1)))
        prog(6, lambda j: xloads[j], lambda j: [vX+4*j, vX+4*j+2], sc_consume, cnt=10)
        e('s_barrier')
        stamp(4)
        e(f'''v_max3_f32 v{vT0}, v{SM}, v{SM+1}, v{SM+2}
        v_max3_f32 v{vT1}, v{S0}, v{S0+1}, v{S0+2}
        v_max3_f32 v{vT0}, v{vT0}, v{SM+3}, v{S0+3}
        v_max3_f32 v{vT1}, v{vT1}, v{S1}, v{S1+1}
        v_max3_f32 v{vT0}, v{vT0}, v{S1+2}, v{S1+3}
        v_max_f32 v{vT0}, v{vT0}, v{vT1}
        v_mov_b32 v{vT1}, v{vT0}
        v_permlane32_swap_b32 v{vT0}, v{vT1}
        v_max_f32 v{vT0}, v{vT0}, v{vT1}
        v_mov_b32 v{vT1}, v{vT0}
        v_permlane16_swap_b32 v{vT0}, v{vT1}
        v_max_f32 v{vT0}, v{vT0}, v{vT1}
        v_mul_f32 v{vT0}, s{sCexp}, v{vT0}''')
        for r in range(12): e(f'v_fma_f32 v{vS+r}, v{vS+r}, s{sCexp}, -v{vT0}')
        for r in range(12): e(f'v_exp_f32 v{vS+r}, v{vS+r}')
        e(f'''v_cvt_pk_bf16_f32 v{vP}, v{S0}, v{S0+1}
        v_cvt_pk_bf16_f32 v{vP+1}, v{S0+2}, v{S0+3}
        v_cvt_pk_bf16_f32 v{vP+2}, v{S1}, v{S1+1}
        v_cvt_pk_bf16_f32 v{vP+3}, v{S1+2}, v{S1+3}
        v_cvt_pk_bf16_f32 v{vP+4}, v{SM}, v{SM+1}
        v_cvt_pk_bf16_f32 v{vP+5}, v{SM+2}, v{SM+3}''')
        PT = R(vP); PM = R(vP + 4, 2)
        e(f'''v_mfma_f32_16x16x32_bf16 {R(vLs)}, {R(vONES)}, {PT}, 0
        v_mfma_f32_16x16x32_bf16 {R(vO)}, {R(vVT)}, {PT}, 0
        v_mfma_f32_16x16x32_bf16 {R(vO+4)}, {R(vVT+4)}, {PT}, 0
        v_mfma_f32_16x16x16_bf16 {R(vLs)}, {R(vONES,2)}, {PM}, {R(vLs)}
        v_mfma_f32_16x16x16_bf16 {R(vO)}, {R(vVMf,2)}, {PM}, {R(vO)}
        v_mfma_f32_16x16x16_bf16 {R(vO+4)}, {R(vVMf+2,2)}, {PM}, {R(vO+4)}
        v_rcp_f32 v{vT0}, v{vLs}''')
        for r in range(8): e(f'v_mul_f32 v{vO+r}, v{vO+r}, v{vT0}')
        for r in range(4): e(f'v_cvt_pk_bf16_f32 v{vOp+r}, v{vO+2*r}, v{vO+2*r+1}')
        e(f'buffer_store_dwordx4 {R(vOp)}, v{vOst}, {WS}, s{sO_} offen {SF}')
        stamp(5)
        e(Lb3 + ':')
        Lnotg2 = k.label('notg2')
        e(f's_barrier\ns_cmp_ge_u32 s{sW}, 2\ns_cbranch_scc1 {Lnotg2}')
        if D2: e(f's_sleep {D2}')
        vO_ = [vOld, vOldb, vOldc]
        oloads = [f'buffer_load_dwordx4 {R(vG2+4*i)}, v{vO_[i//4]}, {WS}, s{sO_} offen offset:{(i%4)*1024} sc1' for i in range(12)]
        for x in oloads: e(x)
        def g2_consume(i):
            e(f'v_mfma_f32_16x16x32_bf16 {R(vD1)}, a[{aW2+8*i}:{aW2+8*i+3}], {R(vG2+4*i)}, ' + ('0' if i == 0 else R(vD1)))
            e(f'v_mfma_f32_16x16x32_bf16 {R(vD2)}, a[{aW2+8*i+4}:{aW2+8*i+7}], {R(vG2+4*i)}, ' + ('0' if i == 0 else R(vD2)))
        prog(12, lambda i: oloads[i], lambda i: [vG2+4*i], g2_consume, cnt=11)
        for r in range(4): e(f'v_add_f32_dpp v{vR+r}, v{vD2+r}, v{vD1+r} row_ror:8 row_mask:0xf bank_mask:0xf')
        e(f'''buffer_store_dwordx4 {R(vR)}, v{vPst}, {WS}, s{sPp} offen sc1
        buffer_store_dwordx4 {R(vR)}, v{vPst2}, {WS}, s{sPp} offen sc1''')
        stamp(7)
        e(f'''buffer_store_dwordx4 {R(vNEG1)}, v{vPst}, {WS}, s{sP2} offen sc1
        buffer_store_dwordx4 {R(vNEG1)}, v{vPst2}, {WS}, s{sP2} offen sc1
        s_branch {Lb4}''')
        e(Lnotg2 + ':')
        e(f'''s_cmp_lg_u32 s{sW}, 3
        s_cbranch_scc1 {Lb4}
        buffer_store_dwordx2 {R(vNEG1,2)}, v{vXst}, {WS}, s{sB2} offen {SF}
        buffer_store_dwordx4 {R(vNEG1)}, v{vOst}, {WS}, s{sO2} offen {SF}''')
        e(Lb4 + ':')
        Lnot2 = k.label('not2')
        e(f's_barrier\ns_cmp_lg_u32 s{sW}, 2\ns_cbranch_scc1 {Lnot2}')
        if D3: e(f's_sleep {D3}')
        ploads = [f'buffer_load_dwordx4 {R(vH3+4*i)}, v{vPld+i}, {WS}, s{sPp} offen sc1' for i in range(8)]
        for x in ploads: e(x)
        def h3_consume(i):
            if i == 0: return
            e(f'v_pk_add_f32 {R(vR,2)}, ' + (R(vH3,2) if i == 1 else R(vR,2)) + f', {R(vH3+4*i,2)}')
            e(f'v_pk_add_f32 {R(vR+2,2)}, ' + (R(vH3+2,2) if i == 1 else R(vR+2,2)) + f', {R(vH3+4*i+2,2)}')
        prog(8, lambda i: ploads[i], lambda i: [vH3+4*i], h3_consume, cnt=12)
        e(f'''v_cvt_pk_bf16_f32 v{vH3+4}, v{vR}, v{vR+1}
        v_cvt_pk_bf16_f32 v{vH3+5}, v{vR+2}, v{vR+3}
        buffer_store_dwordx2 {R(vH3+4,2)}, v{vMst}, {WS}, s{sE} offen {SF}''')
        stamp(9)
        e(f's_branch {Lb5}')
        e(Lnot2 + ':')
        stamp_flush()
        e(f'''s_cmp_lg_u32 s{sW}, 3
        s_cbranch_scc1 {Lb5}''')
        Lnopf = k.label('nopf')
        e(f'''s_add_u32 s{sT2}, s{sS}, 1
        s_cmp_ge_u32 s{sT2}, {nsteps-1}
        s_cbranch_scc1 {Lnopf}''')
        prefetch(sT2)
        e(Lnopf + ':')
        e(f'''buffer_store_dwordx2 {R(vQK,2)}, v{vKMst}, {WS}, s{sKM} offen
        buffer_store_dwordx2 {R(vVMf,2)}, v{vVMst}, {WS}, s{sVM} offen
        buffer_store_dwordx2 {R(vVMf+2,2)}, v{vVMst}, {WS}, s{sVM} offen offset:256''')
        e(Lb5 + ':')
        e(f'''s_barrier
        s_add_u32 s{sS}, s{sS}, 1
        s_branch {Ltop}''')
        for blk in ool:
            for x in blk: e(x)
    loop('')
    e(Lslow + ':')
    loop('sc1')
    e(Lproj + ':')
    if PROJ:
        proj.emit(k, sWS, sX, sC, sW, sTO, Lexit, nsteps, LEAD=PLEAD, census_wait=census_wait, sMODE=sMODE, preread=PREREAD)
    e(Lexit + ':')
    if TL is not None:
        tl(3)
        e(f'''v_mov_b32 v10, s92
        v_mov_b32 v11, s94
        v_mov_b32 v12, s96
        v_mov_b32 v13, s98
        v_lshrrev_b32 v14, 6, v0
        v_and_b32 v15, 63, v0
        s_lshl_b32 s90, s91, 6
        v_lshlrev_b32 v14, 4, v14
        v_add_u32 v14, s90, v14
        v_cmp_eq_u32 vcc, 0, v15
        v_mov_b32 v15, 0x80000000
        v_cndmask_b32 v14, v15, v14, vcc
        s_mov_b32 s90, {L.STAMP + TL}
        buffer_store_dwordx4 v[10:13], v14, s[4:7], s90 offen
        s_sub_u32 s86, s86, s84
        v_mov_b32 v10, s86
        s_add_u32 s90, s90, 32768
        buffer_store_dword v10, v14, s[4:7], s90 offen''')
    e(Lexit2 + ':')
    e('s_endpgm')
    return k, max(LDS_SIZE, proj.LDS_SIZE if PROJ else 0)
```

```python
import sys; sys.path.insert(0, 'gen')
import prep, ln, rec2 as rec, attn_a, outproj_a, qkv_b, attn_b, layout as L
from asmgen import *
def build(path, rec_kw=None, upto=None, tl=False):
    rec_kw = {} if rec_kw is None else rec_kw
    kp, nwg = prep.gen('prep_kernel')
    kl1, lds_ln = ln.gen('ln1_kernel', True); kl2, _ = ln.gen('ln2_kernel', False)
    ka, lds_a = rec.gen('reca_kernel', **rec_kw, **(dict(TL=0) if tl else {}))
    ka2 = rec.gen('reca2_kernel', **rec_kw, TL=65536)[0] if tl else None
    kat = attn_a.gen('attna_kernel')
    ko1 = outproj_a.gen('outa1_kernel', True); ko2 = outproj_a.gen('outa2_kernel', False)
    kq, lds_q = qkv_b.gen('qkvb_kernel'); kab, _ = attn_b.gen('attnb_kernel')
    kb1 = outproj_a.gen('outb1_kernel', False, nk=32, wbase=L.WB2, abase=L.OB2)
    kb2 = outproj_a.gen('outb2_kernel', False, nk=32, wbase=L.WB2, abase=L.OB2, out_to_dout=True)
    B = (256, 1, 1); G = lambda n: (n, 1, 1); lo = outproj_a.LDS_SIZE
    launches = [('prep_kernel', G(nwg), B, 0)]
    for layer in range(2):
        launches += [('ln1_kernel' if layer == 0 else 'ln2_kernel', G(128), B, lds_ln), ('reca2_kernel' if (tl and layer) else 'reca_kernel', G(256), B, lds_a), ('attna_kernel', G(512), B, 0),
                     ('outa1_kernel' if layer == 0 else 'outa2_kernel', G(256), B, lo), ('qkvb_kernel', G(256), B, lds_q), ('attnb_kernel', G(256), B, 0),
                     ('outb1_kernel' if layer == 0 else 'outb2_kernel', G(256), B, lo)]
    txt = build_file(launches, [kp, kl1, kl2, ka, kat, ko1, ko2, kq, kab, kb1, kb2] + ([ka2] if tl else []))
    open(path, 'w').write(txt)
    print('written', path, len(txt))
if __name__ == '__main__':
    kw = {}
    for a in sys.argv[2:]:
        if '=' in a:
            x, y = a.split('='); kw[x] = int(y)
    build(sys.argv[1] if len(sys.argv) > 1 else '/code/' + NAME + '.s', rec_kw=kw, tl='tl' in sys.argv)
```

```python
import hazard

STF = {}
def stf(key): return STF.get(key, '')
NAME = 'interleave_layers__memory_aug_recurrent_mem_tr__softmax_full_mha__prompt'

def vr(base, n=1):
    return 'v%d' % base if n == 1 else 'v[%d:%d]' % (base, base + n - 1)
def ar(base, n=1):
    return 'a%d' % base if n == 1 else 'a[%d:%d]' % (base, base + n - 1)
def sr(base, n=1):
    return 's%d' % base if n == 1 else 's[%d:%d]' % (base, base + n - 1)

class Kernel:
    def __init__(self, name, vgpr=256, agpr=0, sgpr=102, wgy=False):
        self.name = name; self.lines = []; self.vgpr = vgpr; self.agpr = agpr; self.sgpr = sgpr
        self.nlabel = 0; self.wgy = wgy
    def e(self, s):
        for l in s.split('\n'):
            l = l.strip()
            if not l: continue
            if l.endswith(':'): self.lines.append(l)
            else: self.lines.append('  ' + l)
    def c(self, s): self.lines.append('  ; ' + s)
    def label(self, base='L'):
        self.nlabel += 1
        return '%s_%s%d' % (self.name.replace('_kernel', ''), base, self.nlabel)
    prof = None
    tsi = 's_memrealtime'
    def ts(self, i):
        if self.prof is None: return
        self.e(f'{self.tsi} s[{70+2*i}:{71+2*i}]')
        self.e(f's_waitcnt lgkmcnt(0)')
    def ts_flush(self, n, srd, v0=250):
        if self.prof is None: return
        import layout as L
        e = self.e
        for i in range(n): e(f'v_writelane_b32 v{v0}, s{70+2*i}, {i}')
        e(f'''v_and_b32 v{v0+1}, 63, v0
        v_lshlrev_b32 v{v0+1}, 2, v{v0+1}
        v_mov_b32 v{v0+2}, 0x80000000
        v_cmp_gt_u32 vcc, {4*n}, v{v0+1}
        v_cndmask_b32 v{v0+1}, v{v0+2}, v{v0+1}, vcc
        v_lshrrev_b32 v{v0+2}, 6, v0
        v_lshlrev_b32 v{v0+2}, 6, v{v0+2}
        v_add_u32 v{v0+1}, v{v0+1}, v{v0+2}
        s_lshl_b32 s69, s2, 8
        s_add_u32 s69, s69, {L.STAMP + self.prof}
        buffer_store_dword v{v0}, v{v0+1}, {srd}, s69 offen''')
    def finish(self, fix=True, verbose=False):
        lines = self.lines
        n = 0
        if fix:
            lines, n = hazard.fix(lines, verbose)
        head = ['.globl %s' % self.name, '.p2align 8', '.type %s,@function' % self.name, '%s:' % self.name]
        body = head + [l.strip() for l in lines if not l.strip().startswith(';')]
        acc = ((self.vgpr + 3) // 4) * 4
        nfv = acc + self.agpr if self.agpr else self.vgpr
        desc = ['.p2align 6', '.amdhsa_kernel %s' % self.name,
                '  .amdhsa_next_free_vgpr %d' % nfv,
                '  .amdhsa_next_free_sgpr %d' % self.sgpr,
                '  .amdhsa_accum_offset %d' % acc,
                '  .amdhsa_group_segment_fixed_size 0',
                '  .amdhsa_kernarg_size 104',
                '  .amdhsa_user_sgpr_count 2',
                '  .amdhsa_user_sgpr_kernarg_segment_ptr 1',
                '  .amdhsa_system_sgpr_workgroup_id_x 1']
        if self.wgy: desc.append('  .amdhsa_system_sgpr_workgroup_id_y 1')
        desc += ['  .amdhsa_float_denorm_mode_32 3', '.end_amdhsa_kernel']
        return body, desc, n

HEADER = open('/code/' + NAME + '.s.ref').read().split('\n')

def build_file(launches, kernels, verbose=False):
    out = []
    for l in HEADER:
        if l.startswith('; @launch') or l.startswith('; Override') or l.startswith('; grid='): continue
        if not l.startswith(';'): break
        out.append(l)
    for (k, g, b, lds) in launches:
        out.append('; @launch kernel=%s grid=(%d,%d,%d) block=(%d,%d,%d) lds=%d' % (k, *g, *b, lds))
    out.append('.amdgcn_target "amdgcn-amd-amdhsa--gfx950"')
    out.append('.text')
    descs = []
    for k in kernels:
        body, desc, n = k.finish(verbose=verbose)
        if n: print('; %s: hazard fixer inserted %d wait states' % (k.name, n))
        out += body
        descs += desc
    out.append('.section .rodata,"a"')
    out += descs
    return '\n'.join(out) + '\n'
```

```python
import struct
from asmgen import *
import layout as L
def fbits(x): return struct.unpack('<I', struct.pack('<f', x))[0]

def gen(name='attnb_kernel', force_fallback=False, prof=None):
    k = Kernel(name, vgpr=200, agpr=0, sgpr=102 if prof is not None else 48); e = k.e; k.prof = prof
    srd = 's[4:7]'
    vL16, vT0, vT1, vT2 = 1, 2, 3, 4
    vQ = 8
    vC = 24
    vO = 56
    vS = 88
    vP = 120
    vKV = 136
    R = lambda b, n=4: f'v[{b}:{b+n-1}]'
    Lx = k.label('exit')
    e(f'''s_cmp_ge_u32 s2, 256
    s_cbranch_scc1 {Lx}
    s_load_dwordx2 s[12:13], s[0:1], 96''')
    k.ts(0)
    e(f'''v_lshrrev_b32 v{vT0}, 6, v0
    v_and_b32 v{vT1}, 63, v0
    s_nop 0
    v_readfirstlane_b32 s16, v{vT0}
    v_lshlrev_b32 v{vL16}, 4, v{vT1}
    s_and_b32 s17, s2, 7
    s_lshl_b32 s17, s17, 2
    s_lshr_b32 s18, s2, 3
    s_and_b32 s19, s18, 3
    s_add_u32 s17, s17, s19
    s_lshr_b32 s18, s18, 2
    s_waitcnt lgkmcnt(0)
    s_mov_b32 s4, s12
    s_mov_b32 s5, s13
    s_mov_b32 s6, 0x10000000
    s_mov_b32 s7, 0x20000
    s_lshl_b32 s20, s17, 17
    s_add_u32 s21, s20, {L.KB}
    s_add_u32 s22, s20, {L.VB}
    s_lshl_b32 s23, s18, 3
    s_lshl_b32 s24, s16, 1
    s_add_u32 s23, s23, s24
    s_lshl_b32 s24, s23, 11
    s_add_u32 s24, s24, s20
    s_add_u32 s24, s24, {L.QB}''')
    for q in range(4):
        e(f'buffer_load_dwordx4 {R(vQ+4*q)}, v{vL16}, {srd}, s24 offen offset:{q*1024}')
    def kvload(slot, sK, sV):
        b = vKV + 16 * slot
        e(f'''buffer_load_dwordx4 {R(b)}, v{vL16}, {srd}, s{sK} offen
        buffer_load_dwordx4 {R(b+4)}, v{vL16}, {srd}, s{sK} offen offset:1024
        buffer_load_dwordx4 {R(b+8)}, v{vL16}, {srd}, s{sV} offen
        buffer_load_dwordx4 {R(b+12)}, v{vL16}, {srd}, s{sV} offen offset:1024
        s_add_u32 s{sK}, s{sK}, 2048
        s_add_u32 s{sV}, s{sV}, 2048''')
    def smfma(qt, slot, cin):
        b = vKV + 16 * slot; s = vS + 16 * qt
        e(f'v_mfma_f32_32x32x16_bf16 {R(s,16)}, {R(b)}, {R(vQ+8*qt)}, {cin}')
        e(f'v_mfma_f32_32x32x16_bf16 {R(s,16)}, {R(b+4)}, {R(vQ+8*qt+4)}, {R(s,16)}')
    def rowmax(qt, dst):
        s = vS + 16 * qt
        e(f'v_max3_f32 v{dst}, v{s}, v{s+1}, v{s+2}')
        for i in range(3, 15, 2): e(f'v_max3_f32 v{dst}, v{dst}, v{s+i}, v{s+i+1}')
        e(f'v_max_f32 v{dst}, v{dst}, v{s+15}')
    def xhalfmax(dst):
        e(f'''v_mov_b32 v{vT2}, v{dst}
        v_permlane32_swap_b32 v{dst}, v{vT2}
        v_max_f32 v{dst}, v{dst}, v{vT2}''')
    def setC(qt, m):
        for i in range(16): e(f'v_sub_f32 v{vC+16*qt+i}, 0, v{m}')
    e(f's_mov_b32 s25, s21\ns_mov_b32 s26, s22')
    kvload(0, 25, 26)
    e('s_waitcnt vmcnt(0)')
    for qt in range(2): smfma(qt, 0, '0')
    for qt in range(2):
        rowmax(qt, vT0 + qt); xhalfmax(vT0 + qt); setC(qt, vT0 + qt)
    k.ts(1)
    Lmain = k.label('main'); Lloop = k.label('loop'); Lfb = k.label('fb'); Ldone = k.label('done')
    e('s_mov_b32 s28, 0')
    e(Lmain + ':')
    e(f's_mov_b32 s25, s21\ns_mov_b32 s26, s22')
    kvload(0, 25, 26); kvload(1, 25, 26)
    for i in range(32): e(f'v_mov_b32 v{vO+i}, 0')
    def smf(qt, slot, part):
        b = vKV + 16 * slot; s_ = vS + 16 * qt
        if part == 0: e(f'v_mfma_f32_32x32x16_bf16 {R(s_,16)}, {R(b)}, {R(vQ+8*qt)}, {R(vC+16*qt,16)}')
        else: e(f'v_mfma_f32_32x32x16_bf16 {R(s_,16)}, {R(b+4)}, {R(vQ+8*qt+4)}, {R(s_,16)}')
    def pvm(qt, slot, part):
        b = vKV + 16 * slot; o = vO + 16 * qt; p = vP + 8 * qt
        e(f'v_mfma_f32_32x32x16_bf16 {R(o,16)}, {R(b+8+4*part)}, {R(p+4*part)}, {R(o,16)}')
    pending = [None]
    def half(qt, slot, nq, nslot):
        s_ = vS + 16 * qt; p = vP + 8 * qt
        ex = lambda i: e(f'v_exp_f32 v{s_+i}, v{s_+i}')
        cv = lambda i: e(f'v_cvt_pk_bf16_f32 v{p+i}, v{s_+2*i}, v{s_+2*i+1}')
        for i in range(4): ex(i)
        if pending[0] is not None: pvm(*pending[0], 1)
        for i in range(4, 8): ex(i)
        if nq is not None: smf(nq, nslot, 0)
        for i in range(4): cv(i)
        ex(8); ex(9)
        if nq is not None: smf(nq, nslot, 1)
        for i in range(10, 14): ex(i)
        pvm(qt, slot, 0)
        ex(14); ex(15)
        for i in range(4, 8): cv(i)
        pending[0] = (qt, slot)
    def tile(slot, load_slot, last=False, nwait=None):
        half(0, slot, 1, slot)
        if load_slot is not None: kvload(load_slot, 25, 26)
        if not last:
            e(f's_waitcnt vmcnt({nwait})')
            half(1, slot, 0, (slot + 1) % 3)
        else:
            half(1, slot, None, None)
    e('s_waitcnt vmcnt(4)')
    smf(0, 0, 0); smf(0, 0, 1)
    tile(0, 2, nwait=4)
    e('s_mov_b32 s27, 0')
    e(Lloop + ':')
    for slot in (1, 2, 0): tile(slot, (slot + 2) % 3, nwait=4)
    e(f's_add_u32 s27, s27, 1\ns_cmp_lt_u32 s27, 20\ns_cbranch_scc1 {Lloop}')
    tile(1, 0, nwait=4)
    tile(2, None, nwait=0)
    tile(0, None, last=True)
    pvm(*pending[0], 1)
    k.ts(2)
    for qt in range(2):
        l = vT0 + qt
        e(f'''v_mov_b32 v{l}, v{vO+16*qt+8}
        v_mov_b32 v{vT2}, v{l}
        v_permlane32_swap_b32 v{vT2}, v{l}''')
    e(f'''s_cmp_eq_u32 s28, 1
    s_cbranch_scc1 {Ldone}
    v_max_f32 v{vT2}, v{vT0}, v{vT1}
    v_cmp_nge_f32 vcc, {fbits(2.0**30):#x}, v{vT2}
    v_cmp_u_f32 s[30:31], v{vT0}, v{vT1}
    s_or_b64 s[32:33], vcc, s[30:31]''')
    e('s_movk_i32 s34, 0x207')
    for i in range(32):
        e(f'v_cmp_class_f32 vcc, v{vO+i}, s34')
        e('s_or_b64 s[32:33], s[32:33], vcc')
    e('s_mov_b64 vcc, s[32:33]')
    if force_fallback: e('s_mov_b64 vcc, -1')
    e(f's_cbranch_vccz {Ldone}')
    e(f'''s_mov_b32 s25, s21
    s_mov_b32 s27, 0
    v_mov_b32 v{vP}, 0xff800000
    v_mov_b32 v{vP+1}, 0xff800000''')
    e(Lfb + ':')
    e(f'''buffer_load_dwordx4 {R(vKV)}, v{vL16}, {srd}, s25 offen
    buffer_load_dwordx4 {R(vKV+4)}, v{vL16}, {srd}, s25 offen offset:1024
    s_add_u32 s25, s25, 2048
    s_waitcnt vmcnt(0)''')
    for qt in range(2): smfma(qt, 0, '0')
    for qt in range(2):
        rowmax(qt, vT0 + qt)
        e(f'v_max_f32 v{vP+qt}, v{vP+qt}, v{vT0+qt}')
    e(f's_add_u32 s27, s27, 1\ns_cmp_lt_u32 s27, 64\ns_cbranch_scc1 {Lfb}')
    for qt in range(2):
        xhalfmax(vP + qt); setC(qt, vP + qt)
    e(f's_mov_b32 s28, 1\ns_branch {Lmain}')
    e(Ldone + ':')
    e(f'''v_and_b32 v{vKV}, 63, v0
    v_and_b32 v{vKV+1}, 15, v{vKV}
    v_lshlrev_b32 v{vKV+1}, 4, v{vKV+1}
    v_lshrrev_b32 v{vKV+2}, 5, v{vKV}
    v_lshl_add_u32 v{vKV+1}, v{vKV+2}, 8, v{vKV+1}
    v_bfe_u32 v{vKV+2}, v{vKV}, 4, 1
    v_lshl_add_u32 v{vKV+1}, v{vKV+2}, 15, v{vKV+1}
    s_lshl_b32 s24, s23, 16
    s_lshl_b32 s25, s17, 10
    s_add_u32 s24, s24, s25
    s_add_u32 s24, s24, {L.OB2}''')
    for qt in range(2):
        o = vO + 16 * qt; p = vP + 8 * qt
        e(f'v_rcp_f32 v{vT2}, v{vT0+qt}')
        for i in range(16): e(f'v_mul_f32 v{o+i}, v{o+i}, v{vT2}')
        for i in range(8): e(f'v_cvt_pk_bf16_f32 v{p+i}, v{o+2*i}, v{o+2*i+1}')
        if qt: e('s_add_u32 s24, s24, 65536')
        e(f'buffer_store_dwordx4 {R(p)}, v{vKV+1}, {srd}, s24 offen {stf("attnb")}')
        e(f'buffer_store_dwordx4 {R(p+4)}, v{vKV+1}, {srd}, s24 offen offset:512 {stf("attnb")}')
    k.ts(3)
    k.ts_flush(4, srd, v0=190)
    e(Lx + ':')
    e('s_endpgm')
    return k, 0
```

```python
import math, struct
from asmgen import *
import layout as L
OOB = 0x80000000
LDS_SIZE = 96 * 1024

def gen(name='fin_kernel', prof=None, twin=False):
    k = Kernel(name, vgpr=256, agpr=240, sgpr=102 if prof is not None else 64); e = k.e; k.prof = prof
    srd = 's[4:7]'
    R = lambda b, n=4: f'v[{b}:{b+n-1}]'
    vL16, vL16b, vL16c, vKM, vVM, vT0, vT1, vT2 = 1, 2, 3, 4, 5, 6, 7, 8
    vOOB, vLw, vLw2 = 9, 240, 241
    vCM, vCD, vONES = 12, 16, 20
    vS, vP, vLs, vO, vOp = 24, 44, 54, 64, 80
    vQ, vK, vKm = 88, 136, 184
    vV, vVm = 88, 136
    Lx = k.label('exit')
    cexp = (192 ** -0.5) * math.log2(math.e)
    cbits = struct.unpack('<I', struct.pack('<f', cexp))[0]
    e(f'''s_cmp_ge_u32 s2, 256
    s_cbranch_scc1 {Lx}
    s_load_dwordx2 s[8:9], s[0:1], 96''')
    k.ts(0)
    e(f'''v_lshrrev_b32 v{vT0}, 6, v0
    v_and_b32 v{vT1}, 63, v0
    s_and_b32 s13, s2, 7
    v_readfirstlane_b32 s12, v{vT0}
    v_lshlrev_b32 v{vL16}, 4, v{vT1}
    v_add_u32 v{vL16b}, 0x1000, v{vL16}
    v_add_u32 v{vL16c}, 0x2000, v{vL16}
    s_lshr_b32 s14, s2, 3
    s_lshl_b32 s15, s13, 2
    s_add_u32 s15, s15, s12
    s_waitcnt lgkmcnt(0)
    s_mov_b32 s4, s8
    s_mov_b32 s5, s9
    s_mov_b32 s6, 0x10000000
    s_mov_b32 s7, 0x20000
    s_mov_b32 s27, {cbits:#x}''')
    i16, g = vT0, vT2
    e(f'''v_and_b32 v{i16}, 15, v{vT1}
    v_lshrrev_b32 v{g}, 4, v{vT1}
    v_mov_b32 v{vOOB}, {OOB:#x}
    v_lshlrev_b32 v10, 4, v{i16}
    v_lshl_add_u32 v10, v{g}, 7, v10
    v_cmp_gt_u32 vcc, 8, v{i16}
    v_cndmask_b32 v{vKM}, v{vOOB}, v10, vcc
    v_lshlrev_b32 v10, 3, v{vT1}
    v_cmp_gt_u32 vcc, 32, v{vT1}
    v_cndmask_b32 v{vVM}, v{vOOB}, v10, vcc
    v_mov_b32 v10, 0xf149f2ca
    v_cmp_le_u32 vcc, 2, v{g}
    v_cndmask_b32 v{vCM}, 0, v10, vcc
    v_mov_b32 v{vCM+1}, v{vCM}
    v_mov_b32 v{vCM+2}, v{vCM}
    v_mov_b32 v{vCM+3}, v{vCM}
    v_lshlrev_b32 v11, 2, v{g}''')
    for r in range(4):
        e(f'''v_add_u32 v{vT1}, {r}, v11
        v_cmp_gt_u32 vcc, v{vT1}, v{i16}
        v_cndmask_b32 v{vCD+r}, 0, v10, vcc''')
    for r in range(4): e(f'v_mov_b32 v{vONES+r}, 0x3f803f80')
    e(f'''s_mul_i32 s16, s12, 6144
    v_add_u32 v{vLw}, s16, v{vL16}
    v_add_u32 v{vLw2}, {2*24576}, v{vLw}''')
    vLs_ = [vL16, vL16b, vL16c]
    SM0, S00, SM1, S10, S11 = vS, vS + 4, vS + 8, vS + 12, vS + 16
    PM0, PT0, PM1, PT1 = vP, vP + 2, vP + 4, vP + 6
    L0, L1 = vLs + 2, vLs + 6
    def softmax(regs, mx, t):
        e(f'v_max3_f32 v{mx}, v{regs[0]}, v{regs[1]}, v{regs[2]}')
        r = regs[3:]
        while r:
            if len(r) >= 2: e(f'v_max3_f32 v{mx}, v{mx}, v{r[0]}, v{r[1]}'); r = r[2:]
            else: e(f'v_max_f32 v{mx}, v{mx}, v{r[0]}'); r = r[1:]
        e(f'''v_mov_b32 v{t}, v{mx}
        v_permlane32_swap_b32 v{mx}, v{t}
        v_max_f32 v{mx}, v{mx}, v{t}
        v_mov_b32 v{t}, v{mx}
        v_permlane16_swap_b32 v{mx}, v{t}
        v_max_f32 v{mx}, v{mx}, v{t}
        v_mul_f32 v{mx}, s27, v{mx}''')
        for x in regs: e(f'v_fma_f32 v{x}, v{x}, s27, -v{mx}')
        for x in regs: e(f'v_exp_f32 v{x}, v{x}')
    e(f'''s_mul_i32 s16, s12, 10
    s_mul_i32 s16, s16, 192
    s_mul_i32 s17, s13, 24
    s_add_u32 s16, s16, s17
    s_lshl_b32 s16, s16, 10
    s_add_u32 s16, s16, {L.WOP}''')
    for i in range(10): e(f's_add_u32 s{30+i}, s16, {i*192*1024}')
    Lp2 = k.label('phase2'); Ldma = k.label('odma')
    if twin: e(f's_cmp_lt_u32 s14, 30\ns_cbranch_scc1 {Ldma}')
    for seg in range(2):
        e(f'''s_lshl_b32 s17, s14, 1
        s_add_u32 s17, s17, {seg}
        s_lshl_b32 s16, s15, 6
        s_add_u32 s16, s16, s17
        s_mul_i32 s16, s16, 12288
        s_add_u32 s20, s16, {L.QT}
        s_add_u32 s21, s16, {L.KT}
        s_add_u32 s22, s16, {L.VT}
        s_lshl_b32 s17, s17, 5
        s_add_u32 s17, s17, s15
        s_mul_i32 s17, s17, 3072
        s_add_u32 s23, s17, {L.KM}
        s_add_u32 s24, s17, {L.VM}''')
        for i in range(12): e(f'buffer_load_dwordx4 {R(vK+4*i)}, v{vLs_[i//4]}, {srd}, s21 offen offset:{(i%4)*1024}')
        for j in range(6): e(f'buffer_load_dwordx4 {R(vKm+4*j)}, v{vKM}, {srd}, s23 offen offset:{j*512}')
        for i in range(12): e(f'buffer_load_dwordx4 {R(vQ+4*i)}, v{vLs_[i//4]}, {srd}, s20 offen offset:{(i%4)*1024}')
        for j in range(6):
            e(f's_waitcnt vmcnt({5-j})')
            q0 = R(vQ + 4 * j); q1 = R(vQ + 24 + 4 * j); k0 = R(vK + 4 * j); k1 = R(vK + 24 + 4 * j); km = R(vKm + 4 * j)
            f = j == 0
            e(f'v_mfma_f32_16x16x32_bf16 {R(SM0)}, {km}, {q0}, {R(vCM) if f else R(SM0)}')
            e(f'v_mfma_f32_16x16x32_bf16 {R(S00)}, {k0}, {q0}, {R(vCD) if f else R(S00)}')
            e(f'v_mfma_f32_16x16x32_bf16 {R(SM1)}, {km}, {q1}, {R(vCM) if f else R(SM1)}')
            e(f'v_mfma_f32_16x16x32_bf16 {R(S10)}, {k0}, {q1}, ' + ('0' if f else R(S10)))
            e(f'v_mfma_f32_16x16x32_bf16 {R(S11)}, {k1}, {q1}, {R(vCD) if f else R(S11)}')
        for i in range(12): e(f'buffer_load_dwordx4 {R(vV+4*i)}, v{vLs_[i//4]}, {srd}, s22 offen offset:{(i%4)*1024}')
        for i in range(12): e(f'buffer_load_dwordx2 {R(vVm+2*i,2)}, v{vVM}, {srd}, s24 offen offset:{i*256}')
        softmax(list(range(SM0, SM0 + 8)), vT0, vT1)
        softmax(list(range(SM1, SM1 + 12)), vT2, 10)
        for (dst, src) in ((PM0, SM0), (PT0, S00), (PM1, SM1), (PT1, S10), (PT1 + 2, S11)):
            e(f'v_cvt_pk_bf16_f32 v{dst}, v{src}, v{src+1}')
            e(f'v_cvt_pk_bf16_f32 v{dst+1}, v{src+2}, v{src+3}')
        e(f'''v_mfma_f32_16x16x16_bf16 {R(L0)}, {R(vONES,2)}, {R(PM0,2)}, 0
        v_mfma_f32_16x16x16_bf16 {R(L1)}, {R(vONES,2)}, {R(PM1,2)}, 0
        v_mfma_f32_16x16x16_bf16 {R(L0)}, {R(vONES,2)}, {R(PT0,2)}, {R(L0)}
        v_mfma_f32_16x16x32_bf16 {R(L1)}, {R(vONES)}, {R(PT1)}, {R(L1)}
        v_rcp_f32 v10, v{L0}
        v_rcp_f32 v11, v{L1}
        s_waitcnt vmcnt(0)''')
        if seg == 1:
            for kk in range(2):
                for i in range(10):
                    b = 160 + 40 * kk + 4 * i
                    e(f'buffer_load_dwordx4 a[{b}:{b+3}], v{vL16}, {srd}, s{30+i} offen offset:{kk*1024}')
        for j in range(6):
            for t in range(2):
                et = 2 * j + t
                o0 = vO + 8 * t; o1 = o0 + 4
                vt = vV + 4 * et; vm = vVm + 2 * et
                e(f'v_mfma_f32_16x16x16_bf16 {R(o0)}, {R(vm,2)}, {R(PM0,2)}, 0')
                e(f'v_mfma_f32_16x16x16_bf16 {R(o1)}, {R(vm,2)}, {R(PM1,2)}, 0')
                e(f'v_mfma_f32_16x16x16_bf16 {R(o0)}, {R(vt,2)}, {R(PT0,2)}, {R(o0)}')
                e(f'v_mfma_f32_16x16x32_bf16 {R(o1)}, {R(vt)}, {R(PT1)}, {R(o1)}')
            for Tq in range(2):
                inv = 10 + Tq
                p = vOp + 4 * Tq
                for t in range(2):
                    o = vO + 8 * t + 4 * Tq
                    for r in range(4): e(f'v_mul_f32 v{o+r}, v{o+r}, v{inv}')
                    e(f'v_cvt_pk_bf16_f32 v{p+2*t}, v{o}, v{o+1}')
                    e(f'v_cvt_pk_bf16_f32 v{p+2*t+1}, v{o+2}, v{o+3}')
                Tt = 2 * seg + Tq
                base = vLw if Tt < 2 else vLw2
                e(f'ds_write_b128 v{base}, {R(p)} offset:{(Tt % 2)*24576 + j*1024}')
    if twin:
        e(f's_branch {Lp2}')
        e(Ldma + ':')
        e(f'''s_lshl_b32 s16, s14, 2
        s_add_u32 s16, s16, s12
        s_mul_i32 s16, s16, 192
        s_mul_i32 s17, s13, 24
        s_add_u32 s16, s16, s17
        s_lshl_b32 s16, s16, 10
        s_add_u32 s16, s16, {L.OT}
        s_mul_i32 s17, s12, 24576''')
        for grp in range(6):
            e(f's_add_u32 m0, s17, {grp*4096}\ns_nop 0')
            for q in range(4): e(f'buffer_load_dwordx4 v{vL16}, {srd}, s16 offen offset:{q*1024} lds')
            e('s_add_u32 s16, s16, 4096')
        for kk in range(2):
            for i in range(10):
                b = 160 + 40 * kk + 4 * i
                e(f'buffer_load_dwordx4 a[{b}:{b+3}], v{vL16}, {srd}, s{30+i} offen offset:{kk*1024}')
        e('s_waitcnt vmcnt(20)')
        e(Lp2 + ':')
    k.ts(1)
    vA = 24
    vB = 144
    NRING = 4
    vA = 24;
    vB = 184
    def areg(kk, i):
        if kk < 2: return f'a[{160+40*kk+4*i}:{160+40*kk+4*i+3}]'
        return R(vA + 40 * (kk % NRING) + 4 * i)
    def wl(kk):
        for i in range(10):
            e(f'buffer_load_dwordx4 {areg(kk, i)}, v{vLs_[0]}, {srd}, s{30+i} offen offset:{(kk%4)*1024}')
        if kk % 4 == 3:
            for i in range(10): e(f's_add_u32 s{30+i}, s{30+i}, 4096')
    def bl(kk):
        for T in range(4):
            b = vB + 16 * (kk % 2) + 4 * T
            e(f'ds_read_b128 {R(b)}, v{vL16 if T < 2 else vT0} offset:{(T % 2)*24576 + kk*1024}')
    e('s_waitcnt lgkmcnt(0)')
    wl(2); wl(3)
    e(f'v_add_u32 v{vT0}, {2*24576}, v{vL16}')
    e('s_barrier')
    bl(0)
    for kk in range(24):
        e(f's_waitcnt vmcnt({10*min(3, 23-kk)})')
        if kk + 1 < 24: bl(kk + 1); e('s_waitcnt lgkmcnt(4)')
        else: e('s_waitcnt lgkmcnt(0)')
        for i in range(10):
            a = areg(kk, i)
            for T in range(4):
                acc = f'a[{16*i+4*T}:{16*i+4*T+3}]'
                e(f'v_mfma_f32_16x16x32_bf16 {acc}, {a}, {R(vB + 16*(kk%2) + 4*T)}, ' + ('0' if kk == 0 else acc))
        if kk + 4 < 24: wl(kk + 4)
    k.ts(2)
    e(f'''s_lshl_b32 s16, s13, 7
    s_lshl_b32 s17, s14, 2
    s_add_u32 s16, s16, s17
    s_mul_i32 s16, s16, 20
    s_mul_i32 s17, s12, 5
    s_add_u32 s16, s16, s17
    s_lshl_b32 s16, s16, 10
    s_add_u32 s16, s16, {L.PARTO}
    s_nop 7''')
    n = 0
    for T in range(4):
        e(f's_add_u32 s17, s16, {T*20480}')
        for p in range(5):
            t = 24 + 12 * (n % 4); n += 1
            for q in range(8):
                src = 16 * (2 * p + q // 4) + 4 * T + q % 4
                e(f'v_accvgpr_read_b32 v{t+q}, a{src}')
            for q in range(4): e(f'v_cvt_pk_bf16_f32 v{t+8+q}, v{t+2*q}, v{t+2*q+1}')
            if p == 4: e('s_add_u32 s17, s17, 4096')
            e(f'buffer_store_dwordx4 {R(t+8)}, v{vL16}, {srd}, s17 offen offset:{(p%4)*1024}')
    k.ts(3)
    k.ts_flush(4, srd, v0=10)
    e(Lx + ':')
    e('s_endpgm')
    return k, LDS_SIZE
```

```python
import struct
from asmgen import *
import layout as L
OOB = 0x80000000
def fbits(x): return struct.unpack('<I', struct.pack('<f', x))[0]

def gen(name, from_input):
    k = Kernel(name, vgpr=80, agpr=0, sgpr=40)
    Lx = k.label('exit')
    k.e(f's_cmp_ge_u32 s2, 128\ns_cbranch_scc1 {Lx}')
    emit_ln(k, from_input)
    k.e(Lx + ':')
    k.e('s_endpgm')
    return k, 512

def emit_ln(k, from_input):
    e = k.e
    vX = 8
    vF = 28
    vA, vT0, vT1, vS, vLd = 1, 2, 3, 4, 5
    e(f'''s_load_dwordx2 s[12:13], s[0:1], 96
    s_load_dwordx2 s[14:15], s[0:1], 0
    v_lshrrev_b32 v{vT0}, 6, v0
    v_and_b32 v{vT1}, 63, v0
    s_nop 0
    v_readfirstlane_b32 s16, v{vT0}
    s_waitcnt lgkmcnt(0)
    s_mov_b32 s4, s12
    s_mov_b32 s5, s13
    s_mov_b32 s6, 0x10000000
    s_mov_b32 s7, 0x20000''')
    if from_input:
        e(f's_mov_b32 s8, s14\ns_mov_b32 s9, s15\ns_mov_b32 s10, {2048*1280}\ns_mov_b32 s11, 0x20000\ns_mov_b32 s20, 0')
    else:
        e(f's_mov_b32 s8, s12\ns_mov_b32 s9, s13\ns_mov_b32 s10, 0x10000000\ns_mov_b32 s11, 0x20000\ns_mov_b32 s20, {L.X1}')
    e(f'''v_and_b32 v{vT0}, 15, v{vT1}
    v_lshrrev_b32 v{vS}, 4, v{vT1}
    s_lshl_b32 s17, s2, 4
    v_add_u32 v{vA}, s17, v{vT0}
    v_mul_u32_u24 v{vA}, 1280, v{vA}
    v_lshl_add_u32 v{vA}, v{vS}, 4, v{vA}
    s_mul_i32 s17, s16, 320
    s_add_u32 s20, s20, s17''')
    for q in range(5):
        e(f'buffer_load_dwordx4 v[{vX+4*q}:{vX+4*q+3}], v{vA}, s[8:11], s20 offen offset:{q*64}')
    per = L.EXCH_SIZE // 128; per2 = L.PART_SIZE // 128
    assert per % 16 == 0 and per2 % 4096 == 0
    e(f'''s_sub_u32 s21, 0, s12
    s_and_b32 s21, s21, 0x1fffff
    s_add_u32 s21, s21, {L.PARTR}
    v_mov_b32 v68, -1
    v_mov_b32 v69, -1
    v_mov_b32 v70, -1
    v_mov_b32 v71, -1
    v_lshlrev_b32 v72, 4, v0
    s_mul_i32 s22, s2, {per}
    s_add_u32 s22, s22, {L.MEMB}
    s_mul_i32 s23, s2, {per2}
    s_add_u32 s23, s23, s21''')
    for q in range(per // 4096):
        e(f'buffer_store_dwordx4 v[68:71], v72, s[4:7], s22 offen\ns_add_u32 s22, s22, 4096')
    rem = per % 4096
    if rem:
        e(f'''v_mov_b32 v73, {OOB:#x}
        v_cmp_gt_u32 vcc, {rem // 16}, v0
        v_cndmask_b32 v73, v73, v72, vcc
        buffer_store_dwordx4 v[68:71], v73, s[4:7], s22 offen''')
    for q in range(per2 // 4096):
        e(f'buffer_store_dwordx4 v[68:71], v72, s[4:7], s23 offen\ns_add_u32 s23, s23, 4096')
    e(f'''s_mul_i32 s23, s2, 2048
    s_add_u32 s23, s23, s21
    s_add_u32 s23, s23, {L.PROBE_OFF}
    v_mov_b32 v73, {OOB:#x}
    v_cmp_gt_u32 vcc, 128, v0
    v_cndmask_b32 v73, v73, v72, vcc
    buffer_store_dwordx4 v[68:71], v73, s[4:7], s23 offen sc1''')
    npois = per // 4096 + (1 if rem else 0) + per2 // 4096 + 1
    e(f'''v_lshlrev_b32 v{vLd}, 2, v{vT0}
    s_lshl_b32 s17, s16, 6
    v_add_u32 v{vA}, s17, v{vLd}
    s_waitcnt vmcnt({npois})''')
    for i in range(20):
        e(f'v_lshlrev_b32 v{vF+2*i}, 16, v{vX+i}')
        e(f'v_and_b32 v{vF+2*i+1}, 0xffff0000, v{vX+i}')
    def reduce_row(off):
        e(f'''v_mov_b32 v{vT0}, v{vS}
        v_permlane32_swap_b32 v{vS}, v{vT0}
        v_add_f32 v{vS}, v{vS}, v{vT0}
        v_mov_b32 v{vT0}, v{vS}
        v_permlane16_swap_b32 v{vS}, v{vT0}
        v_add_f32 v{vS}, v{vS}, v{vT0}
        ds_write_b32 v{vA}, v{vS} offset:{off}
        s_waitcnt lgkmcnt(0)
        s_barrier
        ds_read_b32 v{vS}, v{vLd} offset:{off}
        ds_read_b32 v{vT0}, v{vLd} offset:{off+64}
        ds_read_b32 v{vT1}, v{vLd} offset:{off+128}
        ds_read_b32 v6, v{vLd} offset:{off+192}
        s_waitcnt lgkmcnt(0)
        v_add_f32 v{vS}, v{vS}, v{vT0}
        v_add_f32 v{vT1}, v{vT1}, v6
        v_add_f32 v{vS}, v{vS}, v{vT1}''')
    e(f'v_pk_add_f32 v[6:7], v[{vF}:{vF+1}], v[{vF+2}:{vF+3}]')
    for i in range(2, 20):
        e(f'v_pk_add_f32 v[6:7], v[6:7], v[{vF+2*i}:{vF+2*i+1}]')
    e(f'v_add_f32 v{vS}, v6, v7')
    reduce_row(0)
    e(f'v_mul_f32 v{vS}, {fbits(1/640):#x}, v{vS}')
    for i in range(40):
        e(f'v_sub_f32 v{vF+i}, v{vF+i}, v{vS}')
    e(f'v_mul_f32 v6, v{vF}, v{vF}')
    e(f'v_mul_f32 v7, v{vF+1}, v{vF+1}')
    for i in range(1, 20):
        e(f'v_fmac_f32 v6, v{vF+2*i}, v{vF+2*i}')
        e(f'v_fmac_f32 v7, v{vF+2*i+1}, v{vF+2*i+1}')
    e(f'v_add_f32 v{vS}, v6, v7')
    reduce_row(256)
    e(f'''v_mov_b32 v{vT0}, {fbits(1e-5):#x}
    v_fmac_f32 v{vT0}, {fbits(1/640):#x}, v{vS}
    v_rsq_f32 v{vS}, v{vT0}''')
    for i in range(40):
        e(f'v_mul_f32 v{vF+i}, v{vF+i}, v{vS}')
    for i in range(20):
        e(f'v_cvt_pk_bf16_f32 v{vX+i}, v{vF+2*i}, v{vF+2*i+1}')
    e(f'''v_and_b32 v{vT1}, 63, v0
    v_lshlrev_b32 v{vA}, 4, v{vT1}
    s_mul_i32 s17, s2, 20480
    s_mul_i32 s18, s16, 5120
    s_add_u32 s17, s17, s18
    s_add_u32 s17, s17, {L.XNF}''')
    for q in range(5):
        if q == 4: e('s_add_u32 s17, s17, 4096')
        e(f'buffer_store_dwordx4 v[{vX+4*q}:{vX+4*q+3}], v{vA}, s[4:7], s17 offen offset:{(q%4)*1024}')

def emit_probe(k):
    e = k.e
    Lnv = k.label('novote'); Lnl = k.label('notlast')
    e(f'''s_load_dwordx2 s[12:13], s[0:1], 96
    s_load_dwordx2 s[24:25], s[0:1], 88
    v_lshrrev_b32 v13, 6, v0
    s_nop 0
    v_readfirstlane_b32 s16, v13
    s_cmp_lg_u32 s16, 0
    s_cbranch_scc1 {Lnv}
    s_waitcnt lgkmcnt(0)
    s_mov_b32 s4, s12
    s_mov_b32 s5, s13
    s_mov_b32 s6, 0x10000000
    s_mov_b32 s7, 0x20000
    s_sub_u32 s21, 0, s12
    s_and_b32 s21, s21, 0x1fffff
    s_add_u32 s21, s21, {L.PARTR}
    v_mov_b32 v8, -1
    s_getreg_b32 s26, hwreg(HW_REG_XCC_ID, 0, 3)
    s_lshr_b32 s22, s3, 4
    s_lshl_b32 s22, s22, 14
    s_and_b32 s23, s3, 15
    s_lshl_b32 s23, s23, 9
    s_add_u32 s22, s22, s23
    s_add_u32 s22, s22, {L.PROBE_OFF}
    s_add_u32 s22, s22, s21
    v_and_b32 v13, 63, v0
    v_and_b32 v14, 3, v13
    v_lshlrev_b32 v14, 7, v14
    v_lshrrev_b32 v15, 2, v13
    v_lshl_add_u32 v14, v15, 13, v14
    v_mov_b32 v16, {OOB:#x}
    v_cmp_gt_u32 vcc, 8, v13
    v_cndmask_b32 v14, v16, v14, vcc
    buffer_store_dword v8, v14, s[4:7], s22 offen sc1
    v_cmp_eq_u32 vcc, 0, v13
    v_mov_b32 v14, 0
    v_cndmask_b32 v14, v16, v14, vcc
    s_mov_b32 s27, -1
    s_mov_b32 s28, -1
    s_waitcnt vmcnt(0) lgkmcnt(0)''')
    for q in range(4):
        for par in range(2):
            e(f'''s_add_u32 s23, s22, {par*8192 + q*128}
            s_memtime s[18:19]
            s_waitcnt lgkmcnt(0)
            buffer_load_dword v15, v14, s[4:7], s23 offen sc1
            s_waitcnt vmcnt(0)
            s_memtime s[30:31]
            s_waitcnt lgkmcnt(0)
            s_sub_u32 s29, s30, s18
            s_min_u32 s{27+par}, s{27+par}, s29''')
    e(f'''s_cmp_lt_u32 s28, s27
    s_cselect_b32 s27, 1, 0
    s_lshr_b32 s26, s26, 2
    s_xor_b32 s27, s27, s26
    s_lshl_b32 s27, s27, 16
    s_add_u32 s27, s27, 1
    s_mov_b32 s8, s24
    s_mov_b32 s9, s25
    s_mov_b32 s10, 256
    s_mov_b32 s11, 0x20000
    v_mov_b32 v15, s27
    buffer_atomic_add v15, v14, s[8:11], 0 offen sc0
    s_waitcnt vmcnt(0)
    v_readfirstlane_b32 s28, v15
    s_add_u32 s28, s28, s27
    s_and_b32 s29, s28, 0xffff
    s_cmp_lg_u32 s29, 128
    s_cbranch_scc1 {Lnv}
    s_lshr_b32 s28, s28, 16
    s_cmp_gt_u32 s28, 64
    s_cselect_b32 s28, 1, 0
    v_mov_b32 v15, s28
    s_mov_b32 s23, {L.FLIP}
    buffer_store_dword v15, v14, s[4:7], s23 offen''')
    e(Lnv + ':')
```

```python
from asmgen import *
import layout as L
OOB = 0x80000000
NCH = 48
ABUF = 20480
LDS_SIZE = 3 * ABUF

def gen(name, res_from_input, nk=192, wbase=None, abase=None, out_to_dout=False, prof=None):
    k = Kernel(name, vgpr=128, agpr=0, sgpr=102 if prof is not None else 64); e = k.e; k.prof = prof
    wbase = L.WOP if wbase is None else wbase; abase = L.OT if abase is None else abase
    nch = nk // 4; assert nch % 3 != 1 or True
    srd = 's[4:7]'; srdx = 's[8:11]'
    vL16, vA, vT0, vT1, vRd, vX = 1, 2, 3, 4, 5, 6
    vAcc = 8
    vB = 32
    vAf = 80
    Lx = k.label('exit')
    e(f'''s_cmp_ge_u32 s2, 256
    s_cbranch_scc1 {Lx}
    s_load_dwordx2 s[12:13], s[0:1], 96
    s_load_dwordx2 s[14:15], s[0:1], 0
    s_load_dwordx2 s[48:49], s[0:1], 80''')
    k.ts(0)
    e(f'''    v_lshrrev_b32 v{vT0}, 6, v0
    v_and_b32 v{vT1}, 63, v0
    s_nop 0
    v_readfirstlane_b32 s16, v{vT0}
    v_lshlrev_b32 v{vL16}, 4, v{vT1}
    s_and_b32 s17, s2, 7
    s_lshl_b32 s17, s17, 2
    s_lshr_b32 s18, s2, 3
    s_and_b32 s19, s18, 3
    s_add_u32 s17, s17, s19
    s_lshr_b32 s18, s18, 2
    s_waitcnt lgkmcnt(0)
    s_mov_b32 s4, s12
    s_mov_b32 s5, s13
    s_mov_b32 s6, 0x10000000
    s_mov_b32 s7, 0x20000''')
    if res_from_input:
        e(f's_mov_b32 s8, s14\ns_mov_b32 s9, s15\ns_mov_b32 s10, {2048*1280}\ns_mov_b32 s11, 0x20000\ns_mov_b32 s20, 0')
    else:
        e(f's_mov_b32 s8, s12\ns_mov_b32 s9, s13\ns_mov_b32 s10, 0x10000000\ns_mov_b32 s11, 0x20000\ns_mov_b32 s20, {L.X1}')
    e(f's_mov_b32 s52, s48\ns_mov_b32 s53, s49\ns_mov_b32 s54, {2048*1280}\ns_mov_b32 s55, 0x20000')
    e(f'''s_mul_i32 s21, s18, 5
    s_mul_i32 s21, s21, {nk*1024}
    s_add_u32 s24, s21, {wbase}
    s_add_u32 s25, s24, {nk*1024}
    s_add_u32 s26, s25, {nk*1024}
    s_add_u32 s27, s26, {nk*1024}
    s_add_u32 s28, s27, {nk*1024}
    s_lshl_b32 s21, s17, 2
    s_add_u32 s21, s21, s16
    s_mul_i32 s22, s21, {nk*1024}
    s_add_u32 s22, s22, {abase}
    s_lshl_b32 s23, s16, 10
    v_add_u32 v{vA}, s23, v{vL16}
    s_mul_i32 s29, s16, 5120''')
    def issue(c_slot):
        for i in range(5):
            e(f's_add_u32 m0, s29, {c_slot*ABUF + i*1024}')
            e('s_nop 0')
            e(f'buffer_load_dwordx4 v{vA}, {srd}, s{24+i} offen lds')
        for q in range(4):
            b = vB + 16 * c_slot + 4 * q
            e(f'buffer_load_dwordx4 v[{b}:{b+3}], v{vL16}, {srd}, s22 offen offset:{q*1024}')
        e(f'''v_add_u32 v{vA}, 0x1000, v{vA}
        s_add_u32 s22, s22, 4096''')
    issue(0); issue(1)
    def compute(slot, first):
        def rd(q):
            for i in range(5):
                b = vAf + 20 * (q % 2) + 4 * i
                e(f'ds_read_b128 v[{b}:{b+3}], v{vL16} offset:{slot*ABUF + (q*5+i)*1024}')
        rd(0)
        for q in range(4):
            if q < 3:
                rd(q + 1); e('s_waitcnt lgkmcnt(5)')
            else: e('s_waitcnt lgkmcnt(0)')
            bb = vB + 16 * slot + 4 * q
            for i in range(5):
                a = vAf + 20 * (q % 2) + 4 * i
                acc = f'v[{vAcc+4*i}:{vAcc+4*i+3}]'
                c = '0' if (first and q == 0) else acc
                e(f'v_mfma_f32_16x16x32_bf16 {acc}, v[{a}:{a+3}], v[{bb}:{bb+3}], {c}')
    e('s_waitcnt vmcnt(9)\ns_barrier')
    k.ts(1)
    issue(2); compute(0, True)
    rem = nch - 3
    trips, extra = rem // 3, rem % 3
    Ll = k.label('loop')
    if trips:
        e('s_mov_b32 s30, 0')
        e(Ll + ':')
        for slot in (1, 2, 0):
            e('s_waitcnt vmcnt(9)\ns_barrier')
            issue((slot + 2) % 3); compute(slot, False)
        e(f's_add_u32 s30, s30, 1\ns_cmp_lt_u32 s30, {trips}\ns_cbranch_scc1 {Ll}')
    c = 1 + 3 * trips
    for _ in range(extra):
        e('s_waitcnt vmcnt(9)\ns_barrier')
        issue((c + 2) % 3); compute(c % 3, False); c += 1
    e('s_waitcnt vmcnt(9)\ns_barrier'); compute(c % 3, False); c += 1
    e('s_waitcnt vmcnt(0)\ns_barrier'); compute(c % 3, False)
    k.ts(2)
    e(f'''v_and_b32 v{vT0}, 63, v0
    v_and_b32 v{vT1}, 15, v{vT0}
    v_lshrrev_b32 v{vT0}, 4, v{vT0}
    s_lshl_b32 s21, s17, 6
    s_lshl_b32 s23, s16, 4
    s_add_u32 s21, s21, s23
    v_add_u32 v{vT1}, s21, v{vT1}
    v_mul_u32_u24 v{vX}, 1280, v{vT1}
    v_lshl_add_u32 v{vX}, v{vT0}, 4, v{vX}
    s_mul_i32 s21, s18, 5''')
    for i in range(5):
        e(f'''s_add_u32 s23, s21, {i}
        s_lshr_b32 s31, s23, 1
        s_lshl_b32 s31, s31, 6
        s_and_b32 s23, s23, 1
        s_lshl_b32 s23, s23, 3
        s_add_u32 s{32+i}, s31, s23
        s_add_u32 s{40+i}, s{32+i}, s20
        buffer_load_dwordx2 v[{vB+2*i}:{vB+2*i+1}], v{vX}, {srdx}, s{40+i} offen''')
    e('s_waitcnt vmcnt(0)')
    for i in range(5):
        a = vAcc + 4 * i; xr = vB + 2 * i; t = vAf
        e(f'''v_cvt_pk_bf16_f32 v{t}, v{a}, v{a+1}
        v_cvt_pk_bf16_f32 v{t+1}, v{a+2}, v{a+3}
        v_lshlrev_b32 v{a}, 16, v{t}
        v_and_b32 v{a+1}, 0xffff0000, v{t}
        v_lshlrev_b32 v{a+2}, 16, v{t+1}
        v_and_b32 v{a+3}, 0xffff0000, v{t+1}
        v_lshlrev_b32 v{t+2}, 16, v{xr}
        v_and_b32 v{t+3}, 0xffff0000, v{xr}
        v_lshlrev_b32 v{t+4}, 16, v{xr+1}
        v_and_b32 v{t+5}, 0xffff0000, v{xr+1}
        v_add_f32 v{a}, v{a}, v{t+2}
        v_add_f32 v{a+1}, v{a+1}, v{t+3}
        v_add_f32 v{a+2}, v{a+2}, v{t+4}
        v_add_f32 v{a+3}, v{a+3}, v{t+5}
        v_cvt_pk_bf16_f32 v{xr}, v{a}, v{a+1}
        v_cvt_pk_bf16_f32 v{xr+1}, v{a+2}, v{a+3}
        ''')
        if out_to_dout:
            e(f'buffer_store_dwordx2 v[{xr}:{xr+1}], v{vX}, s[52:55], s{32+i} offen {stf("outb")}')
        else:
            e(f'''s_add_u32 s23, s{32+i}, {L.X1}
            buffer_store_dwordx2 v[{xr}:{xr+1}], v{vX}, {srd}, s23 offen {stf("outb")}''')
    k.ts(3)
    k.ts_flush(4, srd, v0=120)
    e(Lx + ':')
    e('s_endpgm')
    return k
```

```python
from asmgen import *
import layout as L
import ln
OOB = 0x80000000
N1, N2, N3, N4 = 3 * 96 * 20, 10 * 192, 3 * 8 * 40, 10 * 32
NW = N1 + N2 + N3 + N4
NWG = NW // 4

def gen(name='prep_kernel', NT=''):
    k = Kernel(name, vgpr=80, agpr=0, sgpr=64); e = k.e
    ws = 's[4:7]'; src = 's[8:11]'
    vL, vI, vG, vA, vL16, vT = 1, 2, 3, 4, 5, 6
    vD = 16
    vPk = 48
    Lx = k.label('exit'); S2 = k.label('s2'); S3 = k.label('s3'); S4 = k.label('s4')
    Lln = k.label('notln'); Lpk = k.label('pack')
    e(f's_cmp_ge_u32 s2, 128\ns_cbranch_scc1 {Lln}')
    ln.emit_ln(k, True, copy_x1=True)
    e('s_endpgm')
    e(Lln + ':')
    e(f'''s_sub_u32 s2, s2, 128
    s_cmp_ge_u32 s2, {NWG}
    s_cbranch_scc1 {Lx}
    s_load_dwordx2 s[12:13], s[0:1], 96
    s_load_dwordx4 s[16:19], s[0:1], 16
    s_load_dwordx4 s[20:23], s[0:1], 32
    s_load_dwordx4 s[24:27], s[0:1], 64
    v_lshrrev_b32 v{vT}, 6, v0
    v_and_b32 v{vL}, 63, v0
    s_nop 0
    v_readfirstlane_b32 s14, v{vT}
    v_lshlrev_b32 v{vL16}, 4, v{vL}
    s_lshl_b32 s15, s2, 2
    s_add_u32 s15, s15, s14
    s_add_u32 s28, s15, {N1 + N2}
    s_sub_u32 s29, s15, {N3 + N4}
    s_cmp_lt_u32 s15, {N3 + N4}
    s_cselect_b32 s15, s28, s29
    s_waitcnt lgkmcnt(0)
    s_mov_b32 s4, s12
    s_mov_b32 s5, s13
    s_mov_b32 s6, 0x10000000
    s_mov_b32 s7, 0x20000
    s_mov_b32 s11, 0x20000
    v_and_b32 v{vI}, 15, v{vL}
    v_lshrrev_b32 v{vG}, 4, v{vL}''')
    def gather_pack_store(jj_off, frag_off, frag_dst, addr_regs=None):
        for i in range(4):
            for jj in range(8):
                off = frag_off[i] + jj_off[jj]
                va = vA if addr_regs is None else addr_regs[jj]
                e(f's_mov_b32 s29, {off}')
                e(f'buffer_load_ushort v{vD+8*i+jj}, v{va}, {src}, s29 offen')
        for i in range(4):
            e(f's_waitcnt vmcnt({8*(3-i) + i})')
            for q in range(4):
                e(f'v_lshl_or_b32 v{vPk+4*i+q}, v{vD+8*i+2*q+1}, 16, v{vD+8*i+2*q}')
            frag_dst(i)
            e(f'buffer_store_dwordx4 v[{vPk+4*i}:{vPk+4*i+3}], v{vL16}, {ws}, s30 offen {NT}')
    ROWS = 144
    LB = 512
    vLw, vR1, vR2 = 12, 13, 14
    def tr_block(rowstride, pi_rows, sigma_cols, dst):
        e(f'''v_lshrrev_b32 v{vT}, 3, v{vL}
        v_mul_u32_u24 v{vLw}, {ROWS}, v{vT}
        v_and_b32 v{vT}, 7, v{vL}
        v_lshl_add_u32 v{vLw}, v{vT}, 4, v{vLw}
        s_mul_i32 s36, s14, {32*ROWS}
        s_add_u32 s36, s36, {LB}
        v_add_u32 v{vLw}, s36, v{vLw}''')
        for q in range(4):
            e(f's_mov_b32 s29, {q*8*rowstride}')
            e(f'buffer_load_dwordx4 v[{vD+4*q}:{vD+4*q+3}], v{vA}, {src}, s29 offen')
        e(f'''v_bfe_u32 v{vT}, v{vL}, 2, 2
        v_lshlrev_b32 v{vR1}, {2 if pi_rows else 3}, v{vG}
        v_add_u32 v{vR1}, v{vR1}, v{vT}
        v_mul_u32_u24 v{vR1}, {ROWS}, v{vR1}
        v_and_b32 v{vT}, 3, v{vL}
        v_lshl_add_u32 v{vR1}, v{vT}, {4 if sigma_cols else 3}, v{vR1}
        v_add_u32 v{vR1}, s36, v{vR1}''')
        second = (16 if pi_rows else 4) * ROWS
        for q in range(4):
            e(f's_waitcnt vmcnt({3-q})')
            e(f'ds_write_b128 v{vLw}, v[{vD+4*q}:{vD+4*q+3}] offset:{q*8*ROWS}')
        e('s_waitcnt lgkmcnt(0)')
        for i in range(4):
            coff = (64 * (i >> 1) + 8 * (i & 1)) if sigma_cols else 32 * i
            e(f'ds_read_b64_tr_b16 v[{vPk+4*i}:{vPk+4*i+1}], v{vR1} offset:{coff}')
            e(f'ds_read_b64_tr_b16 v[{vPk+4*i+2}:{vPk+4*i+3}], v{vR1} offset:{coff+second}')
        for i in range(4):
            e(f's_waitcnt lgkmcnt({2*(3-i)})')
            dst(i)
            e(f'buffer_store_dwordx4 v[{vPk+4*i}:{vPk+4*i+3}], v{vL16}, {ws}, s30 offen {NT}')
    e(f'''s_cmp_ge_u32 s15, {N1}
    s_cbranch_scc1 {S2}''')
    e(f'''s_mul_hi_u32 s31, s15, {(1<<32)//1920 + 1}
    s_mul_i32 s32, s31, 1920
    s_sub_u32 s32, s15, s32
    s_mul_hi_u32 s33, s32, {(1<<32)//20 + 1}
    s_mul_i32 s34, s33, 20
    s_sub_u32 s34, s32, s34
    s_cmp_eq_u32 s31, 0
    s_cselect_b32 s8, s16, s18
    s_cselect_b32 s9, s17, s19
    s_cmp_eq_u32 s31, 2
    s_cselect_b32 s8, s20, s8
    s_cselect_b32 s9, s21, s9
    s_mov_b32 s10, {640*12288}
    s_mul_i32 s35, s31, {L.WKP - L.WQP}
    s_add_u32 s35, s35, {L.WQP}''')
    assert L.WVP - L.WKP == L.WKP - L.WQP
    e(f'''v_lshrrev_b32 v{vT}, 3, v{vL}
    s_lshl_b32 s36, s34, 5
    v_add_u32 v{vT}, s36, v{vT}
    s_mov_b32 s37, 12288
    v_mul_lo_u32 v{vA}, v{vT}, s37
    s_lshl_b32 s36, s33, 7
    v_and_b32 v{vT}, 7, v{vL}
    v_lshl_add_u32 v{vA}, v{vT}, 4, v{vA}
    v_add_u32 v{vA}, s36, v{vA}''')
    def d1(i):
        e(f'''s_lshl_b32 s30, s33, 2
        s_add_u32 s30, s30, {i}
        s_mul_i32 s30, s30, 20
        s_add_u32 s30, s30, s34
        s_lshl_b32 s30, s30, 10
        s_add_u32 s30, s30, s35''')
    tr_block(12288, False, False, d1)
    e(f's_branch {Lx}')
    e(S2 + ':')
    e(f'''s_sub_u32 s15, s15, {N1}
    s_cmp_ge_u32 s15, {N2}
    s_cbranch_scc1 {S3}''')
    e(f'''s_mul_hi_u32 s33, s15, {(1<<32)//192 + 1}
    s_mul_i32 s34, s33, 192
    s_sub_u32 s34, s15, s34
    s_mov_b32 s8, s22
    s_mov_b32 s9, s23
    s_mov_b32 s10, {6144*1280}''')
    e(f'''v_lshrrev_b32 v{vT}, 3, v{vL}
    s_lshl_b32 s36, s34, 5
    v_add_u32 v{vT}, s36, v{vT}
    v_mul_u32_u24 v{vA}, 1280, v{vT}
    s_lshl_b32 s36, s33, 7
    v_and_b32 v{vT}, 7, v{vL}
    v_lshl_add_u32 v{vA}, v{vT}, 4, v{vA}
    v_add_u32 v{vA}, s36, v{vA}''')
    def d2(i):
        e(f'''s_lshl_b32 s30, s33, 2
        s_add_u32 s30, s30, {i}
        s_mul_i32 s30, s30, 192
        s_add_u32 s30, s30, s34
        s_lshl_b32 s30, s30, 10
        s_add_u32 s30, s30, {L.WOP}''')
    tr_block(1280, True, True, d2)
    e(f's_branch {Lx}')
    e(S3 + ':')
    e(f'''s_sub_u32 s15, s15, {N2}
    s_cmp_ge_u32 s15, {N3}
    s_cbranch_scc1 {S4}''')
    e(f'''s_mul_hi_u32 s33, s15, {(1<<32)//40 + 1}
    s_mul_i32 s34, s33, 40
    s_sub_u32 s34, s15, s34
    s_mov_b32 s8, s24
    s_mov_b32 s9, s25
    s_mov_b32 s10, {640*3840}''')
    e(f'''v_lshrrev_b32 v{vT}, 5, v{vL}
    v_lshlrev_b32 v{vT}, 3, v{vT}
    s_lshl_b32 s36, s34, 4
    v_add_u32 v{vT}, s36, v{vT}
    v_mul_u32_u24 v{vA}, 3840, v{vT}
    v_and_b32 v{vT}, 31, v{vL}
    v_lshl_add_u32 v{vA}, v{vT}, 1, v{vA}
    s_mul_i32 s36, s33, 160
    v_add_u32 v{vA}, s36, v{vA}
    v_cmp_gt_u32 vcc, 20, v{vT}
    v_mov_b32 v{vT}, {OOB:#x}
    v_cndmask_b32 v{vA}, v{vT}, v{vA}, vcc''')
    def d3(i):
        e(f'''s_lshl_b32 s30, s33, 2
        s_add_u32 s30, s30, {i}
        s_mul_i32 s30, s30, 40
        s_add_u32 s30, s30, s34
        s_lshl_b32 s30, s30, 10
        s_add_u32 s30, s30, {L.WB1}''')
    gather_pack_store([jj * 3840 for jj in range(8)], [40 * i for i in range(4)], d3)
    e(f's_branch {Lx}')
    e(S4 + ':')
    e(f'''s_sub_u32 s15, s15, {N3}
    s_mul_hi_u32 s33, s15, {(1<<32)//32}
    s_and_b32 s34, s15, 31
    s_lshr_b32 s33, s15, 5
    s_mov_b32 s8, s26
    s_mov_b32 s9, s27
    s_mov_b32 s10, {640*1280}''')
    e(f'''v_lshrrev_b32 v{vT}, 1, v{vG}
    v_lshlrev_b32 v{vT}, 4, v{vT}
    v_and_b32 v7, 1, v{vG}
    v_lshl_add_u32 v{vT}, v7, 2, v{vT}
    v_mov_b32 v8, v{vT}
    s_mul_i32 s36, s34, 20
    v_add_u32 v{vT}, s36, v{vT}
    v_mul_u32_u24 v{vA}, 1280, v{vT}
    v_lshrrev_b32 v{vT}, 2, v{vI}
    v_lshl_add_u32 v{vA}, v{vT}, 4, v{vA}
    v_and_b32 v{vT}, 3, v{vI}
    v_lshl_add_u32 v{vA}, v{vT}, 1, v{vA}
    s_lshl_b32 s36, s33, 7
    v_add_u32 v{vA}, s36, v{vA}
    v_mov_b32 v9, {OOB:#x}
    v_cmp_gt_u32 vcc, 17, v8
    v_cndmask_b32 v10, v9, v{vA}, vcc
    v_cmp_gt_u32 vcc, 9, v8
    v_cndmask_b32 v11, v9, v{vA}, vcc''')
    def d4(i):
        e(f'''s_lshl_b32 s30, s33, 2
        s_add_u32 s30, s30, {i}
        s_lshl_b32 s30, s30, 5
        s_add_u32 s30, s30, s34
        s_lshl_b32 s30, s30, 10
        s_add_u32 s30, s30, {L.WB2}''')
    gather_pack_store([(8 * (jj >> 2) + (jj & 3)) * 1280 for jj in range(8)], [(32 * (i >> 1) + 4 * (i & 1)) * 2 for i in range(4)], d4,
                      addr_regs=[10] * 4 + [11] * 4)
    e(Lx + ':')
    e('s_endpgm')
    return k, NWG + 128, 512 + 4 * 32 * 144
```

```python
from asmgen import *
import layout as L

OOB = 0x80000000
LDS_X = 0
XBUF = 40960
LDS_SIZE = 2 * XBUF

PLAN = [
    [('pair', 'k', 0), ('pair', 'k', 1), ('v', 0)],
    [('pair', 'k', 2), ('v', 1), ('v', 2), ('v', 3)],
    [('pair', 'q', 0), ('v', 4), ('v', 5)],
    [('pair', 'q', 1), ('pair', 'q', 2)],
]

def emit(k, sWS, sX, sC, sW, sTO, Lexit, nseg, LEAD, census_wait, sMODE, preread=1, pace=0, spread=0, prof=False, predist=1, tlbw=0):
    e = k.e
    sH, sHalf, sS, sT0, sT1, sT2, sT3 = 15, 16, 17, 34, 35, 36, 37
    sXs, sOutK, sOutQ, sOutV, sFlag, sProg, sBuf = 20, 21, 22, 23, 24, 25, 26
    sNK, sNV, sNQ = 27, 28, 30
    vH32 = 5
    vL16, vZ, vRd = 1, 4, 7
    vT0, vT1 = 28, 29
    vAcc = 32
    vXf = 72
    vPk = 8
    vScr = 16
    vW = 96
    srd = f's[{sWS}:{sWS+3}]'
    def tick(acc):
        if not prof: return
        e(f'''s_memtime s[40:41]
        s_waitcnt lgkmcnt(0)
        s_sub_u32 s43, s40, s42
        s_add_u32 s{acc}, s{acc}, s43
        s_mov_b32 s42, s40''')
    def wreg(slot, ks):
        if slot < 3: return f'a[{slot*80+4*ks}:{slot*80+4*ks+3}]'
        b = vW + (slot - 3) * 80 + 4 * ks
        return f'v[{b}:{b+3}]'
    e(f'''s_sub_u32 s{sT0}, s{sC}, 24
    s_lshr_b32 s{sT1}, s{sT0}, 1
    s_and_b32 s{sHalf}, s{sT0}, 1
    s_lshl_b32 s{sH}, s{sX}, 2
    s_add_u32 s{sH}, s{sH}, s{sT1}
    s_lshl_b32 s{sFlag}, s{sX}, 3
    s_add_u32 s{sFlag}, s{sFlag}, s{sT0}
    s_lshl_b32 s{sFlag}, s{sFlag}, 7
    s_add_u32 s{sFlag}, s{sFlag}, {L.PROG2}
    s_lshl_b32 s{sProg}, s{sX}, 7
    s_add_u32 s{sProg}, s{sProg}, {L.PROG}
    v_and_b32 v{vT0}, 63, v0
    v_lshlrev_b32 v{vL16}, 4, v{vT0}
    v_mov_b32 v{vT1}, {OOB:#x}
    v_cmp_eq_u32 vcc, 0, v{vT0}
    v_mov_b32 v{vZ}, 0
    v_cndmask_b32 v{vZ}, v{vT1}, v{vZ}, vcc
    v_cmp_gt_u32 vcc, 32, v{vT0}
    v_cndmask_b32 v{vH32}, v{vT1}, v{vL16}, vcc''')
    if tlbw:
        e(f'''v_and_b32 v{vT0}, 63, v0
        v_and_b32 v8, 15, v{vT0}
        v_lshrrev_b32 v9, 4, v{vT0}
        v_mul_u32_u24 v10, 49152, v8
        s_mov_b32 s{sT1}, {L.VT - L.KT}
        v_mul_lo_u32 v11, v9, s{sT1}
        v_add_u32 v10, v10, v11
        s_mul_i32 s{sT0}, s{sH}, {64*12288}
        v_add_u32 v10, s{sT0}, v10
        v_add_u32 v10, {L.KT}, v10
        v_mul_u32_u24 v11, 163840, v8
        v_add_u32 v11, {L.XNF}, v11
        v_cmp_eq_u32 vcc, 3, v9
        v_cndmask_b32 v10, v10, v11, vcc
        buffer_load_dword v20, v10, {srd}, 0 offen''')
        assert L.QT - L.VT == L.VT - L.KT
    Lw = [k.label('pw%d_' % w) for w in range(4)]
    for w in range(3):
        e(f's_cmp_eq_u32 s{sW}, {w}\ns_cbranch_scc1 {Lw[w]}')
    e(f's_branch {Lw[3]}')

    def dma(w, sSeg, bufreg):
        e(f'''s_mul_i32 s{sXs}, s{sSeg}, {XBUF}
        s_add_u32 s{sXs}, s{sXs}, {L.XNF + w*10240}''')
        for grp in range(3):
            e(f's_add_u32 m0, s{bufreg}, {LDS_X + w*10240 + grp*4096}')
            e('s_nop 0')
            for q in range(4 if grp < 2 else 2):
                e(f'buffer_load_dwordx4 v{vL16}, {srd}, s{sXs} offen offset:{q*1024} lds')
            if grp < 2: e(f's_add_u32 s{sXs}, s{sXs}, 4096')
    def out_offsets(sSeg, dK, dQ, dV):
        e(f'''s_lshl_b32 s{sT0}, s{sH}, 6
        s_add_u32 s{sT0}, s{sT0}, s{sSeg}
        s_mul_i32 s{sT0}, s{sT0}, 12288
        s_mul_i32 s{sT1}, s{sHalf}, 3072
        s_add_u32 s{sT1}, s{sT1}, s{sT0}
        s_add_u32 s{dK}, s{sT1}, {L.KT}''')
        if dQ is not None: e(f's_add_u32 s{dQ}, s{sT1}, {L.QT}')
        e(f'''s_mul_i32 s{sT1}, s{sHalf}, 6144
        s_add_u32 s{sT1}, s{sT1}, s{sT0}
        s_add_u32 s{dV}, s{sT1}, {L.VT}''')
    def preread_blocks(plan, dK, dV, w=None, sSeg=None):
        for u in plan:
            if u[0] == 'pair' and (u[1] == 'k' or preread >= 2):
                base = dK if u[1] == 'k' else sNQ
                for T in range(2):
                    e(f's_add_u32 s{sT0}, s{base}, {T*6144 + u[2]*1024}')
                    e(f'buffer_load_dwordx4 v[{vScr}:{vScr+3}], v{vL16}, {srd}, s{sT0} offen sc1')
            elif u[0] == 'v':
                e(f's_add_u32 s{sT0}, s{dV}, {u[1]*1024}')
                e(f'buffer_load_dwordx4 v[{vScr}:{vScr+3}], v{vL16}, {srd}, s{sT0} offen sc1')
        if preread >= 3:
            if w == 0:
                e(f'''s_lshl_b32 s{sT0}, s{sSeg}, 5
                s_add_u32 s{sT0}, s{sT0}, s{sH}
                s_mul_i32 s{sT0}, s{sT0}, 3072
                s_mul_i32 s{sT1}, s{sHalf}, 1536
                s_add_u32 s{sT0}, s{sT0}, s{sT1}
                s_add_u32 s{sT1}, s{sT0}, {L.KM}
                buffer_load_dwordx4 v[{vScr}:{vScr+3}], v{vL16}, {srd}, s{sT1} offen sc1
                buffer_load_dwordx4 v[{vScr}:{vScr+3}], v{vH32}, {srd}, s{sT1} offen offset:1024 sc1
                s_add_u32 s{sT1}, s{sT0}, {L.VM}
                buffer_load_dwordx4 v[{vScr}:{vScr+3}], v{vL16}, {srd}, s{sT1} offen sc1
                buffer_load_dwordx4 v[{vScr}:{vScr+3}], v{vH32}, {srd}, s{sT1} offen offset:1024 sc1''')
            else:
                e(f'''s_lshl_b32 s{sT0}, s{sSeg}, 1
                s_add_u32 s{sT0}, s{sT0}, s{sHalf}
                s_mul_i32 s{sT0}, s{sT0}, {192*1024}
                s_mul_i32 s{sT1}, s{sH}, 6144
                s_add_u32 s{sT0}, s{sT0}, s{sT1}
                s_add_u32 s{sT0}, s{sT0}, {L.OT + 2*(w-1)*1024}
                buffer_load_dwordx4 v[{vScr}:{vScr+3}], v{vL16}, {srd}, s{sT0} offen sc1
                buffer_load_dwordx4 v[{vScr}:{vScr+3}], v{vL16}, {srd}, s{sT0} offen offset:1024 sc1''')

    for w in range(4):
        plan = PLAN[w]
        slots = []
        for u in plan:
            if u[0] == 'pair': slots += [(u[1], 2 * u[2]), (u[1], 2 * u[2] + 1)]
            else: slots.append(('v', u[1]))
        nst = sum(2 if u[0] == 'pair' else 1 for u in plan)
        e(Lw[w] + ':')
        e(f's_mov_b32 s{sS}, 0\ns_mov_b32 s{sBuf}, 0')
        dma(w, sS, sBuf)
        if preread:
            out_offsets(sS, sNK, sNQ, sNV); preread_blocks(plan, sNK, sNV, w, sS)
        nld = 0
        for si, (mat, etl) in enumerate(slots):
            base = {'q': L.WQP, 'k': L.WKP, 'v': L.WVP}[mat]
            e(f'''s_mul_i32 s{sT0}, s{sH}, 12
            s_mul_i32 s{sT1}, s{sHalf}, 6
            s_add_u32 s{sT0}, s{sT0}, s{sT1}
            s_add_u32 s{sT0}, s{sT0}, {etl}
            s_mul_i32 s{sT0}, s{sT0}, 20480
            s_add_u32 s{sT0}, s{sT0}, {base}''')
            for ks in range(20):
                if ks and ks % 4 == 0: e(f's_add_u32 s{sT0}, s{sT0}, 4096')
                e(f'buffer_load_dwordx4 {wreg(si, ks)}, v{vL16}, {srd}, s{sT0} offen offset:{(ks%4)*1024}')
                nld += 1
                if nld % 20 == 0 and nld >= 40: e('s_waitcnt vmcnt(20)')
        census_wait()
        Lsl = k.label('pslow')
        e(f's_cmp_lg_u32 s{sMODE}, 0\ns_cbranch_scc1 {Lsl}')
        for SF in ('', 'sc1'):
            if SF: e(Lsl + ':')
            Ltop = k.label('ptop'); Lgo = k.label('pgo'); Lpl = k.label('ppoll'); Lnd = k.label('pnodma'); Lnf = k.label('pnofl')
            if prof:
                e('s_memtime s[40:41]\ns_waitcnt lgkmcnt(0)\ns_mov_b32 s42, s40\ns_mov_b32 s92, 0\ns_mov_b32 s94, 0\ns_mov_b32 s96, 0\ns_mov_b32 s44, 0')
            e(Ltop + ':')
            e(f'''s_cmp_lt_u32 s{sS}, {LEAD}
            s_cbranch_scc1 {Lgo}
            s_sub_u32 s{sT2}, s{sS}, {LEAD}''')
            e(Lpl + ':')
            e(f'''buffer_load_dword v{vT0}, v{vZ}, {srd}, s{sProg} offen sc1
            s_waitcnt vmcnt(0)
            v_readfirstlane_b32 s{sT0}, v{vT0}
            s_cmp_ge_i32 s{sT0}, s{sT2}
            s_cbranch_scc1 {Lgo}
            s_sleep 8
            s_sub_u32 s{sTO}, s{sTO}, 1
            s_cbranch_scc0 {Lpl}
            s_mov_b32 s{sTO}, 0''')
            e(Lgo + ':')
            tick(92)
            e(f'''s_waitcnt vmcnt(0)
            s_barrier''')
            tick(94)
            e(f'''
            v_add_u32 v{vRd}, s{sBuf}, v{vL16}
            s_xor_b32 s{sBuf}, s{sBuf}, {XBUF}
            s_add_u32 s{sT3}, s{sS}, 1
            s_cmp_ge_u32 s{sT3}, {nseg}
            s_cbranch_scc1 {Lnd}''')
            if not spread:
                dma(w, sT3, sBuf)
                if preread:
                    out_offsets(sT3, sNK, sNQ, sNV); preread_blocks(plan, sNK, sNV, w, sT3)
            e(Lnd + ':')
            if spread:
                e(f'''s_min_u32 s{sT3}, s{sT3}, {nseg-1}
                s_mul_i32 s{sXs}, s{sT3}, {XBUF}
                s_add_u32 s{sXs}, s{sXs}, {L.XNF + w*10240}
                s_add_u32 s29, s{sBuf}, {LDS_X + w*10240}''')
                if preread: out_offsets(sT3, sNK, None, sNV)
                pre = []
                if preread:
                    for u in plan:
                        if u[0] == 'pair' and u[1] == 'k':
                            for T in range(2): pre.append((sNK, T*6144 + u[2]*1024))
                        elif u[0] == 'v': pre.append((sNV, u[1]*1024))
            out_offsets(sS, sOutK, sOutQ, sOutV)
            def xr(ks, T):
                b = vXf + (ks % 3) * 8 + T * 4
                return f'v[{b}:{b+3}]'
            def rd(ks):
                for T in range(2):
                    e(f'ds_read_b128 {xr(ks, T)}, v{vRd} offset:{LDS_X + (T*20+ks)*1024}')
            rd(0); rd(1)
            for ks in range(20):
                if spread:
                    if ks % 2 == 0:
                        q = ks // 2
                        e(f's_add_u32 m0, s29, {q*1024}')
                        e(f's_add_u32 s{sT0}, s{sXs}, {q*1024}')
                        e(f'buffer_load_dwordx4 v{vL16}, {srd}, s{sT0} offen lds')
                    elif pre:
                        so, off = pre.pop(0)
                        e(f's_add_u32 s{sT0}, s{so}, {off}')
                        e(f'buffer_load_dwordx4 v[{vScr}:{vScr+3}], v{vL16}, {srd}, s{sT0} offen sc1')
                if ks + 2 < 20:
                    rd(ks + 2); e('s_waitcnt lgkmcnt(4)')
                elif ks + 1 < 20: e('s_waitcnt lgkmcnt(2)')
                else: e('s_waitcnt lgkmcnt(0)')
                for si, (mat, etl) in enumerate(slots):
                    for T in range(2):
                        acc = f'v[{vAcc+8*si+4*T}:{vAcc+8*si+4*T+3}]'
                        c = '0' if ks == 0 else acc
                        if mat == 'v': e(f'v_mfma_f32_16x16x32_bf16 {acc}, {xr(ks, T)}, {wreg(si, ks)}, {c}')
                        else: e(f'v_mfma_f32_16x16x32_bf16 {acc}, {wreg(si, ks)}, {xr(ks, T)}, {c}')
                    if pace >= 100: e(f's_nop {pace-100}')
                if 0 < pace < 100: e(f's_sleep {pace}')
            si = 0; pk = 0
            for u in plan:
                if u[0] == 'pair':
                    so = sOutK if u[1] == 'k' else sOutQ
                    for T in range(2):
                        a0 = vAcc + 8 * si + 4 * T; a1 = a0 + 8
                        p = vPk + 4 * (pk % 2); pk += 1
                        e(f'''v_cvt_pk_bf16_f32 v{p}, v{a0}, v{a0+1}
                        v_cvt_pk_bf16_f32 v{p+1}, v{a0+2}, v{a0+3}
                        v_cvt_pk_bf16_f32 v{p+2}, v{a1}, v{a1+1}
                        v_cvt_pk_bf16_f32 v{p+3}, v{a1+2}, v{a1+3}
                        s_add_u32 s{sT0}, s{so}, {T * 6144 + u[2] * 1024}
                        buffer_store_dwordx4 v[{p}:{p+3}], v{vL16}, {srd}, s{sT0} offen {SF}''')
                    si += 2
                else:
                    a0 = vAcc + 8 * si; a1 = a0 + 4
                    p = vPk + 4 * (pk % 2); pk += 1
                    e(f'''v_cvt_pk_bf16_f32 v{p}, v{a0}, v{a0+1}
                    v_cvt_pk_bf16_f32 v{p+1}, v{a0+2}, v{a0+3}
                    v_cvt_pk_bf16_f32 v{p+2}, v{a1}, v{a1+1}
                    v_cvt_pk_bf16_f32 v{p+3}, v{a1+2}, v{a1+3}
                    s_add_u32 s{sT0}, s{sOutV}, {u[1]*1024}
                    buffer_store_dwordx4 v[{p}:{p+3}], v{vL16}, {srd}, s{sT0} offen {SF}''')
                    si += 1
            tick(44)
            e(f'''s_waitcnt vmcnt(0)
            s_barrier''')
            tick(96)
            e(f'''s_add_u32 s{sS}, s{sS}, 1''')
            if w == 0:
                e(f'''v_mov_b32 v{vT0}, s{sS}
                buffer_store_dword v{vT0}, v{vZ}, {srd}, s{sFlag} offen {SF}''')
            e(f'''s_cmp_lt_u32 s{sS}, {nseg}
            s_cbranch_scc1 {Ltop}''')
            if prof: e('s_mov_b32 s98, s44\ns_mov_b32 s99, 0x12345')
            e(f's_branch {Lexit}')
    return LDS_SIZE
```

```python
import struct, math
from asmgen import *
import layout as L
OOB = 0x80000000
def fbits(x): return struct.unpack('<I', struct.pack('<f', x))[0]
LDS_X = 0
LDS_ST = 81920
LDS_SIZE = LDS_ST

def gen(name='qkvb_kernel', prof=None):
    k = Kernel(name, vgpr=256, agpr=192, sgpr=102); e = k.e; k.prof = prof
    srd = 's[4:7]'
    vA, vT0, vT1, vS, vLd, vL16, vRd = 1, 2, 3, 4, 5, 8, 9
    vRaw = 16
    vF = 96
    Lx = k.label('exit')
    e(f'''s_cmp_ge_u32 s2, 256
    s_cbranch_scc1 {Lx}
    s_load_dwordx2 s[12:13], s[0:1], 96''')
    k.ts(0)
    e(f'''v_lshrrev_b32 v{vT0}, 6, v0
    v_and_b32 v{vT1}, 63, v0
    s_nop 0
    v_readfirstlane_b32 s16, v{vT0}
    v_lshlrev_b32 v{vL16}, 4, v{vT1}
    s_and_b32 s17, s2, 7
    s_lshr_b32 s18, s2, 3
    s_waitcnt lgkmcnt(0)
    s_mov_b32 s4, s12
    s_mov_b32 s5, s13
    s_mov_b32 s6, 0x10000000
    s_mov_b32 s7, 0x20000''')
    e(f'''s_mul_i32 s21, s18, 81920
    s_mul_i32 s22, s16, 20480
    s_add_u32 s21, s21, s22
    s_add_u32 s21, s21, {L.XNB}''')
    for grp in range(5):
        e(f's_add_u32 m0, s22, {grp*4096}\ns_nop 0')
        for q in range(4): e(f'buffer_load_dwordx4 v{vL16}, {srd}, s21 offen offset:{q*1024} lds')
        e('s_add_u32 s21, s21, 4096')
    e(f'''s_lshl_b32 s23, s17, 2
    s_add_u32 s23, s23, s16
    s_mul_i32 s24, s23, 40960
    s_add_u32 s24, s24, {L.WB1}
    s_add_u32 s25, s24, {32*40960}
    s_add_u32 s26, s25, {32*40960}''')
    NR = 16
    def wl(kk):
        for m in range(3):
            b = 12 * (kk % NR) + 4 * m
            e(f'buffer_load_dwordx4 a[{b}:{b+3}], v{vL16}, {srd}, s{24+m} offen offset:{(kk%4)*1024}')
        if kk % 4 == 3:
            for m in range(3): e(f's_add_u32 s{24+m}, s{24+m}, 4096')
    for kk in range(13): wl(kk)
    e('s_waitcnt vmcnt(39)')
    k.ts(1)
    vAcc = 96
    vXf = 16
    def xl(kk):
        for T in range(2):
            b = vXf + 8 * (kk % 3) + 4 * T
            e(f'ds_read_b128 v[{b}:{b+3}], v{vL16 if T == 0 else vRd} offset:{kk*1024}')
    e(f'v_add_u32 v{vRd}, 40960, v{vL16}')
    e('s_barrier')
    k.ts(2)
    xl(0); xl(1)
    PD = 13
    for kk in range(40):
        if kk + PD < 40: wl(kk + PD); e(f's_waitcnt vmcnt({3*PD})')
        else: e(f's_waitcnt vmcnt({3*(39-kk)})')
        if kk + 2 < 40: xl(kk + 2); e('s_waitcnt lgkmcnt(4)')
        else: e(f's_waitcnt lgkmcnt({2*(39-kk)})')
        for m in range(3):
            w = f'a[{12*(kk%NR)+4*m}:{12*(kk%NR)+4*m+3}]'
            for T in range(2):
                x = f'v[{vXf+8*(kk%3)+4*T}:{vXf+8*(kk%3)+4*T+3}]'
                acc = f'v[{vAcc+32*m+16*T}:{vAcc+32*m+16*T+15}]'
                c = '0' if kk == 0 else acc
                if m < 2: e(f'v_mfma_f32_32x32x16_bf16 {acc}, {w}, {x}, {c}')
                else: e(f'v_mfma_f32_32x32x16_bf16 {acc}, {x}, {w}, {c}')
    k.ts(3)
    cq = (20 ** -0.5) * math.log2(math.e)
    e(f'''s_lshl_b32 s21, s18, 1
    s_lshl_b32 s22, s23, 6
    s_add_u32 s21, s21, s22
    s_lshl_b32 s21, s21, 11
    s_add_u32 s27, s21, {L.QB}
    s_add_u32 s28, s21, {L.KB}
    s_add_u32 s29, s21, {L.VB}
    s_mov_b32 s30, {fbits(cq):#x}
    v_and_b32 v{vT0}, 31, v0
    v_cmp_eq_u32 s[32:33], 20, v{vT0}
    v_mov_b32 v{vT1}, 0x3f803f80''')
    for m in range(3):
        for T in range(2):
            a = vAcc + 32 * m + 16 * T
            if m == 0:
                for i in range(16): e(f'v_mul_f32 v{a+i}, s30, v{a+i}')
            p = vXf + 8 * (T % 2)
            for i in range(8): e(f'v_cvt_pk_bf16_f32 v{p+i}, v{a+2*i}, v{a+2*i+1}')
            if m == 2:
                for i in range(8): e(f'v_cndmask_b32 v{p+i}, v{p+i}, v{vT1}, s[32:33]')
            for hf in range(2):
                e(f'buffer_store_dwordx4 v[{p+4*hf}:{p+4*hf+3}], v{vL16}, {srd}, s{27+m} offen offset:{T*2048+hf*1024}')
    k.ts(4)
    e('s_waitcnt vmcnt(0)')
    k.ts(5)
    k.ts_flush(6, srd, v0=10)
    e(Lx + ':')
    e('s_endpgm')
    return k, LDS_SIZE
```

```python
import math, struct
from asmgen import *
import layout as L
import proj

OOB = 0x80000000
STAMPI = 's_memtime'
TWIN_DEFAULT = 1
sWS, sAUX = 4, 8
sW, sX, sC, sH, sJ, sS, sTO, sKH = 12, 13, 14, 15, 16, 17, 18, 19
sA, sB, sO_, sE, sPp = 20, 21, 22, 24, 25
sA2, sB2, sO2, sP2 = 26, 27, 28, 29
sKM, sVM, sKT, sVT = 30, 31, 32, 33
sT0, sT1, sT2, sT3 = 34, 35, 36, 37
sMEMBx, sQKh, sOBx = 38, 39, 40
sCexp, sXCC, sMODE = 41, 42, 43
sSTB = 46
sPTR = 48
sMASK = 54
sPARTB, sFLIP, sPAR = 56, 57, 58
sPRB, sPM0, sPM1 = 44, 45, 47
LDS_MEM, LDS_VP, LDS_KV, KVSZ = 0, 10240, 16384, 14336
LDS_SIZE = LDS_KV

def gen(name='reca_kernel', stamps=False, nsteps=64, D1=1, D2=3, D3=8, D4=2, PLEAD=6, TL=None, FORCE_SLOW=0, PROJ=1, PREREAD=1, PARX=0, DUAL=1, PACE=0, DS1=None, DS3=None, DS4=None, SPREAD=0, NEARF=None, PPROF=0, NPR=3, TLBW=1, DENSE=1, TWIN=None, D4T=5, PRE2=0):
    k = Kernel(name, vgpr=256, agpr=256)
    if TWIN is None: TWIN = TWIN_DEFAULT
    e = k.e
    WS = f's[{sWS}:{sWS+3}]'
    vL16, vL16b, vL16c = 1, 2, 3
    vMld, vMld2, vMrdA, vMrdB = 4, 5, 6, 7
    vXst, vKMst, vVMst, vOst = 8, 9, 10, 11
    vOld, vOldb, vOldc = 12, 13, 14
    vPst, vMst, vVP, vKVrd, vZ = 15, 16, 17, 18, 19
    vPld = 20
    vT0, vT1, vT2, vT3 = 28, 29, 30, 31
    vNEG1, vONES, vCM = 32, 36, 40
    vACC, vACV, vQK = 44, 48, 52
    vVPr, vVMf, vS, vP = 56, 68, 72, 84
    vO, vLs, vOp = 92, 100, 104
    vD1, vD2, vR = 108, 112, 116
    MEMR = 128
    vH3 = MEMR; vKT = MEMR; vVT = MEMR + 48; vG2 = MEMR
    vX = 208
    vPst2, vFl = 232, 233
    vKV = 238
    vMdA, vMdB, vAC2 = 236, 237, 240
    aW1, aWV, aW2 = 0, 80, 120
    aKT, aVT = 120, 168
    NST = 14
    def R(b, n=4): return f'v[{b}:{b+n-1}]'

    def stamp(idx, wait=False):
        if not stamps: return
        e(f'{STAMPI} s[{64+2*idx}:{65+2*idx}]')
        if wait: e('s_waitcnt lgkmcnt(0)')
    def stamp_flush():
        if not stamps: return
        e('s_waitcnt lgkmcnt(0)')
        for i in range(NST): e(f'v_writelane_b32 v{vT0}, s{64+2*i}, {i}')
        e(f'''v_and_b32 v{vT1}, 63, v0
        v_lshlrev_b32 v{vT1}, 2, v{vT1}
        v_mov_b32 v{vT2}, {OOB:#x}
        v_cmp_gt_u32 vcc, {NST*4}, v{vT1}
        v_cndmask_b32 v{vT1}, v{vT2}, v{vT1}, vcc
        s_lshl_b32 s{sT3}, s{sS}, 8
        s_add_u32 s{sT3}, s{sT3}, s{sSTB}
        buffer_store_dword v{vT0}, v{vT1}, {WS}, s{sT3} offen''')
        for i in range(NST): e(f's_mov_b32 s{64+2*i}, 0')
    def tl(i):
        if TL is None: return
        e(f's_memrealtime s[{92+2*i}:{93+2*i}]')
        if i >= 2: e(f's_memtime s[{84+2*(i-2)}:{85+2*(i-2)}]')
        if i == 0: e('s_mov_b32 s91, s2\ns_mov_b32 s94, 0\ns_mov_b32 s96, 0\ns_mov_b32 s99, 0')
        e('s_waitcnt lgkmcnt(0)')

    Lexit = k.label('exit'); Lproj = k.label('proj'); Lexit2 = k.label('exitb')
    e(f'''s_cmp_ge_u32 s2, 256
    s_cbranch_scc1 {Lexit2}
    s_load_dwordx2 s[{sPTR}:{sPTR+1}], s[0:1], 96
    s_load_dwordx2 s[{sPTR+2}:{sPTR+3}], s[0:1], 88
    s_load_dwordx2 s[{sPTR+4}:{sPTR+5}], s[0:1], 8''')
    tl(0)
    e(f'''s_getreg_b32 s{sXCC}, hwreg(HW_REG_XCC_ID, 0, 3)
    v_lshrrev_b32 v{vT0}, 6, v0
    v_and_b32 v{vT1}, 63, v0
    s_and_b32 s{sX}, s2, 7
    v_readfirstlane_b32 s{sW}, v{vT0}
    v_lshlrev_b32 v{vL16}, 4, v{vT1}
    s_lshr_b32 s{sC}, s2, 3
    s_mov_b32 s{sTO}, 0x100000
    s_waitcnt lgkmcnt(0)
    s_mov_b32 s{sFLIP}, 0
    s_mov_b32 s{sWS}, s{sPTR}
    s_mov_b32 s{sWS+1}, s{sPTR+1}
    s_mov_b32 s{sWS+2}, 0x10000000
    s_mov_b32 s{sWS+3}, 0x20000
    s_mov_b32 s{sAUX}, s{sPTR+2}
    s_mov_b32 s{sAUX+1}, s{sPTR+3}
    s_mov_b32 s{sAUX+2}, 256
    s_mov_b32 s{sAUX+3}, 0x20000
    v_add_u32 v{vL16b}, 0x1000, v{vL16}
    v_add_u32 v{vL16c}, 0x2000, v{vL16}
    v_mov_b32 v{vT3}, {OOB:#x}''')
    e(f'''s_lshl_b32 s{sT0}, s{sXCC}, 3
    s_lshl_b64 s[{sT2}:{sT2+1}], 1, s{sT0}
    s_lshl_b32 s{sT0}, s{sX}, 3
    v_cmp_eq_u32 vcc, 0, v0
    v_mov_b32 v{vT2}, s{sT0}
    v_cndmask_b32 v{vT2}, v{vT3}, v{vT2}, vcc
    v_mov_b32 v{vACC}, s{sT2}
    v_mov_b32 v{vACC+1}, s{sT2+1}
    buffer_atomic_add_x2 v[{vACC}:{vACC+1}], v{vT2}, s[{sAUX}:{sAUX+3}], 0 offen
    s_sub_u32 s{sPARTB}, 0, s{sPTR}
    s_and_b32 s{sPARTB}, s{sPARTB}, 0x1fffff
    s_add_u32 s{sPARTB}, s{sPARTB}, {L.PARTR}
    s_nop 0''')
    def census_wait():
        Lp = k.label('cens'); Lo = k.label('censok')
        e(f'''v_and_b32 v{vT2}, 7, v0
        v_lshlrev_b32 v{vT2}, 3, v{vT2}''')
        e(Lp + ':')
        e(f'''buffer_load_dwordx2 v[{vT0}:{vT0+1}], v{vT2}, s[{sAUX}:{sAUX+3}], 0 offen sc1
        s_waitcnt vmcnt(0)
        v_sad_u8 v{vT3}, v{vT0}, 0, 0
        v_sad_u8 v{vT3}, v{vT1}, 0, v{vT3}
        v_cmp_gt_u32 vcc, 32, v{vT3}
        s_cbranch_vccz {Lo}
        s_sleep 8
        s_sub_u32 s{sTO}, s{sTO}, 1
        s_cbranch_scc0 {Lp}
        s_mov_b32 s{sTO}, 0''')
        e(Lo + ':')
        e(f'''v_and_b32 v{vT0}, 0x20202020, v{vT0}
        v_and_b32 v{vT1}, 0x20202020, v{vT1}
        v_cmp_ne_u32 s[{sT0}:{sT0+1}], 0, v{vT0}
        v_cmp_ne_u32 s[{sT2}:{sT2+1}], 0, v{vT1}
        s_nop 3
        s_and_b32 s{sT0}, s{sT0}, 0xff
        s_and_b32 s{sT2}, s{sT2}, 0xff
        s_or_b32 s{sT1}, s{sT0}, s{sT2}
        s_lshr_b32 s{sT3}, s{sT1}, s{sX}
        s_and_b32 s{sT3}, s{sT3}, 1
        s_xor_b32 s{sMODE}, s{sT3}, 1
        s_cmp_eq_u32 s{sFLIP}, 0
        s_cselect_b32 s{sPAR}, s{sT2}, s{sT0}''')
        if FORCE_SLOW: e(f's_mov_b32 s{sMODE}, 1')
        if PARX: e(f's_xor_b32 s{sPAR}, s{sPAR}, {PARX}')
        e(f'v_mov_b32 v{vT3}, {OOB:#x}')
    e(f's_cmp_ge_u32 s{sC}, 24\ns_cbranch_scc1 {Lproj}')
    tl(1)
    e(f'''s_mul_i32 s{sT0}, s{sC}, 43
    s_lshr_b32 s{sT0}, s{sT0}, 8
    s_mul_i32 s{sT1}, s{sT0}, 6
    s_sub_u32 s{sJ}, s{sC}, s{sT1}
    s_lshl_b32 s{sH}, s{sX}, 2
    s_add_u32 s{sH}, s{sH}, s{sT0}
    s_lshr_b32 s{sKH}, s{sW}, 1''')
    e(f'''s_and_b32 s{sT3}, s{sW}, 1
    s_mul_i32 s{sT0}, s{sH}, 12
    s_lshl_b32 s{sT1}, s{sJ}, 1
    s_add_u32 s{sT0}, s{sT0}, s{sT1}
    s_add_u32 s{sT0}, s{sT0}, s{sT3}
    s_mul_i32 s{sT0}, s{sT0}, 20480
    s_mov_b32 s{sT1}, {L.WKP}
    s_cmp_eq_u32 s{sKH}, 0
    s_cselect_b32 s{sT1}, {L.WQP}, s{sT1}
    s_add_u32 s{sT1}, s{sT1}, s{sT0}
    s_mul_i32 s{sT2}, s{sKH}, 10240
    s_add_u32 s{sA}, s{sT1}, s{sT2}
    s_sub_u32 s{sT2}, 10240, s{sT2}
    s_add_u32 s{sB}, s{sT1}, s{sT2}
    s_add_u32 s{sO_}, s{sT0}, {L.WVP}
    s_mul_i32 s{sT2}, s{sKH}, 10240
    s_add_u32 s{sO_}, s{sO_}, s{sT2}''')
    vLs_ = [vL16, vL16b, vL16c]
    for b in range(20):
        bb = b % 10
        e(f'buffer_load_dwordx4 a[{aW1+4*b}:{aW1+4*b+3}], v{vLs_[bb//4]}, {WS}, s{sA if b < 10 else sB} offen offset:{(bb%4)*1024}')
    for b in range(10):
        e(f'buffer_load_dwordx4 a[{aWV+4*b}:{aWV+4*b+3}], v{vLs_[b//4]}, {WS}, s{sO_} offen offset:{(b%4)*1024}')
    Lnw2 = k.label('now2')
    e(f'''s_cmp_ge_u32 s{sC}, 20
    s_cbranch_scc1 {Lnw2}
    s_cmp_ge_u32 s{sW}, 2
    s_cbranch_scc1 {Lnw2}
    s_lshl_b32 s{sT0}, s{sC}, 1
    s_add_u32 s{sT0}, s{sT0}, s{sW}
    s_mul_i32 s{sT0}, s{sT0}, 192
    s_mul_i32 s{sT1}, s{sX}, 24
    s_add_u32 s{sT0}, s{sT0}, s{sT1}
    s_lshl_b32 s{sT0}, s{sT0}, 10
    s_add_u32 s{sT0}, s{sT0}, {L.WOP}''')
    for kk in range(24):
        if kk and kk % 12 == 0: e(f's_add_u32 s{sT0}, s{sT0}, 12288')
        q = kk % 12
        e(f'buffer_load_dwordx4 a[{aW2+4*kk}:{aW2+4*kk+3}], v{vLs_[q//4]}, {WS}, s{sT0} offen offset:{(q%4)*1024}')
    e(Lnw2 + ':')
    i16, g, lane = vT0, vT2, vT1
    t, u, a_ = vACC, vACC + 1, vACC + 2
    MK = f's[{sMASK}:{sMASK+1}]'
    e(f'''v_and_b32 v{lane}, 63, v0
    v_and_b32 v{i16}, 15, v{lane}
    v_lshrrev_b32 v{g}, 4, v{lane}
    v_mov_b32 v{vNEG1}, -1
    v_mov_b32 v{vNEG1+1}, -1
    v_mov_b32 v{vNEG1+2}, -1
    v_mov_b32 v{vNEG1+3}, -1
    s_mul_i32 s{sT0}, s{sW}, 2560
    v_add_u32 v{vMld}, s{sT0}, v{vL16}
    v_and_b32 v{t}, 31, v{lane}
    v_lshlrev_b32 v{t}, 4, v{t}
    s_add_u32 s{sT0}, s{sT0}, 2048
    v_add_u32 v{vMld2}, s{sT0}, v{t}
    v_and_b32 v{t}, 7, v{lane}
    v_lshlrev_b32 v{t}, 4, v{t}
    v_lshl_add_u32 v{t}, v{g}, 7, v{t}
    s_mul_i32 s{sT0}, s{sKH}, 5120
    v_add_u32 v{vMrdA}, s{sT0}, v{t}
    s_sub_u32 s{sT0}, 5120, s{sT0}
    v_add_u32 v{vMrdB}, s{sT0}, v{t}
    v_lshrrev_b32 v{u}, 3, v{i16}
    v_lshl_add_u32 v{vOld}, v{u}, 9, v{t}
    s_mul_i32 s{sT0}, s{sKH}, 5120
    v_add_u32 v{vMdA}, s{sT0}, v{vOld}
    s_sub_u32 s{sT0}, 5120, s{sT0}
    v_add_u32 v{vMdB}, s{sT0}, v{vOld}
    v_add_u32 v{vOldb}, 0x1000, v{vOld}
    v_add_u32 v{vOldc}, 0x2000, v{vOld}
    v_cmp_gt_u32 {MK}, 8, v{i16}
    s_lshl_b32 s{sT0}, s{sJ}, 10
    s_lshl_b32 s{sT1}, s{sKH}, 7
    s_add_u32 s{sT0}, s{sT0}, s{sT1}
    s_and_b32 s{sT1}, s{sW}, 1
    s_lshl_b32 s{sT2}, s{sT1}, 3
    s_add_u32 s{sT0}, s{sT0}, s{sT2}
    v_lshlrev_b32 v{t}, 4, v{i16}
    v_lshl_add_u32 v{u}, v{g}, 8, v{t}
    v_add_u32 v{u}, s{sT0}, v{u}
    v_cndmask_b32 v{vXst}, v{vT3}, v{u}, {MK}
    v_lshl_add_u32 v{t}, v{g}, 7, v{t}
    v_add_u32 v{u}, s{sT2}, v{t}
    v_cndmask_b32 v{vKMst}, v{vT3}, v{u}, {MK}
    s_lshl_b32 s{sT0}, s{sC}, 9
    v_add_u32 v{u}, s{sT0}, v{t}
    v_cndmask_b32 v{vOst}, v{vT3}, v{u}, {MK}
    s_mul_i32 s{sT0}, s{sX}, 49152
    s_lshr_b32 s{sT1}, s{sC}, 3
    s_lshl_b32 s{sT1}, s{sT1}, 14
    s_add_u32 s{sT0}, s{sT0}, s{sT1}
    s_and_b32 s{sT1}, s{sC}, 7
    s_lshl_b32 s{sT1}, s{sT1}, 10
    s_add_u32 s{sT0}, s{sT0}, s{sT1}
    s_lshl_b32 s{sT1}, s{sW}, 9
    s_add_u32 s{sT0}, s{sT0}, s{sT1}
    v_add_u32 v{u}, s{sT0}, v{t}
    v_cndmask_b32 v{vPst}, v{vT3}, v{u}, {MK}
    s_cmp_lt_u32 s{sC}, 20
    s_cselect_b32 s{sT0}, 0, {OOB:#x}
    v_or_b32 v{vPst}, s{sT0}, v{vPst}
    v_lshlrev_b32 v{u}, 3, v{lane}
    v_cmp_gt_u32 vcc, 32, v{lane}
    v_cndmask_b32 v{vVMst}, v{vT3}, v{u}, vcc
    s_sub_u32 s{sT1}, s{sC}, 4
    s_cmp_lt_u32 s{sC}, 20
    s_cselect_b32 s{sT0}, s{sC}, s{sT1}
    s_lshr_b32 s{sT1}, s{sT0}, 3
    s_lshl_b32 s{sT1}, s{sT1}, 14
    s_and_b32 s{sT0}, s{sT0}, 7
    s_lshl_b32 s{sT0}, s{sT0}, 10
    s_add_u32 s{sT0}, s{sT0}, s{sT1}
    v_add_u32 v{vPld}, s{sT0}, v{vL16}''')
    for xx in range(1, 8): e(f'v_add_u32 v{vPld+xx}, {xx*49152}, v{vPld}')
    e(f'''v_lshrrev_b32 v{t}, 3, v{lane}
    v_and_b32 v{t}, 3, v{t}
    v_lshlrev_b32 v{t}, 7, v{t}
    v_and_b32 v{u}, 7, v{lane}
    v_lshl_add_u32 v{t}, v{u}, 4, v{t}
    v_lshrrev_b32 v{u}, 5, v{lane}
    v_lshl_add_u32 v{t}, v{u}, 3, v{t}
    s_lshl_b32 s{sT0}, s{sC}, 9
    s_cmp_lt_u32 s{sC}, 20
    s_cselect_b32 s{sT0}, s{sT0}, {OOB:#x}
    v_add_u32 v{vMst}, s{sT0}, v{t}
    v_cmp_eq_u32 vcc, 0, v{lane}
    v_mov_b32 v{u}, 0
    v_cndmask_b32 v{vZ}, v{vT3}, v{u}, vcc
    s_lshl_b32 s{sT0}, s{sH}, 8
    s_add_u32 s{sT0}, s{sT0}, {L.PROG2}
    v_and_b32 v{u}, 1, v{lane}
    v_lshlrev_b32 v{u}, 7, v{u}
    v_add_u32 v{vFl}, s{sT0}, v{u}
    s_lshl_b32 s{sT0}, s{sW}, 10
    s_add_u32 s{sT0}, s{sT0}, {LDS_VP}
    v_add_u32 v{vVP}, s{sT0}, v{vL16}
    v_mov_b32 v{vONES}, 0x3f803f80
    v_mov_b32 v{vONES+1}, 0x3f803f80
    v_mov_b32 v{vONES+2}, 0x3f803f80
    v_mov_b32 v{vONES+3}, 0x3f803f80
    v_mov_b32 v{t}, 0xf149f2ca
    v_cmp_gt_u32 vcc, 2, v{g}
    v_cndmask_b32 v{vCM}, 0, v{t}, vcc
    v_mov_b32 v{vCM+1}, v{vCM}
    v_mov_b32 v{vCM+2}, v{vCM}
    v_mov_b32 v{vCM+3}, v{vCM}''')
    e(f'''v_and_b32 v{t}, 31, v{lane}
    v_lshlrev_b32 v{t}, 4, v{t}
    v_add_u32 v{u}, {L.VM}, v{t}
    v_add_u32 v{t}, {L.KM}, v{t}
    v_cmp_gt_u32 vcc, 32, v{lane}
    v_cndmask_b32 v{vKV}, v{u}, v{t}, vcc''')
    cexp = (192 ** -0.5) * math.log2(math.e)
    cbits = struct.unpack('<I', struct.pack('<f', cexp))[0]
    e(f'''s_mov_b32 s{sCexp}, {cbits:#x}
    s_mul_i32 s{sMEMBx}, s{sX}, 40960
    s_add_u32 s{sMEMBx}, s{sMEMBx}, {L.MEMB}
    s_mul_i32 s{sQKh}, s{sH}, 24576
    s_add_u32 s{sQKh}, s{sQKh}, {L.QK}
    s_mul_i32 s{sOBx}, s{sX}, 49152
    s_add_u32 s{sOBx}, s{sOBx}, {L.OB}''')
    if stamps:
        e(f'''s_sub_u32 s{sT1}, s{sC}, 8
        s_cmp_ge_u32 s{sC}, 20
        s_cselect_b32 s{sT1}, s{sT1}, s{sC}
        s_lshl_b32 s{sT0}, s{sT1}, 2
        s_add_u32 s{sT0}, s{sT0}, s{sW}
        s_lshl_b32 s{sT0}, s{sT0}, 14
        s_add_u32 s{sSTB}, s{sT0}, {L.STAMP}
        s_cmp_eq_u32 s{sX}, 0
        s_cselect_b32 s{sSTB}, s{sSTB}, 0x7f000000
        s_cmp_lt_u32 s{sC}, 12
        s_cselect_b32 s{sT1}, s{sSTB}, 0x7f000000
        s_cmp_ge_u32 s{sC}, 20
        s_cselect_b32 s{sSTB}, s{sSTB}, s{sT1}''')
        for i in range(NST): e(f's_mov_b32 s{64+2*i}, 0')
    e(f'''s_mov_b32 s60, s{sPTR+4}
    s_mov_b32 s61, s{sPTR+5}
    s_mov_b32 s62, 10240
    s_mov_b32 s63, 0x20000
    v_and_b32 v{lane}, 63, v0
    v_and_b32 v{t}, 7, v{lane}
    v_mul_u32_u24 v{t}, 1280, v{t}
    v_lshrrev_b32 v{u}, 3, v{lane}
    v_and_b32 v{u}, 3, v{u}
    v_lshl_add_u32 v{t}, v{u}, 4, v{t}
    s_mul_i32 s{sT0}, s{sW}, 320
    v_add_u32 v{t}, s{sT0}, v{t}
    v_add_u32 v{a_}, 256, v{t}
    v_lshrrev_b32 v{u}, 5, v{lane}
    v_lshl_add_u32 v{t}, v{u}, 6, v{t}
    buffer_load_dwordx4 {R(MEMR)}, v{t}, s[60:63], 0 offen
    buffer_load_dwordx4 {R(MEMR+4)}, v{t}, s[60:63], 0 offen offset:128
    buffer_load_dwordx4 {R(MEMR+8)}, v{a_}, s[60:63], 0 offen''')
    if TLBW == 1:
        e(f'''v_and_b32 v{t}, 63, v0
        v_and_b32 v{u}, 3, v{t}
        v_lshlrev_b32 v{u}, 21, v{u}
        v_min_u32 v{u}, {6291456 - 64}, v{u}
        v_add_u32 v{a_}, {L.KM}, v{u}
        v_add_u32 v{u}, {L.VM}, v{u}
        v_cmp_gt_u32 vcc, 4, v{t}
        v_cndmask_b32 v{a_}, v{u}, v{a_}, vcc
        s_mul_i32 s{sT0}, s{sH}, {64*12288}
        v_and_b32 v{u}, 1, v{t}
        v_mul_u32_u24 v{u}, {64*12288 - 64}, v{u}
        v_add_u32 v{u}, s{sT0}, v{u}
        v_add_u32 v{vT0}, {L.KT}, v{u}
        v_add_u32 v{u}, {L.VT}, v{u}
        v_cmp_gt_u32 vcc, 10, v{t}
        v_cndmask_b32 v{u}, v{u}, v{vT0}, vcc
        v_cmp_gt_u32 vcc, 8, v{t}
        v_cndmask_b32 v{a_}, v{u}, v{a_}, vcc
        v_cmp_gt_u32 vcc, 12, v{t}
        v_cndmask_b32 v{a_}, v{vT3}, v{a_}, vcc
        buffer_load_dword v234, v{a_}, {WS}, 0 offen''')
    if TLBW and TWIN:
        e(f'''v_and_b32 v{t}, 63, v0
        v_lshlrev_b32 v{u}, 21, v{t}
        v_min_u32 v{u}, {128*192*1024 - 64}, v{u}
        v_add_u32 v{u}, {L.OT}, v{u}
        s_lshl_b32 s{sT0}, s{sX}, 2
        s_add_u32 s{sT0}, s{sT0}, s{sC}
        s_sub_u32 s{sT0}, s{sT0}, 20
        s_and_b32 s{sT0}, s{sT0}, 31
        s_mul_i32 s{sT0}, s{sT0}, {64*12288}
        s_add_u32 s{sT0}, s{sT0}, {L.QT}
        v_and_b32 v{a_}, 1, v{t}
        v_mul_u32_u24 v{a_}, {64*12288 - 64}, v{a_}
        v_add_u32 v{a_}, s{sT0}, v{a_}
        v_cmp_gt_u32 vcc, 13, v{t}
        v_cndmask_b32 v{a_}, v{a_}, v{u}, vcc
        v_cmp_gt_u32 vcc, 15, v{t}
        v_cndmask_b32 v{a_}, v{vT3}, v{a_}, vcc
        buffer_load_dword v235, v{a_}, {WS}, 0 offen''')
    if TLBW >= 2:
        e(f'''v_and_b32 v{t}, 63, v0
        v_and_b32 v{u}, 31, v{t}
        v_mul_u32_u24 v{a_}, {196608}, v{u}
        v_lshrrev_b32 v{vT0}, 5, v{t}
        v_mul_u32_u24 v{vT1}, {L.VM - L.KM}, v{vT0}
        v_add_u32 v{a_}, v{a_}, v{vT1}
        v_add_u32 v{a_}, {L.KM}, v{a_}
        buffer_load_dword v234, v{a_}, {WS}, 0 offen
        v_mul_u32_u24 v{a_}, {24576}, v{u}
        s_mov_b32 s{sT1}, {L.VT - L.KT}
        v_mul_lo_u32 v{vT1}, v{vT0}, s{sT1}
        v_add_u32 v{a_}, v{a_}, v{vT1}
        s_mul_i32 s{sT0}, s{sH}, {64*12288}
        s_add_u32 s{sT0}, s{sT0}, {L.KT}
        buffer_load_dword v235, v{a_}, {WS}, s{sT0} offen''')
    census_wait()
    if DUAL:
        e(f'''v_add_u32 v{vPst2}, 0x2000, v{vPst}
        s_lshr_b32 s{sPRB}, s2, 4
        s_lshl_b32 s{sPRB}, s{sPRB}, 14
        s_and_b32 s{sT0}, s2, 15
        s_lshl_b32 s{sT0}, s{sT0}, 9
        s_add_u32 s{sPRB}, s{sPRB}, s{sT0}
        s_add_u32 s{sPRB}, s{sPRB}, {L.PROBE_OFF}
        s_add_u32 s{sPRB}, s{sPRB}, s{sPARTB}
        s_mov_b32 s{sPM0}, -1
        s_mov_b32 s{sPM1}, -1''')
        if NEARF is not None:
            e(f'''s_lshr_b32 s{sT0}, s{sXCC}, 2
            s_xor_b32 s{sT0}, s{sT0}, {NEARF}
            s_lshl_b32 s{sT0}, s{sT0}, 13''')
            for xx in range(8): e(f'v_add_u32 v{vPld+xx}, s{sT0}, v{vPld+xx}')
    else:
        for xx in range(8):
            e(f'''s_lshr_b32 s{sT0}, s{sPAR}, {xx}
            s_and_b32 s{sT0}, s{sT0}, 1
            s_lshl_b32 s{sT0}, s{sT0}, 13
            v_add_u32 v{vPld+xx}, s{sT0}, v{vPld+xx}''')
        e(f'''s_lshr_b32 s{sT0}, s{sPAR}, s{sX}
        s_and_b32 s{sT0}, s{sT0}, 1
        s_lshl_b32 s{sT0}, s{sT0}, 13
        v_add_u32 v{vPst}, s{sT0}, v{vPst}''')
    if stamps:
        for i in range(NST): e(f's_mov_b32 s{64+2*i}, 0')

    tS, tL, tO, tOp = MEMR, MEMR + 20, MEMR + 28, MEMR + 44
    tP, tInv, tCM, tCD, tKM, tVM = 72, 82, 84, 88, 92, 93
    LDS_TP = 16384
    aK_, aQ_, aKm_, aV_, aVm_ = 120, 168, 216, 120, 168
    sHT, sTA, sTB, sTC = 59, 23, 60, 61
    AR = lambda b, n=4: f'a[{b}:{b+n-1}]'
    def twin_consts():
        e(f"""s_lshl_b32 s{sHT}, s{sX}, 2
        s_add_u32 s{sHT}, s{sHT}, s{sC}
        s_sub_u32 s{sHT}, s{sHT}, 20
        v_and_b32 v{vT1}, 63, v0
        v_and_b32 v{vT0}, 15, v{vT1}
        v_lshrrev_b32 v{vT2}, 4, v{vT1}
        v_lshlrev_b32 v{tKM}, 4, v{vT0}
        v_lshl_add_u32 v{tKM}, v{vT2}, 7, v{tKM}
        v_cmp_gt_u32 vcc, 8, v{vT0}
        v_cndmask_b32 v{tKM}, v{vT3}, v{tKM}, vcc
        v_lshlrev_b32 v{tVM}, 3, v{vT1}
        v_cmp_gt_u32 vcc, 32, v{vT1}
        v_cndmask_b32 v{tVM}, v{vT3}, v{tVM}, vcc
        v_mov_b32 v{tInv}, 0xf149f2ca
        v_cmp_le_u32 vcc, 2, v{vT2}
        v_cndmask_b32 v{tCM}, 0, v{tInv}, vcc
        v_mov_b32 v{tCM+1}, v{tCM}
        v_mov_b32 v{tCM+2}, v{tCM}
        v_mov_b32 v{tCM+3}, v{tCM}
        v_lshlrev_b32 v{vT2}, 2, v{vT2}""")
        for r in range(4):
            e(f"""v_add_u32 v{vT1}, {r}, v{vT2}
            v_cmp_gt_u32 vcc, v{vT1}, v{vT0}
            v_cndmask_b32 v{tCD+r}, 0, v{tInv}, vcc""")
    SM0, S00, SM1, S10, S11 = tS, tS + 4, tS + 8, tS + 12, tS + 16
    PM0, PT0, PM1, PT1 = tP, tP + 2, tP + 4, tP + 6
    def twin_softmax(regs, mx, t_):
        e(f'v_max3_f32 v{mx}, v{regs[0]}, v{regs[1]}, v{regs[2]}')
        r = regs[3:]
        while r:
            if len(r) >= 2: e(f'v_max3_f32 v{mx}, v{mx}, v{r[0]}, v{r[1]}'); r = r[2:]
            else: e(f'v_max_f32 v{mx}, v{mx}, v{r[0]}'); r = r[1:]
        e(f"""v_mov_b32 v{t_}, v{mx}
        v_permlane32_swap_b32 v{mx}, v{t_}
        v_max_f32 v{mx}, v{mx}, v{t_}
        v_mov_b32 v{t_}, v{mx}
        v_permlane16_swap_b32 v{mx}, v{t_}
        v_max_f32 v{mx}, v{mx}, v{t_}
        v_mul_f32 v{mx}, s{sCexp}, v{mx}""")
        for x in regs: e(f'v_fma_f32 v{x}, v{x}, s{sCexp}, -v{mx}')
        for x in regs: e(f'v_exp_f32 v{x}, v{x}')
    def twin_partA():
        vv = [vL16, vL16b, vL16c]
        e(f"""s_sub_u32 s{sT2}, s{sS}, 2
        s_lshl_b32 s{sT0}, s{sHT}, 6
        s_add_u32 s{sT0}, s{sT0}, s{sT2}
        s_mul_i32 s{sT0}, s{sT0}, 12288
        s_add_u32 s{sTA}, s{sT0}, {L.KT}
        s_add_u32 s{sTB}, s{sT0}, {L.QT}
        s_lshl_b32 s{sT1}, s{sT2}, 5
        s_add_u32 s{sT1}, s{sT1}, s{sHT}
        s_mul_i32 s{sT1}, s{sT1}, 3072
        s_add_u32 s{sTC}, s{sT1}, {L.KM}""")
        for i in range(12): e(f'buffer_load_dwordx4 {AR(aK_+4*i)}, v{vv[i//4]}, {WS}, s{sTA} offen offset:{(i%4)*1024} sc1')
        for j in range(6): e(f'buffer_load_dwordx4 {AR(aKm_+4*j)}, v{tKM}, {WS}, s{sTC} offen offset:{j*512} sc1')
        for i in range(12): e(f'buffer_load_dwordx4 {AR(aQ_+4*i)}, v{vv[i//4]}, {WS}, s{sTB} offen offset:{(i%4)*1024} sc1')
        for j in range(6):
            e(f's_waitcnt vmcnt({5-j})')
            q0 = AR(aQ_ + 4 * j); q1 = AR(aQ_ + 24 + 4 * j); k0 = AR(aK_ + 4 * j); k1 = AR(aK_ + 24 + 4 * j); km = AR(aKm_ + 4 * j)
            f = j == 0
            e(f'v_mfma_f32_16x16x32_bf16 {R(SM0)}, {km}, {q0}, {R(tCM) if f else R(SM0)}')
            e(f'v_mfma_f32_16x16x32_bf16 {R(S00)}, {k0}, {q0}, {R(tCD) if f else R(S00)}')
            e(f'v_mfma_f32_16x16x32_bf16 {R(SM1)}, {km}, {q1}, {R(tCM) if f else R(SM1)}')
            e(f'v_mfma_f32_16x16x32_bf16 {R(S10)}, {k0}, {q1}, ' + ('0' if f else R(S10)))
            e(f'v_mfma_f32_16x16x32_bf16 {R(S11)}, {k1}, {q1}, {R(tCD) if f else R(S11)}')
        twin_softmax(list(range(SM0, SM0 + 8)), vT0, vT1)
        twin_softmax(list(range(SM1, SM1 + 12)), vT2, vT1)
        for (dst, src) in ((PM0, SM0), (PT0, S00), (PM1, SM1), (PT1, S10), (PT1 + 2, S11)):
            e(f'v_cvt_pk_bf16_f32 v{dst}, v{src}, v{src+1}')
            e(f'v_cvt_pk_bf16_f32 v{dst+1}, v{src+2}, v{src+3}')
        L0, L1 = tL, tL + 4
        e(f"""v_mfma_f32_16x16x16_bf16 {R(L0)}, {R(vONES,2)}, {R(PM0,2)}, 0
        v_mfma_f32_16x16x16_bf16 {R(L1)}, {R(vONES,2)}, {R(PM1,2)}, 0
        v_mfma_f32_16x16x16_bf16 {R(L0)}, {R(vONES,2)}, {R(PT0,2)}, {R(L0)}
        v_mfma_f32_16x16x32_bf16 {R(L1)}, {R(vONES)}, {R(PT1)}, {R(L1)}
        v_rcp_f32 v{tInv}, v{L0}
        v_rcp_f32 v{tInv+1}, v{L1}
        s_and_b32 s{sT0}, s{sS}, 1
        s_mul_i32 s{sT0}, s{sT0}, 3072
        v_add_u32 v{vT0}, s{sT0}, v{vL16}
        ds_write_b128 v{vT0}, {R(tP)} offset:{LDS_TP}
        ds_write_b128 v{vT0}, {R(tP+4)} offset:{LDS_TP+1024}
        ds_write_b128 v{vT0}, {R(tP+8)} offset:{LDS_TP+2048}
        s_waitcnt lgkmcnt(0)""")
    def twin_partB(half):
        vv = [vL16, vL16b, vL16c]
        e(f"""s_sub_u32 s{sT2}, s{sS}, 3
        s_lshl_b32 s{sT0}, s{sHT}, 6
        s_add_u32 s{sT0}, s{sT0}, s{sT2}
        s_mul_i32 s{sT0}, s{sT0}, 12288
        s_add_u32 s{sTA}, s{sT0}, {L.VT}
        s_lshl_b32 s{sT1}, s{sT2}, 5
        s_add_u32 s{sT1}, s{sT1}, s{sHT}
        s_mul_i32 s{sT1}, s{sT1}, 3072
        s_add_u32 s{sTC}, s{sT1}, {L.VM}
        s_mul_i32 s{sT0}, s{sT2}, {2*192*1024}
        s_mul_i32 s{sT1}, s{sHT}, 6144
        s_add_u32 s{sT0}, s{sT0}, s{sT1}
        s_add_u32 s{sTB}, s{sT0}, {L.OT}""")
        e(f"""s_add_u32 s{sT0}, s{sS}, 1
        s_and_b32 s{sT0}, s{sT0}, 1
        s_mul_i32 s{sT0}, s{sT0}, 3072
        v_add_u32 v{vT0}, s{sT0}, v{vL16}
        ds_read_b128 {R(tP)}, v{vT0} offset:{LDS_TP}
        ds_read_b128 {R(tP+4)}, v{vT0} offset:{LDS_TP+1024}
        ds_read_b128 {R(tP+8)}, v{vT0} offset:{LDS_TP+2048}""")
        for i in range(6 * half, 6 * half + 6):
            e(f'buffer_load_dwordx2 {AR(aVm_+2*i,2)}, v{tVM}, {WS}, s{sTC} offen offset:{i*256} sc1')
            e(f'buffer_load_dwordx4 {AR(aV_+4*i)}, v{vv[i//4]}, {WS}, s{sTA} offen offset:{(i%4)*1024} sc1')
        npre = 0
        if PRE2:
            for j in range(3 * half, 3 * half + 3):
                for Tq in range(2):
                    e(f's_add_u32 s{sT0}, s{sTB}, {(2 + Tq)*192*1024}')
                    e(f'buffer_load_dwordx4 a[240:243], v{[vL16, vL16b][j//4]}, {WS}, s{sT0} offen offset:{(j%4)*1024} sc1')
                    npre += 1
        e('s_waitcnt lgkmcnt(0)')
        for jn, j in enumerate(range(3 * half, 3 * half + 3)):
            e(f's_waitcnt vmcnt({8 - 4*jn + 2*jn + npre})')
            for t_ in range(2):
                et = 2 * j + t_
                o0 = tO + 8 * t_; o1 = o0 + 4
                vt = aV_ + 4 * et; vm = aVm_ + 2 * et
                e(f'v_mfma_f32_16x16x16_bf16 {R(o0)}, {AR(vm,2)}, {R(PM0,2)}, 0')
                e(f'v_mfma_f32_16x16x16_bf16 {R(o1)}, {AR(vm,2)}, {R(PM1,2)}, 0')
                e(f'v_mfma_f32_16x16x16_bf16 {R(o0)}, {AR(vt,2)}, {R(PT0,2)}, {R(o0)}')
                e(f'v_mfma_f32_16x16x32_bf16 {R(o1)}, {AR(vt)}, {R(PT1)}, {R(o1)}')
            for Tq in range(2):
                p = tOp + 4 * Tq
                for t_ in range(2):
                    o = tO + 8 * t_ + 4 * Tq
                    for r in range(4): e(f'v_mul_f32 v{o+r}, v{o+r}, v{tInv+Tq}')
                    e(f'v_cvt_pk_bf16_f32 v{p+2*t_}, v{o}, v{o+1}')
                    e(f'v_cvt_pk_bf16_f32 v{p+2*t_+1}, v{o+2}, v{o+3}')
                if Tq: e(f's_add_u32 s{sT0}, s{sTB}, {192*1024}')
                e(f'buffer_store_dwordx4 {R(p)}, v{[vL16, vL16b][j//4]}, {WS}, s{sTB if Tq == 0 else sT0} offen offset:{(j%4)*1024}')

    def prefetch(seg):
        if PROJ:
            Lf = k.label('pf'); Lfo = k.label('pfok')
            e(f's_add_u32 s{sT3}, s{seg}, 1')
            e(Lf + ':')
            e(f'''buffer_load_dword v{vT0}, v{vFl}, {WS}, 0 offen sc1
            s_waitcnt vmcnt(0)
            v_cmp_gt_i32 vcc, s{sT3}, v{vT0}
            s_cbranch_vccz {Lfo}
            s_sleep 1
            s_sub_u32 s{sTO}, s{sTO}, 1
            s_cbranch_scc0 {Lf}
            s_mov_b32 s{sTO}, 0''')
            e(Lfo + ':')
        e(f'''s_lshl_b32 s{sT0}, s{sH}, 6
        s_add_u32 s{sT0}, s{sT0}, s{seg}
        s_mul_i32 s{sT0}, s{sT0}, 12288
        s_add_u32 s{sKT}, s{sT0}, {L.KT}
        s_lshl_b32 s{sT1}, s{sJ}, 11
        s_add_u32 s{sT0}, s{sT0}, s{sT1}
        s_add_u32 s{sVT}, s{sT0}, {L.VT}''')
        vv = [vL16, vL16b, vL16c]
        for i in range(12):
            e(f'buffer_load_dwordx4 a[{aKT+4*i}:{aKT+4*i+3}], v{vv[i//4]}, {WS}, s{sKT} offen offset:{(i%4)*1024} sc1')
        for q in range(2):
            e(f'buffer_load_dwordx4 a[{aVT+4*q}:{aVT+4*q+3}], v{vL16}, {WS}, s{sVT} offen offset:{q*1024} sc1')
        if PRE2:
            e(f'''s_lshl_b32 s{sT0}, s{seg}, 5
            s_add_u32 s{sT0}, s{sT0}, s{sH}
            s_mul_i32 s{sT0}, s{sT0}, 3072
            s_lshl_b32 s{sT1}, s{sJ}, 9
            s_add_u32 s{sT0}, s{sT0}, s{sT1}
            buffer_load_dwordx4 a[240:243], v{vKV}, {WS}, s{sT0} offen sc1''')

    if DUAL and NEARF is None:
        Lnpr = k.label('noprobe')
        e(f's_cmp_lg_u32 s{sW}, 2\ns_cbranch_scc1 {Lnpr}')
        for q in range(NPR):
            for par in range(2):
                e(f'''s_add_u32 s{sT1}, s{sPRB}, {par*8192 + q*128}
                s_memtime s[60:61]
                s_waitcnt lgkmcnt(0)
                buffer_load_dword v{vT0}, v{vZ}, {WS}, s{sT1} offen sc1
                s_waitcnt vmcnt(0)
                s_memtime s[62:63]
                s_waitcnt lgkmcnt(0)
                s_sub_u32 s{sT2}, s62, s60
                s_min_u32 s{sPM0 if par == 0 else sPM1}, s{sPM0 if par == 0 else sPM1}, s{sT2}''')
        e(f's_cmp_lt_u32 s{sPM1}, s{sPM0}\ns_cbranch_scc0 {Lnpr}')
        for xx in range(8): e(f'v_add_u32 v{vPld+xx}, 0x2000, v{vPld+xx}')
        e(Lnpr + ':')
    if TWIN: twin_consts()
    e(f's_mov_b32 s{sS}, 0')
    Lnp = k.label('nopf0')
    e(f's_cmp_lg_u32 s{sW}, 3\ns_cbranch_scc1 {Lnp}')
    prefetch(sS)
    e('s_waitcnt vmcnt(0)')
    e(Lnp + ':')
    tl(2)
    Lslow = k.label('slow')
    e(f's_cmp_lg_u32 s{sMODE}, 0\ns_cbranch_scc1 {Lslow}')

    def loop(SF, twin=False):
        ool = []
        def prog(n, load, chk, consume, cnt=None, second=None):
            extra = n if second else 0
            def test(r):
                if len(r) == 1: return [f'v_cmp_eq_u32 vcc, -1, v{r[0]}']
                return [f'v_max_u32 v{vT1}, v{r[0]}, v{r[1]}', f'v_cmp_eq_u32 vcc, -1, v{vT1}']
            for i in range(n + 1):
                if i < n:
                    e(f's_waitcnt vmcnt({n - 1 - i + extra})')
                    r = chk(i)
                    for x in test(r): e(x)
                if i > 0: consume(i - 1)
                if i < n:
                    Lr = k.label('retry'); Lb = k.label('resume')
                    e(f's_cbranch_vccnz {Lr}')
                    e(Lb + ':')
                    blk = [Lr + ':']
                    if stamps and cnt is not None: blk.append(f's_add_u32 s{64+2*cnt}, s{64+2*cnt}, 1')
                    if second:
                        load2, ra, rb_ = second
                        A = ra(i); B = rb_(i)
                        d = B[0] - A[0]
                        blk += [f's_waitcnt vmcnt({n - 1 - i})'] + test([x + d for x in r]) + [f's_cbranch_vccnz {Lr}_2']
                        blk += [f'v_mov_b32 v{x}, v{y}' for x, y in zip(A, B)] + [f's_branch {Lb}', Lr + '_2:']
                        if stamps and cnt is not None: blk.append(f's_add_u32 s{64+2*cnt}, s{64+2*cnt}, 0x100')
                        blk += [f's_sub_u32 s{sTO}, s{sTO}, 1', f's_cbranch_scc1 {Lr}_to', load(i), 's_waitcnt vmcnt(0)'] + test(r)
                        blk += [f's_cbranch_vccnz {Lr}_2', f's_branch {Lb}']
                    else:
                        blk += [f's_sub_u32 s{sTO}, s{sTO}, 1', f's_cbranch_scc1 {Lr}_to'] + [load(q) for q in range(i, n)] + [f's_waitcnt vmcnt({n - 1 - i})'] + test(r)
                        blk += [f's_cbranch_vccnz {Lr}', f's_branch {Lb}']
                    blk += [Lr + '_to:', f's_mov_b32 s{sTO}, 0', 's_waitcnt vmcnt(0)', f's_branch {Lb}']
                    ool.append(blk)
        Ltop = k.label('step'); Lafter = k.label('gotmem'); Lafter2 = k.label('gotmem2')
        e(f's_branch {Lafter}')
        e(Ltop + ':')
        e(f'''s_and_b32 s{sT0}, s{sS}, 3
        s_mul_i32 s{sA}, s{sT0}, 10240
        s_add_u32 s{sA}, s{sA}, s{sMEMBx}''')
        if (D4T if twin else D4): e(f's_sleep {D4T if twin else D4}')
        mld = [f'buffer_load_dwordx4 {R(MEMR)}, v{vMld}, {WS}, s{sA} offen sc1',
               f'buffer_load_dwordx4 {R(MEMR+4)}, v{vMld}, {WS}, s{sA} offen offset:1024 sc1',
               f'buffer_load_dwordx4 {R(MEMR+8)}, v{vMld2}, {WS}, s{sA} offen sc1']
        mwr = [f'ds_write_b128 v{vMld}, {R(MEMR)}', f'ds_write_b128 v{vMld}, {R(MEMR+4)} offset:1024', f'ds_write_b128 v{vMld2}, {R(MEMR+8)}']
        for x in mld: e(x)
        sec = None
        if DS4 is not None:
            if DS4: e(f's_sleep {DS4}')
            for i, x in enumerate(mld): e(x.replace(R(MEMR+4*i), R(vX+4*i)))
            sec = (None, lambda i: list(range(MEMR+4*i, MEMR+4*i+4)), lambda i: list(range(vX+4*i, vX+4*i+4)))
        prog(3, lambda i: mld[i], lambda i: [MEMR+4*i, MEMR+4*i+2], lambda i: e(mwr[i]), cnt=13, second=sec)
        e(f's_branch {Lafter2}')
        e(Lafter + ':')
        for x in mwr: e(x)
        e(Lafter2 + ':')
        stamp(0)
        e(f'''s_and_b32 s{sT0}, s{sS}, 3
        s_mul_i32 s{sB}, s{sT0}, 6144
        s_add_u32 s{sB}, s{sB}, s{sQKh}
        s_mul_i32 s{sO_}, s{sT0}, 12288
        s_add_u32 s{sO_}, s{sO_}, s{sOBx}
        s_mul_i32 s{sPp}, s{sT0}, 393216
        s_add_u32 s{sPp}, s{sPp}, s{sPARTB}
        s_add_u32 s{sT1}, s{sS}, 1
        s_and_b32 s{sT1}, s{sT1}, 3
        s_mul_i32 s{sE}, s{sT1}, 10240
        s_add_u32 s{sE}, s{sE}, s{sMEMBx}
        s_waitcnt lgkmcnt(0)
        s_barrier''')
        stamp(1, True)
        if DENSE:
            VR = MEMR + 40
            for i in range(10):
                e(f'ds_read_b128 {R(MEMR+4*i)}, v{vMdA if i < 5 else vMdB} offset:{(i%5)*1024}')
            for i in range(10):
                e('s_waitcnt lgkmcnt(9)')
                e(f'v_mfma_f32_16x16x32_bf16 {R(vACC)}, a[{aW1+8*i}:{aW1+8*i+3}], {R(MEMR+4*i)}, ' + ('0' if i == 0 else R(vACC)))
                e(f'ds_read_b128 {R(VR+4*i)}, v{vMrdA} offset:{i*512}')
                e(f'v_mfma_f32_16x16x32_bf16 {R(vAC2)}, a[{aW1+8*i+4}:{aW1+8*i+7}], {R(MEMR+4*i)}, ' + ('0' if i == 0 else R(vAC2)))
            e('s_waitcnt lgkmcnt(9)')
            e(f'v_mfma_f32_16x16x32_bf16 {R(vACV)}, {R(VR)}, a[{aWV}:{aWV+3}], 0')
        else:
            VR = MEMR
            def memrd(b): return f'ds_read_b128 {R(MEMR+4*b)}, v{vMrdA if b < 10 else vMrdB} offset:{(b%10)*512}'
            NPRE = 12
            for b in range(NPRE): e(memrd(b))
            for b in range(20):
                nxt = b + NPRE
                if nxt < 20: e(memrd(nxt)); e(f's_waitcnt lgkmcnt({NPRE})')
                else: e(f's_waitcnt lgkmcnt({19-b})')
                c = '0' if b == 0 else R(vACC)
                e(f'v_mfma_f32_16x16x32_bf16 {R(vACC)}, a[{aW1+4*b}:{aW1+4*b+3}], {R(MEMR+4*b)}, {c}')
            e(f'v_mfma_f32_16x16x32_bf16 {R(vACV)}, {R(MEMR)}, a[{aWV}:{aWV+3}], 0')
        e(f'''s_lshl_b32 s{sT0}, s{sS}, 5
        s_add_u32 s{sT0}, s{sT0}, s{sH}
        s_mul_i32 s{sT0}, s{sT0}, 3072
        s_lshl_b32 s{sT1}, s{sJ}, 9
        s_add_u32 s{sT0}, s{sT0}, s{sT1}
        s_add_u32 s{sKM}, s{sT0}, {L.KM}
        s_add_u32 s{sVM}, s{sT0}, {L.VM}
''')
        if DENSE:
            for r in range(4): e(f'v_add_f32_dpp v{vACC+r}, v{vAC2+r}, v{vACC+r} row_ror:8 row_mask:0xf bank_mask:0xf')
        e(f'''v_cvt_pk_bf16_f32 v{vQK}, v{vACC}, v{vACC+1}
        v_cvt_pk_bf16_f32 v{vQK+1}, v{vACC+2}, v{vACC+3}
        buffer_store_dwordx2 {R(vQK,2)}, v{vXst}, {WS}, s{sB} offen {SF}''')
        stamp(2)
        for b in range(1, 10):
            if DENSE: e(f's_waitcnt lgkmcnt({9-b})')
            e(f'v_mfma_f32_16x16x32_bf16 {R(vACV)}, {R(VR+4*b)}, a[{aWV+4*b}:{aWV+4*b+3}], {R(vACV)}')
        LS = k.label('swave'); Lnk = k.label('nokm'); Llast = k.label('last')
        xloads = [f'buffer_load_dwordx4 {R(vX+4*i)}, v{[vL16, vL16b][i//4]}, {WS}, s{sB} offen offset:{(i%4)*1024} sc1' for i in range(6)]
        Lb3 = k.label('b3'); Lb4 = k.label('b4'); Lb5 = k.label('b5')
        def poison_soffsets():
            e(f"""s_add_u32 s{sT0}, s{sS}, 2
            s_and_b32 s{sT0}, s{sT0}, 3
            s_mul_i32 s{sA2}, s{sT0}, 10240
            s_add_u32 s{sA2}, s{sA2}, s{sMEMBx}
            s_mul_i32 s{sB2}, s{sT0}, 6144
            s_add_u32 s{sB2}, s{sB2}, s{sQKh}
            s_mul_i32 s{sO2}, s{sT0}, 12288
            s_add_u32 s{sO2}, s{sO2}, s{sOBx}
            s_mul_i32 s{sP2}, s{sT0}, 393216
            s_add_u32 s{sP2}, s{sP2}, s{sPARTB}""")
        def v_assemble():
            for r in range(4):
                e(f'v_add_f32 v{vVPr+r}, v{vVPr+r}, v{vVPr+8+r}')
                e(f'v_add_f32 v{vVPr+4+r}, v{vVPr+4+r}, v{vACV+r}')
            e(f"""v_cvt_pk_bf16_f32 v{vVMf}, v{vVPr}, v{vVPr+1}
            v_cvt_pk_bf16_f32 v{vVMf+1}, v{vVPr+2}, v{vVPr+3}
            v_cvt_pk_bf16_f32 v{vVMf+2}, v{vVPr+4}, v{vVPr+5}
            v_cvt_pk_bf16_f32 v{vVMf+3}, v{vVPr+6}, v{vVPr+7}""")
        vp_reads = f"""ds_read_b128 {R(vVPr)}, v{vL16} offset:{LDS_VP}
        ds_read_b128 {R(vVPr+4)}, v{vL16} offset:{LDS_VP+1024}
        ds_read_b128 {R(vVPr+8)}, v{vL16} offset:{LDS_VP+2048}"""
        e(f's_cmp_eq_u32 s{sW}, 3\ns_cbranch_scc1 {LS}')
        e(f'ds_write_b128 v{vVP}, {R(vACV)}')
        poison_soffsets()
        e(f"""s_waitcnt lgkmcnt(0)
        s_barrier
        s_cmp_eq_u32 s{sS}, {nsteps-1}
        s_cbranch_scc1 {Llast}
        buffer_store_dwordx2 {R(vNEG1,2)}, v{vXst}, {WS}, s{sB2} offen {SF}""")
        if twin:
            L1_ = k.label('tw1'); L2_ = k.label('tw2')
            e(f"""s_cmp_lg_u32 s{sW}, 2
            s_cbranch_scc1 {L1_}_n
            buffer_store_dwordx2 {R(vQK,2)}, v{vKMst}, {WS}, s{sKM} offen {SF}""")
            e(L1_ + '_n:')
            e(f"""s_barrier
            s_cmp_eq_u32 s{sW}, 1
            s_cbranch_scc1 {L1_}
            s_cmp_eq_u32 s{sW}, 2
            s_cbranch_scc1 {L2_}
            s_cmp_lt_u32 s{sS}, 2
            s_cbranch_scc1 {Lb5}
            s_cmp_gt_u32 s{sS}, {nsteps-3}
            s_cbranch_scc1 {Lb5}""")
            twin_partA()
            stamp(6)
            e(f's_branch {Lb5}')
            e(L1_ + ':')
            e(f's_cmp_lt_u32 s{sS}, 3\ns_cbranch_scc1 {Lb5}')
            twin_partB(0)
            stamp(7)
            e(f's_branch {Lb5}')
            e(L2_ + ':')
            e(f's_cmp_lt_u32 s{sS}, 3\ns_cbranch_scc1 {Lb5}')
            twin_partB(1)
            stamp(7)
            e(f's_branch {Lb5}')
        e(f"""s_cmp_lg_u32 s{sW}, 2
        s_cbranch_scc1 {Lb3}""")
        e(f"""buffer_store_dwordx2 {R(vQK,2)}, v{vKMst}, {WS}, s{sKM} offen {SF}
        buffer_store_dwordx2 {R(vNEG1,2)}, v{vMst}, {WS}, s{sA2} offen {SF}""")
        stamp_flush()
        e(f"""s_cmp_lg_u32 s{sC}, 0
        s_cbranch_scc1 {Lb3}
        v_mov_b32 v{vT0}, s{sS}
        s_lshl_b32 s{sT0}, s{sX}, 7
        s_add_u32 s{sT0}, s{sT0}, {L.PROG}
        buffer_store_dword v{vT0}, v{vZ}, {WS}, s{sT0} offen {SF}
        s_branch {Lb3}""")
        e(Llast + ':')
        e(f"""s_cmp_lg_u32 s{sW}, 2
        s_cbranch_scc1 {Lexit}
        buffer_store_dwordx2 {R(vQK,2)}, v{vKMst}, {WS}, s{sKM} offen
        s_branch {Lexit}""")
        e(LS + ':')
        Lvmst = k.label('vmst')
        e(f's_cmp_lg_u32 s{sS}, {nsteps-1}\ns_cbranch_scc1 {Lvmst}')
        e('s_barrier')
        e(vp_reads)
        e('s_waitcnt lgkmcnt(0)')
        v_assemble()
        e(f"""buffer_store_dwordx2 {R(vQK,2)}, v{vKMst}, {WS}, s{sKM} offen
        buffer_store_dwordx2 {R(vVMf,2)}, v{vVMst}, {WS}, s{sVM} offen
        buffer_store_dwordx2 {R(vVMf+2,2)}, v{vVMst}, {WS}, s{sVM} offen offset:256
        s_branch {Lexit}""")
        e(Lvmst + ':')
        if D1: e(f's_sleep {D1}')
        for x in xloads: e(x)
        SM, S0, S1 = vS, vS + 4, vS + 8
        def sc_consume(j):
            X = R(vX + 4 * j)
            e(f'v_mfma_f32_16x16x32_bf16 {R(S0)}, a[{aKT+4*j}:{aKT+4*j+3}], {X}, ' + ('0' if j == 0 else R(S0)))
            e(f'v_mfma_f32_16x16x32_bf16 {R(S1)}, a[{aKT+24+4*j}:{aKT+24+4*j+3}], {X}, ' + ('0' if j == 0 else R(S1)))
            e(f'v_mfma_f32_16x16x32_bf16 {R(SM)}, {X}, {X}, ' + (R(vCM) if j == 0 else R(SM)))
        sec = None
        if DS1 is not None:
            if DS1: e(f's_sleep {DS1}')
            for i, x in enumerate(xloads): e(x.replace(R(vX+4*i), R(MEMR+4*i)))
            sec = (None, lambda i: list(range(vX+4*i, vX+4*i+4)), lambda i: list(range(MEMR+4*i, MEMR+4*i+4)))
        prog(6, lambda j: xloads[j], lambda j: [vX+4*j, vX+4*j+2], sc_consume, cnt=10, second=sec)
        e('s_barrier')
        e(vp_reads)
        stamp(4)
        e(f"""v_max3_f32 v{vT0}, v{S0}, v{S0+1}, v{S0+2}
        v_max3_f32 v{vT1}, v{S1}, v{S1+1}, v{S1+2}
        v_max3_f32 v{vT0}, v{vT0}, v{S0+3}, v{S1+3}
        v_max3_f32 v{vT1}, v{vT1}, v{SM}, v{SM+1}
        v_max3_f32 v{vT0}, v{vT0}, v{SM+2}, v{SM+3}
        v_max_f32 v{vT0}, v{vT0}, v{vT1}
        v_mov_b32 v{vT1}, v{vT0}
        v_permlane32_swap_b32 v{vT0}, v{vT1}
        v_max_f32 v{vT0}, v{vT0}, v{vT1}
        v_mov_b32 v{vT1}, v{vT0}
        v_permlane16_swap_b32 v{vT0}, v{vT1}
        v_max_f32 v{vT0}, v{vT0}, v{vT1}
        v_mul_f32 v{vT0}, s{sCexp}, v{vT0}""")
        for r in list(range(4, 12)) + list(range(4)): e(f'v_fma_f32 v{vS+r}, v{vS+r}, s{sCexp}, -v{vT0}')
        for r in range(4, 12): e(f'v_exp_f32 v{vS+r}, v{vS+r}')
        PT = R(vP); PM = R(vP + 4, 2)
        e(f"""v_cvt_pk_bf16_f32 v{vP}, v{S0}, v{S0+1}
        v_cvt_pk_bf16_f32 v{vP+1}, v{S0+2}, v{S0+3}
        v_cvt_pk_bf16_f32 v{vP+2}, v{S1}, v{S1+1}
        v_cvt_pk_bf16_f32 v{vP+3}, v{S1+2}, v{S1+3}
        v_exp_f32 v{SM}, v{SM}
        v_exp_f32 v{SM+1}, v{SM+1}
        v_mfma_f32_16x16x32_bf16 {R(vLs)}, {R(vONES)}, {PT}, 0
        v_exp_f32 v{SM+2}, v{SM+2}
        v_exp_f32 v{SM+3}, v{SM+3}
        v_mfma_f32_16x16x32_bf16 {R(vO)}, a[{aVT}:{aVT+3}], {PT}, 0
        v_cvt_pk_bf16_f32 v{vP+4}, v{SM}, v{SM+1}
        v_cvt_pk_bf16_f32 v{vP+5}, v{SM+2}, v{SM+3}
        v_mfma_f32_16x16x32_bf16 {R(vO+4)}, a[{aVT+4}:{aVT+7}], {PT}, 0
        s_waitcnt lgkmcnt(0)
        v_mfma_f32_16x16x16_bf16 {R(vLs)}, {R(vONES,2)}, {PM}, {R(vLs)}""")
        v_assemble()
        e(f"""v_mfma_f32_16x16x16_bf16 {R(vO)}, {R(vVMf,2)}, {PM}, {R(vO)}
        v_rcp_f32 v{vT0}, v{vLs}
        v_mfma_f32_16x16x16_bf16 {R(vO+4)}, {R(vVMf+2,2)}, {PM}, {R(vO+4)}
        v_mov_b32 v{vT1}, v{vT0}""")
        for r in range(4): e(f'v_pk_mul_f32 {R(vO+2*r,2)}, {R(vO+2*r,2)}, v[{vT0}:{vT0+1}]')
        for r in range(4): e(f'v_cvt_pk_bf16_f32 v{vOp+r}, v{vO+2*r}, v{vO+2*r+1}')
        e(f'buffer_store_dwordx4 {R(vOp)}, v{vOst}, {WS}, s{sO_} offen {SF}')
        stamp(5)
        if twin:
            e('s_barrier')
            poison_soffsets()
            e(f'''buffer_store_dwordx2 {R(vNEG1,2)}, v{vXst}, {WS}, s{sB2} offen {SF}
            buffer_store_dwordx4 {R(vNEG1)}, v{vOst}, {WS}, s{sO2} offen {SF}''')
            Lnopf = k.label('nopf')
            e(f'''s_add_u32 s{sT2}, s{sS}, 1
            s_cmp_ge_u32 s{sT2}, {nsteps-1}
            s_cbranch_scc1 {Lnopf}''')
            prefetch(sT2)
            e(Lnopf + ':')
            e(f'''buffer_store_dwordx2 {R(vQK,2)}, v{vKMst}, {WS}, s{sKM} offen {SF}
            buffer_store_dwordx2 {R(vVMf,2)}, v{vVMst}, {WS}, s{sVM} offen {SF}
            buffer_store_dwordx2 {R(vVMf+2,2)}, v{vVMst}, {WS}, s{sVM} offen offset:256 {SF}''')
            stamp(8)
            e(Lb5 + ':')
            e('s_barrier')
            stamp(9)
            stamp_flush()
            e(f'''s_add_u32 s{sS}, s{sS}, 1
            s_branch {Ltop}''')
            e(Lb3 + ':')
            e('s_endpgm')
            for blk in ool:
                for x in blk: e(x)
            return
        e(Lb3 + ':')
        Lnotg2 = k.label('notg2')
        e(f's_barrier\ns_cmp_ge_u32 s{sW}, 2\ns_cbranch_scc1 {Lnotg2}')
        if D2: e(f's_sleep {D2}')
        vO_ = [vOld, vOldb, vOldc]
        oloads = [f'buffer_load_dwordx4 {R(vG2+4*i)}, v{vO_[i//4]}, {WS}, s{sO_} offen offset:{(i%4)*1024} sc1' for i in range(12)]
        for x in oloads: e(x)
        def g2_consume(i):
            e(f'v_mfma_f32_16x16x32_bf16 {R(vD1)}, a[{aW2+8*i}:{aW2+8*i+3}], {R(vG2+4*i)}, ' + ('0' if i == 0 else R(vD1)))
            e(f'v_mfma_f32_16x16x32_bf16 {R(vD2)}, a[{aW2+8*i+4}:{aW2+8*i+7}], {R(vG2+4*i)}, ' + ('0' if i == 0 else R(vD2)))
        prog(12, lambda i: oloads[i], lambda i: [vG2+4*i], g2_consume, cnt=11)
        for r in range(4): e(f'v_add_f32_dpp v{vR+r}, v{vD2+r}, v{vD1+r} row_ror:8 row_mask:0xf bank_mask:0xf')
        e(f'buffer_store_dwordx4 {R(vR)}, v{vPst}, {WS}, s{sPp} offen sc1')
        if DUAL: e(f'buffer_store_dwordx4 {R(vR)}, v{vPst2}, {WS}, s{sPp} offen sc1')
        stamp(7)
        e(f'buffer_store_dwordx4 {R(vNEG1)}, v{vPst}, {WS}, s{sP2} offen sc1')
        if DUAL: e(f'buffer_store_dwordx4 {R(vNEG1)}, v{vPst2}, {WS}, s{sP2} offen sc1')
        e(f's_branch {Lb4}')
        e(Lnotg2 + ':')
        e(f's_cmp_lg_u32 s{sW}, 3\ns_cbranch_scc1 {Lb4}')
        poison_soffsets()
        e(f'''buffer_store_dwordx2 {R(vNEG1,2)}, v{vXst}, {WS}, s{sB2} offen {SF}
        buffer_store_dwordx4 {R(vNEG1)}, v{vOst}, {WS}, s{sO2} offen {SF}''')
        e(Lb4 + ':')
        Lnot2 = k.label('not2')
        e(f's_barrier\ns_cmp_lg_u32 s{sW}, 2\ns_cbranch_scc1 {Lnot2}')
        if D3: e(f's_sleep {D3}')
        ploads = [f'buffer_load_dwordx4 {R(vH3+4*i)}, v{vPld+i}, {WS}, s{sPp} offen sc1' for i in range(8)]
        for x in ploads: e(x)
        def h3_consume(i):
            if i == 0: return
            e(f'v_pk_add_f32 {R(vR,2)}, ' + (R(vH3,2) if i == 1 else R(vR,2)) + f', {R(vH3+4*i,2)}')
            e(f'v_pk_add_f32 {R(vR+2,2)}, ' + (R(vH3+2,2) if i == 1 else R(vR+2,2)) + f', {R(vH3+4*i+2,2)}')
        sec = None
        if DS3 is not None:
            if DS3: e(f's_sleep {DS3}')
            for i, x in enumerate(ploads): e(x.replace(R(vH3+4*i), R(vH3+32+4*i)))
            sec = (None, lambda i: list(range(vH3+4*i, vH3+4*i+4)), lambda i: list(range(vH3+32+4*i, vH3+32+4*i+4)))
        prog(8, lambda i: ploads[i], lambda i: [vH3+4*i], h3_consume, cnt=12, second=sec)
        e(f'''v_cvt_pk_bf16_f32 v{vH3+4}, v{vR}, v{vR+1}
        v_cvt_pk_bf16_f32 v{vH3+5}, v{vR+2}, v{vR+3}
        buffer_store_dwordx2 {R(vH3+4,2)}, v{vMst}, {WS}, s{sE} offen {SF}''')
        stamp(9)
        e(f's_branch {Lb5}')
        e(Lnot2 + ':')
        stamp_flush()
        e(f'''s_cmp_lg_u32 s{sW}, 3
        s_cbranch_scc1 {Lb5}''')
        Lnopf = k.label('nopf')
        e(f'''s_add_u32 s{sT2}, s{sS}, 1
        s_cmp_ge_u32 s{sT2}, {nsteps-1}
        s_cbranch_scc1 {Lnopf}''')
        prefetch(sT2)
        e(Lnopf + ':')
        e(f'''buffer_store_dwordx2 {R(vQK,2)}, v{vKMst}, {WS}, s{sKM} offen {SF}
        buffer_store_dwordx2 {R(vVMf,2)}, v{vVMst}, {WS}, s{sVM} offen {SF}
        buffer_store_dwordx2 {R(vVMf+2,2)}, v{vVMst}, {WS}, s{sVM} offen offset:256 {SF}''')
        e(Lb5 + ':')
        e(f'''s_barrier
        s_add_u32 s{sS}, s{sS}, 1
        s_branch {Ltop}''')
        for blk in ool:
            for x in blk: e(x)
    if TWIN:
        Ltw = k.label('twinf'); Ltw2 = k.label('twins')
        e(f's_cmp_ge_u32 s{sC}, 20\ns_cbranch_scc1 {Ltw}')
        loop('')
        e(Ltw + ':')
        loop('', twin=True)
        e(Lslow + ':')
        e(f's_cmp_ge_u32 s{sC}, 20\ns_cbranch_scc1 {Ltw2}')
        loop('sc1')
        e(Ltw2 + ':')
        loop('sc1', twin=True)
    else:
        loop('')
        e(Lslow + ':')
        loop('sc1')
    e(Lproj + ':')
    if PROJ:
        proj.emit(k, sWS, sX, sC, sW, sTO, Lexit, nsteps, LEAD=PLEAD, census_wait=census_wait, sMODE=sMODE, preread=PREREAD, pace=PACE, spread=SPREAD, prof=(TL is not None and PPROF), tlbw=(TLBW >= 2))
    e(Lexit + ':')
    if TL is not None:
        if PPROF:
            Lsk = k.label('sk3')
            e(f's_cmp_eq_u32 s99, 0x12345\ns_cbranch_scc1 {Lsk}')
            tl(3)
            e(Lsk + ':')
        else: tl(3)
        Lw2 = k.label('notw2')
        e(f'''s_cmp_lg_u32 s{sW}, 2
        s_cbranch_scc1 {Lw2}
        s_and_b32 s94, s{sPM0}, 0xffff
        s_lshl_b32 s96, s{sPM1}, 16
        s_or_b32 s94, s94, s96
        s_mov_b32 s96, s{sXCC}''')
        e(Lw2 + ':')
        e(f'''v_mov_b32 v10, s92
        v_mov_b32 v11, s94
        v_mov_b32 v12, s96
        v_mov_b32 v13, s98
        v_lshrrev_b32 v14, 6, v0
        v_and_b32 v15, 63, v0
        s_lshl_b32 s90, s91, 6
        v_lshlrev_b32 v14, 4, v14
        v_add_u32 v14, s90, v14
        v_cmp_eq_u32 vcc, 0, v15
        v_mov_b32 v15, 0x80000000
        v_cndmask_b32 v14, v15, v14, vcc
        s_mov_b32 s90, {L.STAMP + TL}
        buffer_store_dwordx4 v[10:13], v14, s[4:7], s90 offen
        s_sub_u32 s86, s86, s84
        v_mov_b32 v10, s86
        s_add_u32 s90, s90, 32768
        buffer_store_dword v10, v14, s[4:7], s90 offen''')
    e(Lexit2 + ':')
    e('s_endpgm')
    return k, max(LDS_SIZE, proj.LDS_SIZE if PROJ else 0)
```

```python
import struct
from asmgen import *
import layout as L
OOB = 0x80000000
def fbits(x): return struct.unpack('<I', struct.pack('<f', x))[0]

def gen(name, from_input, prof=None):
    k = Kernel(name, vgpr=248, agpr=0, sgpr=102 if prof is not None else 48); e = k.e; k.prof = prof
    srd = 's[4:7]'
    R = lambda b, n=4: f'v[{b}:{b+n-1}]'
    vA, vT0, vT1, vS, vLd, vL16, vXa = 1, 2, 3, 4, 5, 14, 15
    vX = 16
    vF = 36
    vP = 80
    Lx = k.label('exit')
    e(f'''s_cmp_ge_u32 s2, 128
    s_cbranch_scc1 {Lx}
    s_load_dwordx2 s[12:13], s[0:1], 96
    s_load_dwordx2 s[14:15], s[0:1], 0''')
    k.ts(0)
    e(f'''v_lshrrev_b32 v{vT0}, 6, v0
    v_and_b32 v{vT1}, 63, v0
    s_nop 0
    v_readfirstlane_b32 s16, v{vT0}
    v_lshlrev_b32 v{vL16}, 4, v{vT1}
    s_waitcnt lgkmcnt(0)
    s_mov_b32 s4, s12
    s_mov_b32 s5, s13
    s_mov_b32 s6, 0x10000000
    s_mov_b32 s7, 0x20000''')
    if from_input:
        e(f's_mov_b32 s8, s14\ns_mov_b32 s9, s15\ns_mov_b32 s10, {2048*1280}\ns_mov_b32 s11, 0x20000\ns_mov_b32 s20, 0')
    else:
        e(f's_mov_b32 s8, s12\ns_mov_b32 s9, s13\ns_mov_b32 s10, 0x10000000\ns_mov_b32 s11, 0x20000\ns_mov_b32 s20, {L.X1}')
    e(f'''v_and_b32 v{vT0}, 15, v{vT1}
    v_lshrrev_b32 v{vS}, 4, v{vT1}
    s_lshl_b32 s17, s2, 4
    v_add_u32 v{vXa}, s17, v{vT0}
    v_mul_u32_u24 v{vXa}, 1280, v{vXa}
    v_lshl_add_u32 v{vXa}, v{vS}, 4, v{vXa}
    s_mul_i32 s17, s16, 320
    s_add_u32 s20, s20, s17
    s_add_u32 s21, s17, {L.X1}''')
    e(f'''s_mul_i32 s22, s2, 20
    s_mul_i32 s23, s16, 5
    s_add_u32 s22, s22, s23
    s_lshl_b32 s22, s22, 10
    s_add_u32 s22, s22, {L.PARTO}''')
    XS = 128 * 20 * 1024
    for x in range(8): e(f's_add_u32 s{24+x}, s22, {x*XS}')
    e(f'v_add_u32 v6, 0x1000, v{vL16}')
    for q in range(5): e(f'buffer_load_dwordx4 {R(vX+4*q)}, v{vXa}, s[8:11], s20 offen offset:{q*64}')
    vPp = 80
    for q in range(5):
        for x in range(8):
            r = vPp + 32 * q + 4 * x
            e(f'buffer_load_dwordx4 {R(r)}, v{vL16 if q < 4 else 6}, {srd}, s{24+x} offen offset:{(q%4)*1024}')
    for q in range(5):
        e(f's_waitcnt vmcnt({8*(4-q) + q})')
        r = vPp + 32 * q; f = vF + 8 * q
        for i in range(4):
            e(f'v_lshlrev_b32 v{f+2*i}, 16, v{r+i}')
            e(f'v_and_b32 v{f+2*i+1}, 0xffff0000, v{r+i}')
        for x in range(1, 8):
            for i in range(4):
                e(f'v_lshlrev_b32 v8, 16, v{r+4*x+i}')
                e(f'v_and_b32 v9, 0xffff0000, v{r+4*x+i}')
                e(f'v_pk_add_f32 {R(f+2*i,2)}, {R(f+2*i,2)}, v[8:9]')
        for i in range(4):
            xr = vX + 4 * q + i
            e(f'''v_cvt_pk_bf16_f32 v8, v{f+2*i}, v{f+2*i+1}
            v_lshlrev_b32 v{f+2*i}, 16, v8
            v_and_b32 v{f+2*i+1}, 0xffff0000, v8
            v_lshlrev_b32 v10, 16, v{xr}
            v_and_b32 v11, 0xffff0000, v{xr}
            v_pk_add_f32 {R(f+2*i,2)}, {R(f+2*i,2)}, v[10:11]
            v_cvt_pk_bf16_f32 v{xr}, v{f+2*i}, v{f+2*i+1}
            v_lshlrev_b32 v{f+2*i}, 16, v{xr}
            v_and_b32 v{f+2*i+1}, 0xffff0000, v{xr}''')
        e(f'buffer_store_dwordx4 {R(vX+4*q)}, v{vXa}, {srd}, s21 offen offset:{q*64}')
    k.ts(1)
    e(f'''v_and_b32 v{vT1}, 63, v0
    v_and_b32 v{vT0}, 15, v{vT1}
    v_lshlrev_b32 v{vLd}, 2, v{vT0}
    s_lshl_b32 s17, s16, 6
    v_add_u32 v{vA}, s17, v{vLd}''')
    def reduce_row(off):
        e(f'''v_mov_b32 v{vT0}, v{vS}
        v_permlane32_swap_b32 v{vS}, v{vT0}
        v_add_f32 v{vS}, v{vS}, v{vT0}
        v_mov_b32 v{vT0}, v{vS}
        v_permlane16_swap_b32 v{vS}, v{vT0}
        v_add_f32 v{vS}, v{vS}, v{vT0}
        ds_write_b32 v{vA}, v{vS} offset:{off}
        s_waitcnt lgkmcnt(0)
        s_barrier
        ds_read_b32 v{vS}, v{vLd} offset:{off}
        ds_read_b32 v{vT0}, v{vLd} offset:{off+64}
        ds_read_b32 v{vT1}, v{vLd} offset:{off+128}
        ds_read_b32 v6, v{vLd} offset:{off+192}
        s_waitcnt lgkmcnt(0)
        v_add_f32 v{vS}, v{vS}, v{vT0}
        v_add_f32 v{vT1}, v{vT1}, v6
        v_add_f32 v{vS}, v{vS}, v{vT1}''')
    e(f'v_pk_add_f32 v[6:7], {R(vF,2)}, {R(vF+2,2)}')
    for i in range(2, 20): e(f'v_pk_add_f32 v[6:7], v[6:7], {R(vF+2*i,2)}')
    e(f'v_add_f32 v{vS}, v6, v7')
    reduce_row(0)
    e(f'v_mul_f32 v6, {fbits(-1/640):#x}, v{vS}\nv_mov_b32 v7, v6')
    for i in range(20): e(f'v_pk_add_f32 {R(vF+2*i,2)}, {R(vF+2*i,2)}, v[6:7]')
    e(f'v_pk_mul_f32 v[6:7], {R(vF,2)}, {R(vF,2)}')
    for i in range(1, 20): e(f'v_pk_fma_f32 v[6:7], {R(vF+2*i,2)}, {R(vF+2*i,2)}, v[6:7]')
    e(f'v_add_f32 v{vS}, v6, v7')
    reduce_row(256)
    e(f'''v_mov_b32 v{vT0}, {fbits(1e-5):#x}
    v_fmac_f32 v{vT0}, {fbits(1/640):#x}, v{vS}
    v_rsq_f32 v6, v{vT0}''')
    e('v_mov_b32 v7, v6')
    for i in range(20): e(f'v_pk_mul_f32 {R(vF+2*i,2)}, {R(vF+2*i,2)}, v[6:7]')
    for i in range(20): e(f'v_cvt_pk_bf16_f32 v{vX+i}, v{vF+2*i}, v{vF+2*i+1}')
    e(f'''v_and_b32 v{vT1}, 63, v0
    v_and_b32 v{vT0}, 15, v{vT1}
    v_lshlrev_b32 v{vA}, 4, v{vT0}
    v_bfe_u32 v{vT0}, v{vT1}, 4, 1
    v_lshl_add_u32 v{vA}, v{vT0}, 9, v{vA}
    v_lshrrev_b32 v{vT0}, 5, v{vT1}
    v_lshl_add_u32 v{vA}, v{vT0}, 10, v{vA}
    s_lshr_b32 s17, s2, 1
    s_mul_i32 s17, s17, 40960
    s_and_b32 s18, s2, 1
    s_lshl_b32 s18, s18, 8
    s_add_u32 s17, s17, s18
    s_mul_i32 s18, s16, 10240
    s_add_u32 s17, s17, s18
    s_add_u32 s17, s17, {L.XNB}''')
    for q in range(5):
        if q == 2 or q == 4: e('s_add_u32 s17, s17, 4096')
        e(f'buffer_store_dwordx4 {R(vX+4*q)}, v{vA}, {srd}, s17 offen offset:{(q%2)*2048}')
    k.ts(2)
    k.ts_flush(3, srd, v0=240)
    e(Lx + ':')
    e('s_endpgm')
    return k, 512
```

```python
import sys; sys.path.insert(0, 'gen')
import prep, ln, rec2 as rec, attn_a, outproj_a, qkv_b, attn_b, fin, redln, layout as L
from asmgen import *
def build(path, rec_kw=None, upto=None, tl=False, prof=False):
    P = (lambda o: o) if prof else (lambda o: None)
    if prof == 'cyc': Kernel.tsi = 's_memtime'
    rec_kw = {} if rec_kw is None else rec_kw
    kp, nwg, lds_p = prep.gen('prep_kernel')
    kl2, lds_ln = ln.gen('ln2_kernel', False)
    ka, lds_a = rec.gen('reca_kernel', **rec_kw, **(dict(TL=0) if tl else {}))
    ka2 = rec.gen('reca2_kernel', **rec_kw, TL=65536)[0] if tl else None
    kf, lds_f = fin.gen('fin_kernel', prof=P(0), twin=bool(rec_kw.get('TWIN', rec.TWIN_DEFAULT)))
    kr1, lds_r = redln.gen('redln1_kernel', True, prof=P(262144)); kr2, _ = redln.gen('redln2_kernel', False)
    kq, lds_q = qkv_b.gen('qkvb_kernel', prof=P(65536)); kab, _ = attn_b.gen('attnb_kernel', prof=P(131072))
    kb1 = outproj_a.gen('outb1_kernel', False, nk=32, wbase=L.WB2, abase=L.OB2, prof=P(196608))
    kb2 = outproj_a.gen('outb2_kernel', False, nk=32, wbase=L.WB2, abase=L.OB2, out_to_dout=True)
    B = (256, 1, 1); G = lambda n: (n, 1, 1); lo = outproj_a.LDS_SIZE
    launches = [('prep_kernel', G(nwg), B, lds_p)]
    for layer in range(2):
        launches += ([('ln2_kernel', G(128), B, lds_ln)] if layer else []) + [('reca2_kernel' if (tl and layer) else 'reca_kernel', G(256), B, lds_a), ('fin_kernel', G(256), B, lds_f),
                     ('redln1_kernel' if layer == 0 else 'redln2_kernel', G(128), B, lds_r), ('qkvb_kernel', G(256), B, lds_q), ('attnb_kernel', G(256), B, 0),
                     ('outb1_kernel' if layer == 0 else 'outb2_kernel', G(256), B, lo)]
    txt = build_file(launches, [kp, kl2, ka, kf, kr1, kr2, kq, kab, kb1, kb2] + ([ka2] if tl else []))
    open(path, 'w').write(txt)
    print('written', path, len(txt))
if __name__ == '__main__':
    kw = {}
    for a in sys.argv[2:]:
        if '=' in a:
            x, y = a.split('='); kw[x] = int(y)
    build(sys.argv[1] if len(sys.argv) > 1 else '/code/' + NAME + '.s', rec_kw=kw, tl='tl' in sys.argv, prof=('cyc' if 'cyc' in sys.argv else 'prof' in sys.argv))
```

```python
import math, struct
from asmgen import *
import layout as L
import redln
OOB = 0x80000000
LDS_SIZE = 96 * 1024

def gen(name='fin_kernel', prof=None, twin=False, fuse=False):
    k = Kernel(name, vgpr=256, agpr=240, sgpr=102 if prof is not None else 64); e = k.e; k.prof = prof
    srd = 's[4:7]'
    R = lambda b, n=4: f'v[{b}:{b+n-1}]'
    vL16, vL16b, vL16c, vKM, vVM, vT0, vT1, vT2 = 1, 2, 3, 4, 5, 6, 7, 8
    vOOB, vLw, vLw2 = 9, 240, 241
    vCM, vCD, vONES = 12, 16, 20
    vS, vP, vLs, vO, vOp = 24, 44, 54, 64, 80
    vQ, vK, vKm = 88, 136, 184
    vV, vVm = 88, 136
    Lx = k.label('exit')
    cexp = (192 ** -0.5) * math.log2(math.e)
    cbits = struct.unpack('<I', struct.pack('<f', cexp))[0]
    e(f'''s_cmp_ge_u32 s2, 256
    s_cbranch_scc1 {Lx}
    s_load_dwordx2 s[8:9], s[0:1], 96''')
    k.ts(0)
    e(f'''v_lshrrev_b32 v{vT0}, 6, v0
    v_and_b32 v{vT1}, 63, v0
    s_and_b32 s13, s2, 7
    v_readfirstlane_b32 s12, v{vT0}
    v_lshlrev_b32 v{vL16}, 4, v{vT1}
    v_add_u32 v{vL16b}, 0x1000, v{vL16}
    v_add_u32 v{vL16c}, 0x2000, v{vL16}
    s_lshr_b32 s14, s2, 3
    s_lshl_b32 s15, s13, 2
    s_add_u32 s15, s15, s12
    s_waitcnt lgkmcnt(0)
    s_mov_b32 s4, s8
    s_mov_b32 s5, s9
    s_mov_b32 s6, 0x10000000
    s_mov_b32 s7, 0x20000
    s_mov_b32 s27, {cbits:#x}''')
    i16, g = vT0, vT2
    e(f'''v_and_b32 v{i16}, 15, v{vT1}
    v_lshrrev_b32 v{g}, 4, v{vT1}
    v_mov_b32 v{vOOB}, {OOB:#x}
    v_lshlrev_b32 v10, 4, v{i16}
    v_lshl_add_u32 v10, v{g}, 7, v10
    v_cmp_gt_u32 vcc, 8, v{i16}
    v_cndmask_b32 v{vKM}, v{vOOB}, v10, vcc
    v_lshlrev_b32 v10, 3, v{vT1}
    v_cmp_gt_u32 vcc, 32, v{vT1}
    v_cndmask_b32 v{vVM}, v{vOOB}, v10, vcc
    v_mov_b32 v10, 0xf149f2ca
    v_cmp_le_u32 vcc, 2, v{g}
    v_cndmask_b32 v{vCM}, 0, v10, vcc
    v_mov_b32 v{vCM+1}, v{vCM}
    v_mov_b32 v{vCM+2}, v{vCM}
    v_mov_b32 v{vCM+3}, v{vCM}
    v_lshlrev_b32 v11, 2, v{g}''')
    for r in range(4):
        e(f'''v_add_u32 v{vT1}, {r}, v11
        v_cmp_gt_u32 vcc, v{vT1}, v{i16}
        v_cndmask_b32 v{vCD+r}, 0, v10, vcc''')
    for r in range(4): e(f'v_mov_b32 v{vONES+r}, 0x3f803f80')
    e(f'''s_mul_i32 s16, s12, 6144
    v_add_u32 v{vLw}, s16, v{vL16}
    v_add_u32 v{vLw2}, {2*24576}, v{vLw}''')
    vLs_ = [vL16, vL16b, vL16c]
    SM0, S00, SM1, S10, S11 = vS, vS + 4, vS + 8, vS + 12, vS + 16
    PM0, PT0, PM1, PT1 = vP, vP + 2, vP + 4, vP + 6
    L0, L1 = vLs + 2, vLs + 6
    def softmax(regs, mx, t):
        e(f'v_max3_f32 v{mx}, v{regs[0]}, v{regs[1]}, v{regs[2]}')
        r = regs[3:]
        while r:
            if len(r) >= 2: e(f'v_max3_f32 v{mx}, v{mx}, v{r[0]}, v{r[1]}'); r = r[2:]
            else: e(f'v_max_f32 v{mx}, v{mx}, v{r[0]}'); r = r[1:]
        e(f'''v_mov_b32 v{t}, v{mx}
        v_permlane32_swap_b32 v{mx}, v{t}
        v_max_f32 v{mx}, v{mx}, v{t}
        v_mov_b32 v{t}, v{mx}
        v_permlane16_swap_b32 v{mx}, v{t}
        v_max_f32 v{mx}, v{mx}, v{t}
        v_mul_f32 v{mx}, s27, v{mx}''')
        for x in regs: e(f'v_fma_f32 v{x}, v{x}, s27, -v{mx}')
        for x in regs: e(f'v_exp_f32 v{x}, v{x}')
    e(f'''s_mul_i32 s16, s12, 10
    s_mul_i32 s16, s16, 192
    s_mul_i32 s17, s13, 24
    s_add_u32 s16, s16, s17
    s_lshl_b32 s16, s16, 10
    s_add_u32 s16, s16, {L.WOP}''')
    for i in range(10): e(f's_add_u32 s{30+i}, s16, {i*192*1024}')
    Lp2 = k.label('phase2'); Ldma = k.label('odma')
    if twin: e(f's_cmp_lt_u32 s14, 30\ns_cbranch_scc1 {Ldma}')
    for seg in range(2):
        e(f'''s_lshl_b32 s17, s14, 1
        s_add_u32 s17, s17, {seg}
        s_and_b32 s17, s17, {L.RING-1}
        s_lshl_b32 s16, s15, {L.RL}
        s_add_u32 s16, s16, s17
        s_mul_i32 s16, s16, 12288
        s_add_u32 s20, s16, {L.QT}
        s_add_u32 s21, s16, {L.KT}
        s_add_u32 s22, s16, {L.VT}
        s_lshl_b32 s17, s17, 5
        s_add_u32 s17, s17, s15
        s_mul_i32 s17, s17, 3072
        s_add_u32 s23, s17, {L.KM}
        s_add_u32 s24, s17, {L.VM}''')
        for i in range(12): e(f'buffer_load_dwordx4 {R(vK+4*i)}, v{vLs_[i//4]}, {srd}, s21 offen offset:{(i%4)*1024}')
        for j in range(6): e(f'buffer_load_dwordx4 {R(vKm+4*j)}, v{vKM}, {srd}, s23 offen offset:{j*512}')
        for i in range(12): e(f'buffer_load_dwordx4 {R(vQ+4*i)}, v{vLs_[i//4]}, {srd}, s20 offen offset:{(i%4)*1024}')
        for j in range(6):
            e(f's_waitcnt vmcnt({5-j})')
            q0 = R(vQ + 4 * j); q1 = R(vQ + 24 + 4 * j); k0 = R(vK + 4 * j); k1 = R(vK + 24 + 4 * j); km = R(vKm + 4 * j)
            f = j == 0
            e(f'v_mfma_f32_16x16x32_bf16 {R(SM0)}, {km}, {q0}, {R(vCM) if f else R(SM0)}')
            e(f'v_mfma_f32_16x16x32_bf16 {R(S00)}, {k0}, {q0}, {R(vCD) if f else R(S00)}')
            e(f'v_mfma_f32_16x16x32_bf16 {R(SM1)}, {km}, {q1}, {R(vCM) if f else R(SM1)}')
            e(f'v_mfma_f32_16x16x32_bf16 {R(S10)}, {k0}, {q1}, ' + ('0' if f else R(S10)))
            e(f'v_mfma_f32_16x16x32_bf16 {R(S11)}, {k1}, {q1}, {R(vCD) if f else R(S11)}')
        for i in range(12): e(f'buffer_load_dwordx4 {R(vV+4*i)}, v{vLs_[i//4]}, {srd}, s22 offen offset:{(i%4)*1024}')
        for i in range(12): e(f'buffer_load_dwordx2 {R(vVm+2*i,2)}, v{vVM}, {srd}, s24 offen offset:{i*256}')
        softmax(list(range(SM0, SM0 + 8)), vT0, vT1)
        softmax(list(range(SM1, SM1 + 12)), vT2, 10)
        for (dst, src) in ((PM0, SM0), (PT0, S00), (PM1, SM1), (PT1, S10), (PT1 + 2, S11)):
            e(f'v_cvt_pk_bf16_f32 v{dst}, v{src}, v{src+1}')
            e(f'v_cvt_pk_bf16_f32 v{dst+1}, v{src+2}, v{src+3}')
        e(f'''v_mfma_f32_16x16x16_bf16 {R(L0)}, {R(vONES,2)}, {R(PM0,2)}, 0
        v_mfma_f32_16x16x16_bf16 {R(L1)}, {R(vONES,2)}, {R(PM1,2)}, 0
        v_mfma_f32_16x16x16_bf16 {R(L0)}, {R(vONES,2)}, {R(PT0,2)}, {R(L0)}
        v_mfma_f32_16x16x32_bf16 {R(L1)}, {R(vONES)}, {R(PT1)}, {R(L1)}
        v_rcp_f32 v10, v{L0}
        v_rcp_f32 v11, v{L1}
        s_waitcnt vmcnt(0)''')
        if seg == 1:
            for kk in range(2):
                for i in range(10):
                    b = 160 + 40 * kk + 4 * i
                    e(f'buffer_load_dwordx4 a[{b}:{b+3}], v{vL16}, {srd}, s{30+i} offen offset:{kk*1024}')
        for j in range(6):
            for t in range(2):
                et = 2 * j + t
                o0 = vO + 8 * t; o1 = o0 + 4
                vt = vV + 4 * et; vm = vVm + 2 * et
                e(f'v_mfma_f32_16x16x16_bf16 {R(o0)}, {R(vm,2)}, {R(PM0,2)}, 0')
                e(f'v_mfma_f32_16x16x16_bf16 {R(o1)}, {R(vm,2)}, {R(PM1,2)}, 0')
                e(f'v_mfma_f32_16x16x16_bf16 {R(o0)}, {R(vt,2)}, {R(PT0,2)}, {R(o0)}')
                e(f'v_mfma_f32_16x16x32_bf16 {R(o1)}, {R(vt)}, {R(PT1)}, {R(o1)}')
            for Tq in range(2):
                inv = 10 + Tq
                p = vOp + 4 * Tq
                for t in range(2):
                    o = vO + 8 * t + 4 * Tq
                    for r in range(4): e(f'v_mul_f32 v{o+r}, v{o+r}, v{inv}')
                    e(f'v_cvt_pk_bf16_f32 v{p+2*t}, v{o}, v{o+1}')
                    e(f'v_cvt_pk_bf16_f32 v{p+2*t+1}, v{o+2}, v{o+3}')
                Tt = 2 * seg + Tq
                base = vLw if Tt < 2 else vLw2
                e(f'ds_write_b128 v{base}, {R(p)} offset:{(Tt % 2)*24576 + j*1024}')
    if twin:
        e(f's_branch {Lp2}')
        e(Ldma + ':')
        e(f'''s_lshl_b32 s16, s14, 2
        s_add_u32 s16, s16, s12
        s_mul_i32 s16, s16, 192
        s_mul_i32 s17, s13, 24
        s_add_u32 s16, s16, s17
        s_lshl_b32 s16, s16, 10
        s_add_u32 s16, s16, {L.OT}
        s_mul_i32 s17, s12, 24576''')
        for grp in range(6):
            e(f's_add_u32 m0, s17, {grp*4096}\ns_nop 0')
            for q in range(4): e(f'buffer_load_dwordx4 v{vL16}, {srd}, s16 offen offset:{q*1024} lds')
            e('s_add_u32 s16, s16, 4096')
        for kk in range(2):
            for i in range(10):
                b = 160 + 40 * kk + 4 * i
                e(f'buffer_load_dwordx4 a[{b}:{b+3}], v{vL16}, {srd}, s{30+i} offen offset:{kk*1024}')
        e('s_waitcnt vmcnt(20)')
        e(Lp2 + ':')
    k.ts(1)
    vA = 24
    vB = 144
    NRING = 4
    vA = 24;
    vB = 184
    def areg(kk, i):
        if kk < 2: return f'a[{160+40*kk+4*i}:{160+40*kk+4*i+3}]'
        return R(vA + 40 * (kk % NRING) + 4 * i)
    def wl(kk):
        for i in range(10):
            e(f'buffer_load_dwordx4 {areg(kk, i)}, v{vLs_[0]}, {srd}, s{30+i} offen offset:{(kk%4)*1024}')
        if kk % 4 == 3:
            for i in range(10): e(f's_add_u32 s{30+i}, s{30+i}, 4096')
    def bl(kk):
        for T in range(4):
            b = vB + 16 * (kk % 2) + 4 * T
            e(f'ds_read_b128 {R(b)}, v{vL16 if T < 2 else vT0} offset:{(T % 2)*24576 + kk*1024}')
    e('s_waitcnt lgkmcnt(0)')
    wl(2); wl(3)
    e(f'v_add_u32 v{vT0}, {2*24576}, v{vL16}')
    e('s_barrier')
    bl(0)
    for kk in range(24):
        e(f's_waitcnt vmcnt({10*min(3, 23-kk)})')
        if kk + 1 < 24: bl(kk + 1); e('s_waitcnt lgkmcnt(4)')
        else: e('s_waitcnt lgkmcnt(0)')
        for i in range(10):
            a = areg(kk, i)
            for T in range(4):
                acc = f'a[{16*i+4*T}:{16*i+4*T+3}]'
                e(f'v_mfma_f32_16x16x32_bf16 {acc}, {a}, {R(vB + 16*(kk%2) + 4*T)}, ' + ('0' if kk == 0 else acc))
        if kk + 4 < 24: wl(kk + 4)
    k.ts(2)
    e(f'''s_lshl_b32 s16, s13, 7
    s_lshl_b32 s17, s14, 2
    s_add_u32 s16, s16, s17
    s_mul_i32 s16, s16, 20
    s_mul_i32 s17, s12, 5
    s_add_u32 s16, s16, s17
    s_lshl_b32 s16, s16, 10
    s_add_u32 s16, s16, {L.PARTO}
    s_nop 7''')
    n = 0
    for T in range(4):
        e(f's_add_u32 s17, s16, {T*20480}')
        for p in range(5):
            t = 24 + 12 * (n % 4); n += 1
            for q in range(8):
                src = 16 * (2 * p + q // 4) + 4 * T + q % 4
                e(f'v_accvgpr_read_b32 v{t+q}, a{src}')
            for q in range(4): e(f'v_cvt_pk_bf16_f32 v{t+8+q}, v{t+2*q}, v{t+2*q+1}')
            if p == 4: e('s_add_u32 s17, s17, 4096')
            e(f'buffer_store_dwordx4 {R(t+8)}, v{vL16}, {srd}, s17 offen offset:{(p%4)*1024} {"sc1" if fuse else stf("fin")}')
    k.ts(3)
    if fuse:
        Lw = k.label('w0'); Lp = k.label('cpoll'); Lpo = k.label('cok'); Lnr = k.label('nored')
        e(f'''s_load_dwordx2 s[40:41], s[0:1], 88
        s_waitcnt vmcnt(0) lgkmcnt(0)
        s_barrier
        s_mov_b32 s44, s40
        s_mov_b32 s45, s41
        s_mov_b32 s46, 256
        s_mov_b32 s47, 0x20000
        s_cmp_lg_u32 s12, 0
        s_cbranch_scc1 {Lw}
        v_and_b32 v2, 63, v0
        s_lshl_b32 s16, s14, 2
        v_mov_b32 v3, s16
        v_mov_b32 v4, {OOB:#x}
        v_cmp_eq_u32 vcc, 0, v2
        v_cndmask_b32 v4, v4, v3, vcc
        v_mov_b32 v5, 1
        buffer_atomic_add v5, v4, s[44:47], 0 offen
        s_cmp_ge_u32 s13, 4
        s_cbranch_scc1 {Lw}
        s_mov_b32 s17, 0x100000''')
        e(Lp + ':')
        e(f'''buffer_load_dword v5, v3, s[44:47], 0 offen sc1
        s_waitcnt vmcnt(0)
        v_readfirstlane_b32 s18, v5
        s_cmp_ge_u32 s18, 8
        s_cbranch_scc1 {Lpo}
        s_sleep 4
        s_sub_u32 s17, s17, 1
        s_cbranch_scc0 {Lp}''')
        e(Lpo + ':')
        e(Lw + ':')
        e(f'''s_cmp_ge_u32 s13, 4
        s_cbranch_scc1 {Lnr}
        s_barrier
        s_lshl_b32 s19, s14, 2
        s_add_u32 s19, s19, s13
        s_mov_b32 s16, s12
        s_mov_b32 s8, s4
        s_mov_b32 s9, s5
        s_mov_b32 s10, 0x10000000
        s_mov_b32 s11, 0x20000
        s_mov_b32 s20, {L.X1}''')
        redln.emit(k, 'sc1')
        e(Lnr + ':')
    k.ts(4)
    k.ts_flush(5, srd, v0=250)
    e(Lx + ':')
    e('s_endpgm')
    return k, LDS_SIZE
```

```python
S = 2048; D = 640; H = 32; DH = 192; M = 8; SEG = 32; NSEG = 64
_off = 0
R = {}
def _r(name, size, align=4096):
    global _off
    _off = (_off + align - 1) // align * align
    R[name] = (_off, size)
    _off += size
    return R[name][0]

FR = 1024
import os
MODE = os.environ.get('WS_LAYOUT', 'low,alias')
RING = int(os.environ.get('KV_RING', '8'))
RL = RING.bit_length() - 1
WS_SIZE = 268435456
SIZES = [
  ('EXCH', 0, 4096),
  ('PARTR', 4 << 20, 2 << 20),
  ('WQP', 32 * 12 * 20 * FR, 4096), ('WKP', 32 * 12 * 20 * FR, 4096), ('WVP', 32 * 12 * 20 * FR, 4096),
  ('WOP', 40 * 192 * FR, 4096),
  ('KT', 32 * RING * 12 * FR, 4096),
  ('VT', 32 * RING * 12 * FR, 4096),
  ('QT', 32 * RING * 12 * FR, 4096),
  ('KM', RING * 32 * 6 * 512, 4096),
  ('VM', RING * 32 * 6 * 512, 4096),
  ('OT', 128 * 192 * FR, 4096),
  ('X1', 2048 * 640 * 2, 4096),
  ('XNF', 64 * 40 * FR, 4096),
  ('WB1', 120 * 20 * FR, 4096),
  ('WB2', 40 * 20 * FR, 4096),
  ('QB', 32 * 64 * 2 * FR, 4096), ('KB', 32 * 64 * 2 * FR, 4096), ('VB', 32 * 128 * FR, 4096), ('OB2', 128 * 32 * FR, 4096),
  ('PARTO', 8 * 128 * 20 * FR, 4096),
  ('XNB', 64 * 40 * FR, 4096),
  ('STAMP', 1 << 20, 4096),
]
EXCH_PARTS = [('MEMB', 8 * 4 * 10240), ('QK', 32 * 4 * 6144), ('OB', 8 * 4 * 12288), ('PROG', 4096 * 8), ('PROG2', 4096 * 2)]
EXCH_SIZE = sum(x[1] for x in EXCH_PARTS)
ALIAS = {}
if 'alias' in MODE:
    ALIAS = {'QB': ('KT', 0), 'KB': ('KT', 4 << 20), 'VB': ('KT', 8 << 20), 'OB2': ('KT', 12 << 20), 'XNB': ('KT', 16 << 20)}
    have = 3 * 32 * RING * 12 * FR + 2 * RING * 32 * 6 * 512
    need = (16 << 20) + 64 * 40 * FR
    if have < need: SIZES.insert([x[0] for x in SIZES].index('VM') + 1, ('PAD', need - have, 4096))
order = [x for x in SIZES if x[0] not in ALIAS]
if 'rev' in MODE:
    names = ['STAMP', 'PARTO', 'QB', 'KB', 'VB', 'OB2', 'XNB', 'OT', 'KT', 'VT', 'QT', 'KM', 'VM', 'WB1', 'WB2', 'X1', 'XNF', 'WQP', 'WKP', 'WVP', 'WOP', 'EXCH', 'PARTR']
    d = {x[0]: x for x in order}
    order = [d[n] for n in names if n in d]
def place(base):
    global _off
    _off = base
    for (n, sz, al) in order:
        if n == 'EXCH':
            for (m, z) in EXCH_PARTS: _r(m, z)
            _r('FLIP', 4096)
        else: _r(n, sz, al)
    return _off
used = place(0)
if 'high' in MODE:
    base = (WS_SIZE - used - (2 << 20)) // (2 << 20) * (2 << 20)
    R.clear(); place(base)
for n, (t, o) in ALIAS.items(): R[n] = (R[t][0] + o, dict((x[0], x[1]) for x in SIZES)[n])
globals().update({n: v[0] for n, v in R.items()})
EXCH_END = MEMB + EXCH_SIZE
PART_SIZE = 32 * 49152
PROBE_OFF = PART_SIZE
WS_USED = _off
assert WS_USED <= WS_SIZE
def pi(g, jj):
    return 4 * g + jj if jj < 4 else 16 + 4 * g + (jj - 4)
if __name__ == '__main__':
    for k, v in R.items(): print(k, hex(v[0]), v[1])
    print('used', WS_USED)
```

```python
import struct
from asmgen import *
import layout as L
OOB = 0x80000000
def fbits(x): return struct.unpack('<I', struct.pack('<f', x))[0]

def gen(name, from_input):
    k = Kernel(name, vgpr=80, agpr=0, sgpr=40)
    Lx = k.label('exit')
    k.e(f's_cmp_ge_u32 s2, 128\ns_cbranch_scc1 {Lx}')
    emit_ln(k, from_input)
    k.e(Lx + ':')
    k.e('s_endpgm')
    return k, 512

def emit_ln(k, from_input, copy_x1=False):
    e = k.e
    vX = 8
    vF = 28
    vA, vT0, vT1, vS, vLd = 1, 2, 3, 4, 5
    e(f'''s_load_dwordx2 s[12:13], s[0:1], 96
    s_load_dwordx2 s[14:15], s[0:1], 0
    v_lshrrev_b32 v{vT0}, 6, v0
    v_and_b32 v{vT1}, 63, v0
    s_nop 0
    v_readfirstlane_b32 s16, v{vT0}
    s_waitcnt lgkmcnt(0)
    s_mov_b32 s4, s12
    s_mov_b32 s5, s13
    s_mov_b32 s6, 0x10000000
    s_mov_b32 s7, 0x20000''')
    if from_input:
        e(f's_mov_b32 s8, s14\ns_mov_b32 s9, s15\ns_mov_b32 s10, {2048*1280}\ns_mov_b32 s11, 0x20000\ns_mov_b32 s20, 0')
    else:
        e(f's_mov_b32 s8, s12\ns_mov_b32 s9, s13\ns_mov_b32 s10, 0x10000000\ns_mov_b32 s11, 0x20000\ns_mov_b32 s20, {L.X1}')
    e(f'''v_and_b32 v{vT0}, 15, v{vT1}
    v_lshrrev_b32 v{vS}, 4, v{vT1}
    s_lshl_b32 s17, s2, 4
    v_add_u32 v{vA}, s17, v{vT0}
    v_mul_u32_u24 v{vA}, 1280, v{vA}
    v_lshl_add_u32 v{vA}, v{vS}, 4, v{vA}
    s_mul_i32 s17, s16, 320
    s_add_u32 s20, s20, s17''')
    for q in range(5):
        e(f'buffer_load_dwordx4 v[{vX+4*q}:{vX+4*q+3}], v{vA}, s[8:11], s20 offen offset:{q*64}')
    per = L.EXCH_SIZE // 128; per2 = L.PART_SIZE // 128
    assert per % 16 == 0 and per2 % 4096 == 0
    e(f'''s_sub_u32 s21, 0, s12
    s_and_b32 s21, s21, 0x1fffff
    s_add_u32 s21, s21, {L.PARTR}
    v_mov_b32 v68, -1
    v_mov_b32 v69, -1
    v_mov_b32 v70, -1
    v_mov_b32 v71, -1
    v_lshlrev_b32 v72, 4, v0
    s_mul_i32 s22, s2, {per}
    s_add_u32 s22, s22, {L.MEMB}
    s_mul_i32 s23, s2, {per2}
    s_add_u32 s23, s23, s21''')
    for q in range(per // 4096):
        e(f'buffer_store_dwordx4 v[68:71], v72, s[4:7], s22 offen {stf("pois")}\ns_add_u32 s22, s22, 4096')
    rem = per % 4096
    if rem:
        e(f'''v_mov_b32 v73, {OOB:#x}
        v_cmp_gt_u32 vcc, {rem // 16}, v0
        v_cndmask_b32 v73, v73, v72, vcc
        buffer_store_dwordx4 v[68:71], v73, s[4:7], s22 offen''')
    for q in range(per2 // 4096):
        e(f'buffer_store_dwordx4 v[68:71], v72, s[4:7], s23 offen {stf("pois")}\ns_add_u32 s23, s23, 4096')
    e(f'''s_mul_i32 s23, s2, 2048
    s_add_u32 s23, s23, s21
    s_add_u32 s23, s23, {L.PROBE_OFF}
    v_mov_b32 v73, {OOB:#x}
    v_cmp_gt_u32 vcc, 128, v0
    v_cndmask_b32 v73, v73, v72, vcc
    buffer_store_dwordx4 v[68:71], v73, s[4:7], s23 offen sc1''')
    npois = per // 4096 + (1 if rem else 0) + per2 // 4096 + 1
    if from_input and copy_x1:
        e(f's_waitcnt vmcnt({npois})\ns_mul_i32 s17, s16, 320\ns_add_u32 s17, s17, {L.X1}')
        for q in range(5):
            e(f'buffer_store_dwordx4 v[{vX+4*q}:{vX+4*q+3}], v{vA}, s[4:7], s17 offen offset:{q*64}')
        npois = 5
    e(f'''v_lshlrev_b32 v{vLd}, 2, v{vT0}
    s_lshl_b32 s17, s16, 6
    v_add_u32 v{vA}, s17, v{vLd}
    s_waitcnt vmcnt({npois})''')
    for i in range(20):
        e(f'v_lshlrev_b32 v{vF+2*i}, 16, v{vX+i}')
        e(f'v_and_b32 v{vF+2*i+1}, 0xffff0000, v{vX+i}')
    def reduce_row(off):
        e(f'''v_mov_b32 v{vT0}, v{vS}
        v_permlane32_swap_b32 v{vS}, v{vT0}
        v_add_f32 v{vS}, v{vS}, v{vT0}
        v_mov_b32 v{vT0}, v{vS}
        v_permlane16_swap_b32 v{vS}, v{vT0}
        v_add_f32 v{vS}, v{vS}, v{vT0}
        ds_write_b32 v{vA}, v{vS} offset:{off}
        s_waitcnt lgkmcnt(0)
        s_barrier
        ds_read_b32 v{vS}, v{vLd} offset:{off}
        ds_read_b32 v{vT0}, v{vLd} offset:{off+64}
        ds_read_b32 v{vT1}, v{vLd} offset:{off+128}
        ds_read_b32 v6, v{vLd} offset:{off+192}
        s_waitcnt lgkmcnt(0)
        v_add_f32 v{vS}, v{vS}, v{vT0}
        v_add_f32 v{vT1}, v{vT1}, v6
        v_add_f32 v{vS}, v{vS}, v{vT1}''')
    e(f'v_pk_add_f32 v[6:7], v[{vF}:{vF+1}], v[{vF+2}:{vF+3}]')
    for i in range(2, 20):
        e(f'v_pk_add_f32 v[6:7], v[6:7], v[{vF+2*i}:{vF+2*i+1}]')
    e(f'v_add_f32 v{vS}, v6, v7')
    reduce_row(0)
    e(f'v_mul_f32 v{vS}, {fbits(1/640):#x}, v{vS}')
    for i in range(40):
        e(f'v_sub_f32 v{vF+i}, v{vF+i}, v{vS}')
    e(f'v_mul_f32 v6, v{vF}, v{vF}')
    e(f'v_mul_f32 v7, v{vF+1}, v{vF+1}')
    for i in range(1, 20):
        e(f'v_fmac_f32 v6, v{vF+2*i}, v{vF+2*i}')
        e(f'v_fmac_f32 v7, v{vF+2*i+1}, v{vF+2*i+1}')
    e(f'v_add_f32 v{vS}, v6, v7')
    reduce_row(256)
    e(f'''v_mov_b32 v{vT0}, {fbits(1e-5):#x}
    v_fmac_f32 v{vT0}, {fbits(1/640):#x}, v{vS}
    v_rsq_f32 v{vS}, v{vT0}''')
    for i in range(40):
        e(f'v_mul_f32 v{vF+i}, v{vF+i}, v{vS}')
    for i in range(20):
        e(f'v_cvt_pk_bf16_f32 v{vX+i}, v{vF+2*i}, v{vF+2*i+1}')
    e(f'''v_and_b32 v{vT1}, 63, v0
    v_lshlrev_b32 v{vA}, 4, v{vT1}
    s_mul_i32 s17, s2, 20480
    s_mul_i32 s18, s16, 5120
    s_add_u32 s17, s17, s18
    s_add_u32 s17, s17, {L.XNF}''')
    for q in range(5):
        if q == 4: e('s_add_u32 s17, s17, 4096')
        e(f'buffer_store_dwordx4 v[{vX+4*q}:{vX+4*q+3}], v{vA}, s[4:7], s17 offen offset:{(q%4)*1024} {stf("ln")}')

def emit_probe(k):
    e = k.e
    Lnv = k.label('novote'); Lnl = k.label('notlast')
    e(f'''s_load_dwordx2 s[12:13], s[0:1], 96
    s_load_dwordx2 s[24:25], s[0:1], 88
    v_lshrrev_b32 v13, 6, v0
    s_nop 0
    v_readfirstlane_b32 s16, v13
    s_cmp_lg_u32 s16, 0
    s_cbranch_scc1 {Lnv}
    s_waitcnt lgkmcnt(0)
    s_mov_b32 s4, s12
    s_mov_b32 s5, s13
    s_mov_b32 s6, 0x10000000
    s_mov_b32 s7, 0x20000
    s_sub_u32 s21, 0, s12
    s_and_b32 s21, s21, 0x1fffff
    s_add_u32 s21, s21, {L.PARTR}
    v_mov_b32 v8, -1
    s_getreg_b32 s26, hwreg(HW_REG_XCC_ID, 0, 3)
    s_lshr_b32 s22, s3, 4
    s_lshl_b32 s22, s22, 14
    s_and_b32 s23, s3, 15
    s_lshl_b32 s23, s23, 9
    s_add_u32 s22, s22, s23
    s_add_u32 s22, s22, {L.PROBE_OFF}
    s_add_u32 s22, s22, s21
    v_and_b32 v13, 63, v0
    v_and_b32 v14, 3, v13
    v_lshlrev_b32 v14, 7, v14
    v_lshrrev_b32 v15, 2, v13
    v_lshl_add_u32 v14, v15, 13, v14
    v_mov_b32 v16, {OOB:#x}
    v_cmp_gt_u32 vcc, 8, v13
    v_cndmask_b32 v14, v16, v14, vcc
    buffer_store_dword v8, v14, s[4:7], s22 offen sc1
    v_cmp_eq_u32 vcc, 0, v13
    v_mov_b32 v14, 0
    v_cndmask_b32 v14, v16, v14, vcc
    s_mov_b32 s27, -1
    s_mov_b32 s28, -1
    s_waitcnt vmcnt(0) lgkmcnt(0)''')
    for q in range(4):
        for par in range(2):
            e(f'''s_add_u32 s23, s22, {par*8192 + q*128}
            s_memtime s[18:19]
            s_waitcnt lgkmcnt(0)
            buffer_load_dword v15, v14, s[4:7], s23 offen sc1
            s_waitcnt vmcnt(0)
            s_memtime s[30:31]
            s_waitcnt lgkmcnt(0)
            s_sub_u32 s29, s30, s18
            s_min_u32 s{27+par}, s{27+par}, s29''')
    e(f'''s_cmp_lt_u32 s28, s27
    s_cselect_b32 s27, 1, 0
    s_lshr_b32 s26, s26, 2
    s_xor_b32 s27, s27, s26
    s_lshl_b32 s27, s27, 16
    s_add_u32 s27, s27, 1
    s_mov_b32 s8, s24
    s_mov_b32 s9, s25
    s_mov_b32 s10, 256
    s_mov_b32 s11, 0x20000
    v_mov_b32 v15, s27
    buffer_atomic_add v15, v14, s[8:11], 0 offen sc0
    s_waitcnt vmcnt(0)
    v_readfirstlane_b32 s28, v15
    s_add_u32 s28, s28, s27
    s_and_b32 s29, s28, 0xffff
    s_cmp_lg_u32 s29, 128
    s_cbranch_scc1 {Lnv}
    s_lshr_b32 s28, s28, 16
    s_cmp_gt_u32 s28, 64
    s_cselect_b32 s28, 1, 0
    v_mov_b32 v15, s28
    s_mov_b32 s23, {L.FLIP}
    buffer_store_dword v15, v14, s[4:7], s23 offen''')
    e(Lnv + ':')
```

```python
from asmgen import *
import layout as L

OOB = 0x80000000
LDS_X = 0
XBUF = 40960
LDS_SIZE = 2 * XBUF

PLAN = [
    [('pair', 'k', 0), ('pair', 'k', 1), ('v', 0)],
    [('pair', 'k', 2), ('v', 1), ('v', 2), ('v', 3)],
    [('pair', 'q', 0), ('v', 4), ('v', 5)],
    [('pair', 'q', 1), ('pair', 'q', 2)],
]

def emit(k, sWS, sX, sC, sW, sTO, Lexit, nseg, LEAD, census_wait, sMODE, preread=1, pace=0, spread=0, prof=False, predist=1, tlbw=0, pre_ot=True):
    e = k.e
    sH, sHalf, sS, sT0, sT1, sT2, sT3 = 15, 16, 17, 34, 35, 36, 37
    sXs, sOutK, sOutQ, sOutV, sFlag, sProg, sBuf = 20, 21, 22, 23, 24, 25, 26
    sNK, sNV, sNQ = 27, 28, 30
    vH32 = 5
    vL16, vZ, vRd = 1, 4, 7
    vT0, vT1 = 28, 29
    vAcc = 32
    vXf = 72
    vPk = 8
    vScr = 16
    vW = 96
    srd = f's[{sWS}:{sWS+3}]'
    def tick(acc):
        if not prof: return
        e(f'''s_memtime s[40:41]
        s_waitcnt lgkmcnt(0)
        s_sub_u32 s43, s40, s42
        s_add_u32 s{acc}, s{acc}, s43
        s_mov_b32 s42, s40''')
    def wreg(slot, ks):
        if slot < 3: return f'a[{slot*80+4*ks}:{slot*80+4*ks+3}]'
        b = vW + (slot - 3) * 80 + 4 * ks
        return f'v[{b}:{b+3}]'
    e(f'''s_sub_u32 s{sT0}, s{sC}, 24
    s_lshr_b32 s{sT1}, s{sT0}, 1
    s_and_b32 s{sHalf}, s{sT0}, 1
    s_lshl_b32 s{sH}, s{sX}, 2
    s_add_u32 s{sH}, s{sH}, s{sT1}
    s_lshl_b32 s{sFlag}, s{sX}, 3
    s_add_u32 s{sFlag}, s{sFlag}, s{sT0}
    s_lshl_b32 s{sFlag}, s{sFlag}, 7
    s_add_u32 s{sFlag}, s{sFlag}, {L.PROG2}
    s_lshl_b32 s{sProg}, s{sX}, 7
    s_add_u32 s{sProg}, s{sProg}, {L.PROG}
    v_and_b32 v{vT0}, 63, v0
    v_lshlrev_b32 v{vL16}, 4, v{vT0}
    v_mov_b32 v{vT1}, {OOB:#x}
    v_cmp_eq_u32 vcc, 0, v{vT0}
    v_mov_b32 v{vZ}, 0
    v_cndmask_b32 v{vZ}, v{vT1}, v{vZ}, vcc
    v_cmp_gt_u32 vcc, 32, v{vT0}
    v_cndmask_b32 v{vH32}, v{vT1}, v{vL16}, vcc''')
    if tlbw:
        e(f'''v_and_b32 v{vT0}, 63, v0
        v_and_b32 v8, 15, v{vT0}
        v_lshrrev_b32 v9, 4, v{vT0}
        v_mul_u32_u24 v10, 49152, v8
        s_mov_b32 s{sT1}, {L.VT - L.KT}
        v_mul_lo_u32 v11, v9, s{sT1}
        v_add_u32 v10, v10, v11
        s_mul_i32 s{sT0}, s{sH}, {L.RING*12288}
        v_add_u32 v10, s{sT0}, v10
        v_add_u32 v10, {L.KT}, v10
        v_mul_u32_u24 v11, 163840, v8
        v_add_u32 v11, {L.XNF}, v11
        v_cmp_eq_u32 vcc, 3, v9
        v_cndmask_b32 v10, v10, v11, vcc
        buffer_load_dword v20, v10, {srd}, 0 offen''')
        assert L.QT - L.VT == L.VT - L.KT
    Lw = [k.label('pw%d_' % w) for w in range(4)]
    for w in range(3):
        e(f's_cmp_eq_u32 s{sW}, {w}\ns_cbranch_scc1 {Lw[w]}')
    e(f's_branch {Lw[3]}')

    def dma(w, sSeg, bufreg):
        e(f'''s_mul_i32 s{sXs}, s{sSeg}, {XBUF}
        s_add_u32 s{sXs}, s{sXs}, {L.XNF + w*10240}''')
        for grp in range(3):
            e(f's_add_u32 m0, s{bufreg}, {LDS_X + w*10240 + grp*4096}')
            e('s_nop 0')
            for q in range(4 if grp < 2 else 2):
                e(f'buffer_load_dwordx4 v{vL16}, {srd}, s{sXs} offen offset:{q*1024} lds')
            if grp < 2: e(f's_add_u32 s{sXs}, s{sXs}, 4096')
    def out_offsets(sSeg, dK, dQ, dV):
        e(f'''s_lshl_b32 s{sT0}, s{sH}, {L.RL}
        s_and_b32 s{sT1}, s{sSeg}, {L.RING-1}
        s_add_u32 s{sT0}, s{sT0}, s{sT1}
        s_mul_i32 s{sT0}, s{sT0}, 12288
        s_mul_i32 s{sT1}, s{sHalf}, 3072
        s_add_u32 s{sT1}, s{sT1}, s{sT0}
        s_add_u32 s{dK}, s{sT1}, {L.KT}''')
        if dQ is not None: e(f's_add_u32 s{dQ}, s{sT1}, {L.QT}')
        e(f'''s_mul_i32 s{sT1}, s{sHalf}, 6144
        s_add_u32 s{sT1}, s{sT1}, s{sT0}
        s_add_u32 s{dV}, s{sT1}, {L.VT}''')
    def preread_blocks(plan, dK, dV, w=None, sSeg=None):
        for u in plan:
            if u[0] == 'pair' and (u[1] == 'k' or preread >= 2):
                base = dK if u[1] == 'k' else sNQ
                for T in range(2):
                    e(f's_add_u32 s{sT0}, s{base}, {T*6144 + u[2]*1024}')
                    e(f'buffer_load_dwordx4 v[{vScr}:{vScr+3}], v{vL16}, {srd}, s{sT0} offen sc1')
            elif u[0] == 'v':
                e(f's_add_u32 s{sT0}, s{dV}, {u[1]*1024}')
                e(f'buffer_load_dwordx4 v[{vScr}:{vScr+3}], v{vL16}, {srd}, s{sT0} offen sc1')
        if preread >= 3:
            if w == 0:
                e(f'''s_and_b32 s{sT0}, s{sSeg}, {L.RING-1}
                s_lshl_b32 s{sT0}, s{sT0}, 5
                s_add_u32 s{sT0}, s{sT0}, s{sH}
                s_mul_i32 s{sT0}, s{sT0}, 3072
                s_mul_i32 s{sT1}, s{sHalf}, 1536
                s_add_u32 s{sT0}, s{sT0}, s{sT1}
                s_add_u32 s{sT1}, s{sT0}, {L.KM}
                buffer_load_dwordx4 v[{vScr}:{vScr+3}], v{vL16}, {srd}, s{sT1} offen sc1
                buffer_load_dwordx4 v[{vScr}:{vScr+3}], v{vH32}, {srd}, s{sT1} offen offset:1024 sc1
                s_add_u32 s{sT1}, s{sT0}, {L.VM}
                buffer_load_dwordx4 v[{vScr}:{vScr+3}], v{vL16}, {srd}, s{sT1} offen sc1
                buffer_load_dwordx4 v[{vScr}:{vScr+3}], v{vH32}, {srd}, s{sT1} offen offset:1024 sc1''')
            elif pre_ot:
                e(f'''s_lshl_b32 s{sT0}, s{sSeg}, 1
                s_add_u32 s{sT0}, s{sT0}, s{sHalf}
                s_mul_i32 s{sT0}, s{sT0}, {192*1024}
                s_mul_i32 s{sT1}, s{sH}, 6144
                s_add_u32 s{sT0}, s{sT0}, s{sT1}
                s_add_u32 s{sT0}, s{sT0}, {L.OT + 2*(w-1)*1024}
                buffer_load_dwordx4 v[{vScr}:{vScr+3}], v{vL16}, {srd}, s{sT0} offen sc1
                buffer_load_dwordx4 v[{vScr}:{vScr+3}], v{vL16}, {srd}, s{sT0} offen offset:1024 sc1''')

    for w in range(4):
        plan = PLAN[w]
        slots = []
        for u in plan:
            if u[0] == 'pair': slots += [(u[1], 2 * u[2]), (u[1], 2 * u[2] + 1)]
            else: slots.append(('v', u[1]))
        nst = sum(2 if u[0] == 'pair' else 1 for u in plan)
        e(Lw[w] + ':')
        e(f's_mov_b32 s{sS}, 0\ns_mov_b32 s{sBuf}, 0')
        dma(w, sS, sBuf)
        if preread:
            out_offsets(sS, sNK, sNQ, sNV); preread_blocks(plan, sNK, sNV, w, sS)
        nld = 0
        for si, (mat, etl) in enumerate(slots):
            base = {'q': L.WQP, 'k': L.WKP, 'v': L.WVP}[mat]
            e(f'''s_mul_i32 s{sT0}, s{sH}, 12
            s_mul_i32 s{sT1}, s{sHalf}, 6
            s_add_u32 s{sT0}, s{sT0}, s{sT1}
            s_add_u32 s{sT0}, s{sT0}, {etl}
            s_mul_i32 s{sT0}, s{sT0}, 20480
            s_add_u32 s{sT0}, s{sT0}, {base}''')
            for ks in range(20):
                if ks and ks % 4 == 0: e(f's_add_u32 s{sT0}, s{sT0}, 4096')
                e(f'buffer_load_dwordx4 {wreg(si, ks)}, v{vL16}, {srd}, s{sT0} offen offset:{(ks%4)*1024}')
                nld += 1
                if nld % 20 == 0 and nld >= 40: e('s_waitcnt vmcnt(20)')
        census_wait()
        Lsl = k.label('pslow')
        e(f's_cmp_lg_u32 s{sMODE}, 0\ns_cbranch_scc1 {Lsl}')
        for SF in ('', 'sc1'):
            if SF: e(Lsl + ':')
            Ltop = k.label('ptop'); Lgo = k.label('pgo'); Lpl = k.label('ppoll'); Lnd = k.label('pnodma'); Lnf = k.label('pnofl')
            if prof:
                e('s_memtime s[40:41]\ns_waitcnt lgkmcnt(0)\ns_mov_b32 s42, s40\ns_mov_b32 s92, 0\ns_mov_b32 s94, 0\ns_mov_b32 s96, 0\ns_mov_b32 s44, 0')
            e(Ltop + ':')
            e(f'''s_cmp_lt_u32 s{sS}, {LEAD}
            s_cbranch_scc1 {Lgo}
            s_sub_u32 s{sT2}, s{sS}, {LEAD}''')
            e(Lpl + ':')
            e(f'''buffer_load_dword v{vT0}, v{vZ}, {srd}, s{sProg} offen sc1
            s_waitcnt vmcnt(0)
            v_readfirstlane_b32 s{sT0}, v{vT0}
            s_cmp_ge_i32 s{sT0}, s{sT2}
            s_cbranch_scc1 {Lgo}
            s_sleep 8
            s_sub_u32 s{sTO}, s{sTO}, 1
            s_cbranch_scc0 {Lpl}
            s_mov_b32 s{sTO}, 0''')
            e(Lgo + ':')
            tick(92)
            e(f'''s_waitcnt vmcnt(0)
            s_barrier''')
            tick(94)
            e(f'''
            v_add_u32 v{vRd}, s{sBuf}, v{vL16}
            s_xor_b32 s{sBuf}, s{sBuf}, {XBUF}
            s_add_u32 s{sT3}, s{sS}, 1
            s_cmp_ge_u32 s{sT3}, {nseg}
            s_cbranch_scc1 {Lnd}''')
            if not spread:
                dma(w, sT3, sBuf)
                if preread:
                    out_offsets(sT3, sNK, sNQ, sNV); preread_blocks(plan, sNK, sNV, w, sT3)
            e(Lnd + ':')
            if spread:
                e(f'''s_min_u32 s{sT3}, s{sT3}, {nseg-1}
                s_mul_i32 s{sXs}, s{sT3}, {XBUF}
                s_add_u32 s{sXs}, s{sXs}, {L.XNF + w*10240}
                s_add_u32 s29, s{sBuf}, {LDS_X + w*10240}''')
                if preread: out_offsets(sT3, sNK, None, sNV)
                pre = []
                if preread:
                    for u in plan:
                        if u[0] == 'pair' and u[1] == 'k':
                            for T in range(2): pre.append((sNK, T*6144 + u[2]*1024))
                        elif u[0] == 'v': pre.append((sNV, u[1]*1024))
            out_offsets(sS, sOutK, sOutQ, sOutV)
            def xr(ks, T):
                b = vXf + (ks % 3) * 8 + T * 4
                return f'v[{b}:{b+3}]'
            def rd(ks):
                for T in range(2):
                    e(f'ds_read_b128 {xr(ks, T)}, v{vRd} offset:{LDS_X + (T*20+ks)*1024}')
            rd(0); rd(1)
            for ks in range(20):
                if spread:
                    if ks % 2 == 0:
                        q = ks // 2
                        e(f's_add_u32 m0, s29, {q*1024}')
                        e(f's_add_u32 s{sT0}, s{sXs}, {q*1024}')
                        e(f'buffer_load_dwordx4 v{vL16}, {srd}, s{sT0} offen lds')
                    elif pre:
                        so, off = pre.pop(0)
                        e(f's_add_u32 s{sT0}, s{so}, {off}')
                        e(f'buffer_load_dwordx4 v[{vScr}:{vScr+3}], v{vL16}, {srd}, s{sT0} offen sc1')
                if ks + 2 < 20:
                    rd(ks + 2); e('s_waitcnt lgkmcnt(4)')
                elif ks + 1 < 20: e('s_waitcnt lgkmcnt(2)')
                else: e('s_waitcnt lgkmcnt(0)')
                for si, (mat, etl) in enumerate(slots):
                    for T in range(2):
                        acc = f'v[{vAcc+8*si+4*T}:{vAcc+8*si+4*T+3}]'
                        c = '0' if ks == 0 else acc
                        if mat == 'v': e(f'v_mfma_f32_16x16x32_bf16 {acc}, {xr(ks, T)}, {wreg(si, ks)}, {c}')
                        else: e(f'v_mfma_f32_16x16x32_bf16 {acc}, {wreg(si, ks)}, {xr(ks, T)}, {c}')
                    if pace >= 100: e(f's_nop {pace-100}')
                if 0 < pace < 100: e(f's_sleep {pace}')
            si = 0; pk = 0
            for u in plan:
                if u[0] == 'pair':
                    so = sOutK if u[1] == 'k' else sOutQ
                    for T in range(2):
                        a0 = vAcc + 8 * si + 4 * T; a1 = a0 + 8
                        p = vPk + 4 * (pk % 2); pk += 1
                        e(f'''v_cvt_pk_bf16_f32 v{p}, v{a0}, v{a0+1}
                        v_cvt_pk_bf16_f32 v{p+1}, v{a0+2}, v{a0+3}
                        v_cvt_pk_bf16_f32 v{p+2}, v{a1}, v{a1+1}
                        v_cvt_pk_bf16_f32 v{p+3}, v{a1+2}, v{a1+3}
                        s_add_u32 s{sT0}, s{so}, {T * 6144 + u[2] * 1024}
                        buffer_store_dwordx4 v[{p}:{p+3}], v{vL16}, {srd}, s{sT0} offen {SF}''')
                    si += 2
                else:
                    a0 = vAcc + 8 * si; a1 = a0 + 4
                    p = vPk + 4 * (pk % 2); pk += 1
                    e(f'''v_cvt_pk_bf16_f32 v{p}, v{a0}, v{a0+1}
                    v_cvt_pk_bf16_f32 v{p+1}, v{a0+2}, v{a0+3}
                    v_cvt_pk_bf16_f32 v{p+2}, v{a1}, v{a1+1}
                    v_cvt_pk_bf16_f32 v{p+3}, v{a1+2}, v{a1+3}
                    s_add_u32 s{sT0}, s{sOutV}, {u[1]*1024}
                    buffer_store_dwordx4 v[{p}:{p+3}], v{vL16}, {srd}, s{sT0} offen {SF}''')
                    si += 1
            tick(44)
            e(f'''s_waitcnt vmcnt(0)
            s_barrier''')
            tick(96)
            e(f'''s_add_u32 s{sS}, s{sS}, 1''')
            if w == 0:
                e(f'''v_mov_b32 v{vT0}, s{sS}
                buffer_store_dword v{vT0}, v{vZ}, {srd}, s{sFlag} offen {SF}''')
            e(f'''s_cmp_lt_u32 s{sS}, {nseg}
            s_cbranch_scc1 {Ltop}''')
            if prof: e('s_mov_b32 s98, s44\ns_mov_b32 s99, 0x12345')
            e(f's_branch {Lexit}')
    return LDS_SIZE
```

```python
import struct, math
from asmgen import *
import layout as L
OOB = 0x80000000
def fbits(x): return struct.unpack('<I', struct.pack('<f', x))[0]
LDS_X = 0
LDS_ST = 81920
LDS_SIZE = LDS_ST

def gen(name='qkvb_kernel', prof=None):
    k = Kernel(name, vgpr=256, agpr=192, sgpr=102); e = k.e; k.prof = prof
    srd = 's[4:7]'
    vA, vT0, vT1, vS, vLd, vL16, vRd = 1, 2, 3, 4, 5, 8, 9
    vRaw = 16
    vF = 96
    Lx = k.label('exit')
    e(f'''s_cmp_ge_u32 s2, 256
    s_cbranch_scc1 {Lx}
    s_load_dwordx2 s[12:13], s[0:1], 96''')
    k.ts(0)
    e(f'''v_lshrrev_b32 v{vT0}, 6, v0
    v_and_b32 v{vT1}, 63, v0
    s_nop 0
    v_readfirstlane_b32 s16, v{vT0}
    v_lshlrev_b32 v{vL16}, 4, v{vT1}
    s_and_b32 s17, s2, 7
    s_lshr_b32 s18, s2, 3
    s_waitcnt lgkmcnt(0)
    s_mov_b32 s4, s12
    s_mov_b32 s5, s13
    s_mov_b32 s6, 0x10000000
    s_mov_b32 s7, 0x20000''')
    e(f'''s_and_b32 s19, s16, 1
    s_lshr_b32 s20, s16, 1
    s_mul_i32 s22, s19, 40960
    s_mul_i32 s21, s20, 5120
    s_add_u32 s22, s22, s21
    s_mul_i32 s21, s18, 81920
    s_add_u32 s21, s21, s22
    s_add_u32 s21, s21, {L.XNB}
    s_lshl_b32 s23, s17, 2
    s_add_u32 s23, s23, s16
    s_mul_i32 s24, s23, 40960
    s_add_u32 s24, s24, {L.WB1}
    s_add_u32 s25, s24, {32*40960}
    s_add_u32 s26, s25, {32*40960}''')
    def xdma(c):
        e(f's_add_u32 m0, s22, {c*10240}\ns_add_u32 s27, s21, {c*10240}')
        for q in range(4): e(f'buffer_load_dwordx4 v{vL16}, {srd}, s27 offen offset:{q*1024} lds')
        e(f's_add_u32 m0, s22, {c*10240 + 4096}\ns_add_u32 s27, s21, {c*10240 + 4096}')
        e(f'buffer_load_dwordx4 v{vL16}, {srd}, s27 offen lds')
    NR = 16
    def wl(kk):
        for m in range(3):
            b = 12 * (kk % NR) + 4 * m
            e(f'buffer_load_dwordx4 a[{b}:{b+3}], v{vL16}, {srd}, s{24+m} offen offset:{(kk%4)*1024}')
        if kk % 4 == 3:
            for m in range(3): e(f's_add_u32 s{24+m}, s{24+m}, 4096')
    xdma(0)
    for kk in range(4): wl(kk)
    xdma(1)
    for kk in range(4, 8): wl(kk)
    xdma(2); xdma(3)
    k.ts(1)
    vAcc = 96
    vXf = 16
    def xl(kk):
        for T in range(2):
            b = vXf + 8 * (kk % 3) + 4 * T
            e(f'ds_read_b128 v[{b}:{b+3}], v{vL16 if T == 0 else vRd} offset:{kk*1024}')
    e(f'v_add_u32 v{vRd}, 40960, v{vL16}')
    log = ['X0'] * 5 + sum([['W%d' % q] * 3 for q in range(4)], []) + ['X1'] * 5 + sum([['W%d' % q] * 3 for q in range(4, 8)], []) + ['X2'] * 5 + ['X3'] * 5
    def wait_for(tags):
        last = max(i for i, t in enumerate(log) if t in tags)
        e(f's_waitcnt vmcnt({min(63, len(log) - 1 - last)})')
    wait_for(['X0']); e('s_barrier')
    k.ts(2)
    xl(0); xl(1)
    nextw = 8
    for kk in range(40):
        while nextw < 40 and nextw <= kk + 12:
            wl(nextw); log += ['W%d' % nextw] * 3; nextw += 1
        if kk + 2 < 40 and (kk + 2) % 10 == 0:
            wait_for(['X%d' % ((kk + 2) // 10)]); e('s_barrier')
        wait_for(['W%d' % kk])
        if kk + 2 < 40: xl(kk + 2); e('s_waitcnt lgkmcnt(4)')
        else: e(f's_waitcnt lgkmcnt({2*(39-kk)})')
        for m in range(3):
            w = f'a[{12*(kk%NR)+4*m}:{12*(kk%NR)+4*m+3}]'
            for T in range(2):
                x = f'v[{vXf+8*(kk%3)+4*T}:{vXf+8*(kk%3)+4*T+3}]'
                acc = f'v[{vAcc+32*m+16*T}:{vAcc+32*m+16*T+15}]'
                c = '0' if kk == 0 else acc
                if m < 2: e(f'v_mfma_f32_32x32x16_bf16 {acc}, {w}, {x}, {c}')
                else: e(f'v_mfma_f32_32x32x16_bf16 {acc}, {x}, {w}, {c}')
    k.ts(3)
    cq = (20 ** -0.5) * math.log2(math.e)
    e(f'''s_lshl_b32 s21, s18, 1
    s_lshl_b32 s22, s23, 6
    s_add_u32 s21, s21, s22
    s_lshl_b32 s21, s21, 11
    s_add_u32 s27, s21, {L.QB}
    s_add_u32 s28, s21, {L.KB}
    s_add_u32 s29, s21, {L.VB}
    s_mov_b32 s30, {fbits(cq):#x}
    v_and_b32 v{vT0}, 31, v0
    v_cmp_eq_u32 s[32:33], 20, v{vT0}
    v_mov_b32 v{vT1}, 0x3f803f80''')
    for m in range(3):
        for T in range(2):
            a = vAcc + 32 * m + 16 * T
            if m == 0:
                for i in range(16): e(f'v_mul_f32 v{a+i}, s30, v{a+i}')
            p = vXf + 8 * (T % 2)
            for i in range(8): e(f'v_cvt_pk_bf16_f32 v{p+i}, v{a+2*i}, v{a+2*i+1}')
            if m == 2:
                for i in range(8): e(f'v_cndmask_b32 v{p+i}, v{p+i}, v{vT1}, s[32:33]')
            for hf in range(2):
                e(f'buffer_store_dwordx4 v[{p+4*hf}:{p+4*hf+3}], v{vL16}, {srd}, s{27+m} offen offset:{T*2048+hf*1024} {stf("qkvb")}')
    k.ts(4)
    e('s_waitcnt vmcnt(0)')
    k.ts(5)
    k.ts_flush(6, srd, v0=10)
    e(Lx + ':')
    e('s_endpgm')
    return k, LDS_SIZE
```

```python
import math, struct
from asmgen import *
import layout as L
import proj

OOB = 0x80000000
STAMPI = 's_memtime'
TWIN_DEFAULT = 1
DIRECT_DEFAULT = 0
sWS, sAUX = 4, 8
sW, sX, sC, sH, sJ, sS, sTO, sKH = 12, 13, 14, 15, 16, 17, 18, 19
sA, sB, sO_, sE, sPp = 20, 21, 22, 24, 25
sA2, sB2, sO2, sP2 = 26, 27, 28, 29
sKM, sVM, sKT, sVT = 30, 31, 32, 33
sT0, sT1, sT2, sT3 = 34, 35, 36, 37
sMEMBx, sQKh, sOBx = 38, 39, 40
sCexp, sXCC, sMODE = 41, 42, 43
sSTB = 46
sPTR = 48
sMASK = 54
sPARTB, sFLIP, sPAR = 56, 57, 58
sPRB, sPM0, sPM1 = 44, 45, 47
LDS_MEM, LDS_VP, LDS_KV, KVSZ = 0, 10240, 16384, 14336
LDS_SIZE = LDS_KV

def gen(name='reca_kernel', stamps=False, nsteps=64, D1=1, D2=3, D3=8, D4=2, PLEAD=3, TL=None, FORCE_SLOW=0, PROJ=1, PREREAD=0, PARX=0, DUAL=1, PACE=0, DS1=None, DS3=None, DS4=None, SPREAD=0, NEARF=None, PPROF=0, NPR=3, TLBW=0, DENSE=1, TWIN=None, D4T=4, PRE2=0, OTSC=1, DIRECT=None):
    k = Kernel(name, vgpr=256, agpr=256)
    if TWIN is None: TWIN = TWIN_DEFAULT
    if DIRECT is None: DIRECT = DIRECT_DEFAULT
    e = k.e
    WS = f's[{sWS}:{sWS+3}]'
    vL16, vL16b, vL16c = 1, 2, 3
    vMld, vMld2, vMrdA, vMrdB = 4, 5, 6, 7
    vXst, vKMst, vVMst, vOst = 8, 9, 10, 11
    vOld, vOldb, vOldc = 12, 13, 14
    vPst, vMst, vVP, vKVrd, vZ = 15, 16, 17, 18, 19
    vPld = 20
    vT0, vT1, vT2, vT3 = 28, 29, 30, 31
    vNEG1, vONES, vCM = 32, 36, 40
    vACC, vACV, vQK = 44, 48, 52
    vVPr, vVMf, vS, vP = 56, 68, 72, 84
    vO, vLs, vOp = 92, 100, 104
    vD1, vD2, vR = 108, 112, 116
    MEMR = 128
    vH3 = MEMR; vKT = MEMR; vVT = MEMR + 48; vG2 = MEMR
    vX = 208
    vPst2, vFl = 232, 233
    vKV = 238
    vMdA, vMdB, vAC2 = 236, 237, 240
    aW1, aWV, aW2 = 0, 80, 120
    aKT, aVT = 120, 168
    NST = 14
    def R(b, n=4): return f'v[{b}:{b+n-1}]'

    def stamp(idx, wait=False):
        if not stamps: return
        e(f'{STAMPI} s[{64+2*idx}:{65+2*idx}]')
        if wait: e('s_waitcnt lgkmcnt(0)')
    def stamp_flush():
        if not stamps: return
        e('s_waitcnt lgkmcnt(0)')
        for i in range(NST): e(f'v_writelane_b32 v{vT0}, s{64+2*i}, {i}')
        e(f'''v_and_b32 v{vT1}, 63, v0
        v_lshlrev_b32 v{vT1}, 2, v{vT1}
        v_mov_b32 v{vT2}, {OOB:#x}
        v_cmp_gt_u32 vcc, {NST*4}, v{vT1}
        v_cndmask_b32 v{vT1}, v{vT2}, v{vT1}, vcc
        s_lshl_b32 s{sT3}, s{sS}, 8
        s_add_u32 s{sT3}, s{sT3}, s{sSTB}
        buffer_store_dword v{vT0}, v{vT1}, {WS}, s{sT3} offen''')
        for i in range(NST): e(f's_mov_b32 s{64+2*i}, 0')
    def tl(i):
        if TL is None: return
        e(f's_memrealtime s[{92+2*i}:{93+2*i}]')
        if i >= 2: e(f's_memtime s[{84+2*(i-2)}:{85+2*(i-2)}]')
        if i == 0: e('s_mov_b32 s91, s2\ns_mov_b32 s94, 0\ns_mov_b32 s96, 0\ns_mov_b32 s99, 0')
        e('s_waitcnt lgkmcnt(0)')

    Lexit = k.label('exit'); Lproj = k.label('proj'); Lexit2 = k.label('exitb')
    e(f'''s_cmp_ge_u32 s2, 256
    s_cbranch_scc1 {Lexit2}
    s_load_dwordx2 s[{sPTR}:{sPTR+1}], s[0:1], 96
    s_load_dwordx2 s[{sPTR+2}:{sPTR+3}], s[0:1], 88
    s_load_dwordx2 s[{sPTR+4}:{sPTR+5}], s[0:1], 8''')
    tl(0)
    e(f'''s_getreg_b32 s{sXCC}, hwreg(HW_REG_XCC_ID, 0, 3)
    v_lshrrev_b32 v{vT0}, 6, v0
    v_and_b32 v{vT1}, 63, v0
    s_and_b32 s{sX}, s2, 7
    v_readfirstlane_b32 s{sW}, v{vT0}
    v_lshlrev_b32 v{vL16}, 4, v{vT1}
    s_lshr_b32 s{sC}, s2, 3
    s_mov_b32 s{sTO}, 0x100000
    s_waitcnt lgkmcnt(0)
    s_mov_b32 s{sFLIP}, 0
    s_mov_b32 s{sWS}, s{sPTR}
    s_mov_b32 s{sWS+1}, s{sPTR+1}
    s_mov_b32 s{sWS+2}, 0x10000000
    s_mov_b32 s{sWS+3}, 0x20000
    s_mov_b32 s{sAUX}, s{sPTR+2}
    s_mov_b32 s{sAUX+1}, s{sPTR+3}
    s_mov_b32 s{sAUX+2}, 256
    s_mov_b32 s{sAUX+3}, 0x20000
    v_add_u32 v{vL16b}, 0x1000, v{vL16}
    v_add_u32 v{vL16c}, 0x2000, v{vL16}
    v_mov_b32 v{vT3}, {OOB:#x}''')
    e(f'''s_lshl_b32 s{sT0}, s{sXCC}, 3
    s_lshl_b64 s[{sT2}:{sT2+1}], 1, s{sT0}
    s_lshl_b32 s{sT0}, s{sX}, 3
    v_cmp_eq_u32 vcc, 0, v0
    v_mov_b32 v{vT2}, s{sT0}
    v_cndmask_b32 v{vT2}, v{vT3}, v{vT2}, vcc
    v_mov_b32 v{vACC}, s{sT2}
    v_mov_b32 v{vACC+1}, s{sT2+1}
    buffer_atomic_add_x2 v[{vACC}:{vACC+1}], v{vT2}, s[{sAUX}:{sAUX+3}], 0 offen
    s_sub_u32 s{sPARTB}, 0, s{sPTR}
    s_and_b32 s{sPARTB}, s{sPARTB}, 0x1fffff
    s_add_u32 s{sPARTB}, s{sPARTB}, {L.PARTR}
    s_nop 0''')
    def census_wait():
        Lp = k.label('cens'); Lo = k.label('censok')
        e(f'''v_and_b32 v{vT2}, 7, v0
        v_lshlrev_b32 v{vT2}, 3, v{vT2}''')
        e(Lp + ':')
        e(f'''buffer_load_dwordx2 v[{vT0}:{vT0+1}], v{vT2}, s[{sAUX}:{sAUX+3}], 0 offen sc1
        s_waitcnt vmcnt(0)
        v_sad_u8 v{vT3}, v{vT0}, 0, 0
        v_sad_u8 v{vT3}, v{vT1}, 0, v{vT3}
        v_cmp_gt_u32 vcc, 32, v{vT3}
        s_cbranch_vccz {Lo}
        s_sleep 8
        s_sub_u32 s{sTO}, s{sTO}, 1
        s_cbranch_scc0 {Lp}
        s_mov_b32 s{sTO}, 0''')
        e(Lo + ':')
        e(f'''v_and_b32 v{vT0}, 0x20202020, v{vT0}
        v_and_b32 v{vT1}, 0x20202020, v{vT1}
        v_cmp_ne_u32 s[{sT0}:{sT0+1}], 0, v{vT0}
        v_cmp_ne_u32 s[{sT2}:{sT2+1}], 0, v{vT1}
        s_nop 3
        s_and_b32 s{sT0}, s{sT0}, 0xff
        s_and_b32 s{sT2}, s{sT2}, 0xff
        s_or_b32 s{sT1}, s{sT0}, s{sT2}
        s_lshr_b32 s{sT3}, s{sT1}, s{sX}
        s_and_b32 s{sT3}, s{sT3}, 1
        s_xor_b32 s{sMODE}, s{sT3}, 1
        s_cmp_eq_u32 s{sFLIP}, 0
        s_cselect_b32 s{sPAR}, s{sT2}, s{sT0}''')
        if FORCE_SLOW: e(f's_mov_b32 s{sMODE}, 1')
        if PARX: e(f's_xor_b32 s{sPAR}, s{sPAR}, {PARX}')
        e(f'v_mov_b32 v{vT3}, {OOB:#x}')
    e(f's_cmp_ge_u32 s{sC}, 24\ns_cbranch_scc1 {Lproj}')
    tl(1)
    e(f'''s_mul_i32 s{sT0}, s{sC}, 43
    s_lshr_b32 s{sT0}, s{sT0}, 8
    s_mul_i32 s{sT1}, s{sT0}, 6
    s_sub_u32 s{sJ}, s{sC}, s{sT1}
    s_lshl_b32 s{sH}, s{sX}, 2
    s_add_u32 s{sH}, s{sH}, s{sT0}
    s_lshr_b32 s{sKH}, s{sW}, 1''')
    e(f'''s_and_b32 s{sT3}, s{sW}, 1
    s_mul_i32 s{sT0}, s{sH}, 12
    s_lshl_b32 s{sT1}, s{sJ}, 1
    s_add_u32 s{sT0}, s{sT0}, s{sT1}
    s_add_u32 s{sT0}, s{sT0}, s{sT3}
    s_mul_i32 s{sT0}, s{sT0}, 20480
    s_mov_b32 s{sT1}, {L.WKP}
    s_cmp_eq_u32 s{sKH}, 0
    s_cselect_b32 s{sT1}, {L.WQP}, s{sT1}
    s_add_u32 s{sT1}, s{sT1}, s{sT0}
    s_mul_i32 s{sT2}, s{sKH}, 10240
    s_add_u32 s{sA}, s{sT1}, s{sT2}
    s_sub_u32 s{sT2}, 10240, s{sT2}
    s_add_u32 s{sB}, s{sT1}, s{sT2}
    s_add_u32 s{sO_}, s{sT0}, {L.WVP}
    s_mul_i32 s{sT2}, s{sKH}, 10240
    s_add_u32 s{sO_}, s{sO_}, s{sT2}''')
    vLs_ = [vL16, vL16b, vL16c]
    for b in range(20):
        bb = b % 10
        e(f'buffer_load_dwordx4 a[{aW1+4*b}:{aW1+4*b+3}], v{vLs_[bb//4]}, {WS}, s{sA if b < 10 else sB} offen offset:{(bb%4)*1024}')
    for b in range(10):
        e(f'buffer_load_dwordx4 a[{aWV+4*b}:{aWV+4*b+3}], v{vLs_[b//4]}, {WS}, s{sO_} offen offset:{(b%4)*1024}')
    Lnw2 = k.label('now2')
    e(f'''s_cmp_ge_u32 s{sC}, 20
    s_cbranch_scc1 {Lnw2}
    s_cmp_ge_u32 s{sW}, 2
    s_cbranch_scc1 {Lnw2}
    s_lshl_b32 s{sT0}, s{sC}, 1
    s_add_u32 s{sT0}, s{sT0}, s{sW}
    s_mul_i32 s{sT0}, s{sT0}, 192
    s_mul_i32 s{sT1}, s{sX}, 24
    s_add_u32 s{sT0}, s{sT0}, s{sT1}
    s_lshl_b32 s{sT0}, s{sT0}, 10
    s_add_u32 s{sT0}, s{sT0}, {L.WOP}''')
    for kk in range(24):
        if kk and kk % 12 == 0: e(f's_add_u32 s{sT0}, s{sT0}, 12288')
        q = kk % 12
        e(f'buffer_load_dwordx4 a[{aW2+4*kk}:{aW2+4*kk+3}], v{vLs_[q//4]}, {WS}, s{sT0} offen offset:{(q%4)*1024}')
    e(Lnw2 + ':')
    i16, g, lane = vT0, vT2, vT1
    t, u, a_ = vACC, vACC + 1, vACC + 2
    MK = f's[{sMASK}:{sMASK+1}]'
    e(f'''v_and_b32 v{lane}, 63, v0
    v_and_b32 v{i16}, 15, v{lane}
    v_lshrrev_b32 v{g}, 4, v{lane}
    v_mov_b32 v{vNEG1}, -1
    v_mov_b32 v{vNEG1+1}, -1
    v_mov_b32 v{vNEG1+2}, -1
    v_mov_b32 v{vNEG1+3}, -1
    s_mul_i32 s{sT0}, s{sW}, 2560
    v_add_u32 v{vMld}, s{sT0}, v{vL16}
    v_and_b32 v{t}, 31, v{lane}
    v_lshlrev_b32 v{t}, 4, v{t}
    s_add_u32 s{sT0}, s{sT0}, 2048
    v_add_u32 v{vMld2}, s{sT0}, v{t}
    v_and_b32 v{t}, 7, v{lane}
    v_lshlrev_b32 v{t}, 4, v{t}
    v_lshl_add_u32 v{t}, v{g}, 7, v{t}
    s_mul_i32 s{sT0}, s{sKH}, 5120
    v_add_u32 v{vMrdA}, s{sT0}, v{t}
    s_sub_u32 s{sT0}, 5120, s{sT0}
    v_add_u32 v{vMrdB}, s{sT0}, v{t}
    v_lshrrev_b32 v{u}, 3, v{i16}
    v_lshl_add_u32 v{vOld}, v{u}, 9, v{t}
    s_mul_i32 s{sT0}, s{sKH}, 5120
    v_add_u32 v{vMdA}, s{sT0}, v{vOld}
    s_sub_u32 s{sT0}, 5120, s{sT0}
    v_add_u32 v{vMdB}, s{sT0}, v{vOld}
    v_add_u32 v{vOldb}, 0x1000, v{vOld}
    v_add_u32 v{vOldc}, 0x2000, v{vOld}
    v_cmp_gt_u32 {MK}, 8, v{i16}
    s_lshl_b32 s{sT0}, s{sJ}, 10
    s_lshl_b32 s{sT1}, s{sKH}, 7
    s_add_u32 s{sT0}, s{sT0}, s{sT1}
    s_and_b32 s{sT1}, s{sW}, 1
    s_lshl_b32 s{sT2}, s{sT1}, 3
    s_add_u32 s{sT0}, s{sT0}, s{sT2}
    v_lshlrev_b32 v{t}, 4, v{i16}
    v_lshl_add_u32 v{u}, v{g}, 8, v{t}
    v_add_u32 v{u}, s{sT0}, v{u}
    v_cndmask_b32 v{vXst}, v{vT3}, v{u}, {MK}
    v_lshl_add_u32 v{t}, v{g}, 7, v{t}
    v_add_u32 v{u}, s{sT2}, v{t}
    v_cndmask_b32 v{vKMst}, v{vT3}, v{u}, {MK}
    s_lshl_b32 s{sT0}, s{sC}, 9
    v_add_u32 v{u}, s{sT0}, v{t}
    v_cndmask_b32 v{vOst}, v{vT3}, v{u}, {MK}
    s_mul_i32 s{sT0}, s{sX}, 49152
    s_lshr_b32 s{sT1}, s{sC}, 3
    s_lshl_b32 s{sT1}, s{sT1}, 14
    s_add_u32 s{sT0}, s{sT0}, s{sT1}
    s_and_b32 s{sT1}, s{sC}, 7
    s_lshl_b32 s{sT1}, s{sT1}, 10
    s_add_u32 s{sT0}, s{sT0}, s{sT1}
    s_lshl_b32 s{sT1}, s{sW}, 9
    s_add_u32 s{sT0}, s{sT0}, s{sT1}
    v_add_u32 v{u}, s{sT0}, v{t}
    v_cndmask_b32 v{vPst}, v{vT3}, v{u}, {MK}
    s_cmp_lt_u32 s{sC}, 20
    s_cselect_b32 s{sT0}, 0, {OOB:#x}
    v_or_b32 v{vPst}, s{sT0}, v{vPst}
    v_lshlrev_b32 v{u}, 3, v{lane}
    v_cmp_gt_u32 vcc, 32, v{lane}
    v_cndmask_b32 v{vVMst}, v{vT3}, v{u}, vcc
    s_sub_u32 s{sT1}, s{sC}, 4
    s_cmp_lt_u32 s{sC}, 20
    s_cselect_b32 s{sT0}, s{sC}, s{sT1}
    s_lshr_b32 s{sT1}, s{sT0}, 3
    s_lshl_b32 s{sT1}, s{sT1}, 14
    s_and_b32 s{sT0}, s{sT0}, 7
    s_lshl_b32 s{sT0}, s{sT0}, 10
    s_add_u32 s{sT0}, s{sT0}, s{sT1}
    v_add_u32 v{vPld}, s{sT0}, v{vL16}''')
    for xx in range(1, 8): e(f'v_add_u32 v{vPld+xx}, {xx*49152}, v{vPld}')
    e(f'''v_lshrrev_b32 v{t}, 3, v{lane}
    v_and_b32 v{t}, 3, v{t}
    v_lshlrev_b32 v{t}, 7, v{t}
    v_and_b32 v{u}, 7, v{lane}
    v_lshl_add_u32 v{t}, v{u}, 4, v{t}
    v_lshrrev_b32 v{u}, 5, v{lane}
    v_lshl_add_u32 v{t}, v{u}, 3, v{t}
    s_lshl_b32 s{sT0}, s{sC}, 9
    s_cmp_lt_u32 s{sC}, 20
    s_cselect_b32 s{sT0}, s{sT0}, {OOB:#x}
    v_add_u32 v{vMst}, s{sT0}, v{t}
    v_cmp_eq_u32 vcc, 0, v{lane}
    v_mov_b32 v{u}, 0
    v_cndmask_b32 v{vZ}, v{vT3}, v{u}, vcc
    s_lshl_b32 s{sT0}, s{sH}, 8
    s_add_u32 s{sT0}, s{sT0}, {L.PROG2}
    v_and_b32 v{u}, 1, v{lane}
    v_lshlrev_b32 v{u}, 7, v{u}
    v_add_u32 v{vFl}, s{sT0}, v{u}
    s_lshl_b32 s{sT0}, s{sW}, 10
    s_add_u32 s{sT0}, s{sT0}, {LDS_VP}
    v_add_u32 v{vVP}, s{sT0}, v{vL16}
    v_mov_b32 v{vONES}, 0x3f803f80
    v_mov_b32 v{vONES+1}, 0x3f803f80
    v_mov_b32 v{vONES+2}, 0x3f803f80
    v_mov_b32 v{vONES+3}, 0x3f803f80
    v_mov_b32 v{t}, 0xf149f2ca
    v_cmp_gt_u32 vcc, 2, v{g}
    v_cndmask_b32 v{vCM}, 0, v{t}, vcc
    v_mov_b32 v{vCM+1}, v{vCM}
    v_mov_b32 v{vCM+2}, v{vCM}
    v_mov_b32 v{vCM+3}, v{vCM}''')
    e(f'''v_and_b32 v{t}, 31, v{lane}
    v_lshlrev_b32 v{t}, 4, v{t}
    v_add_u32 v{u}, {L.VM}, v{t}
    v_add_u32 v{t}, {L.KM}, v{t}
    v_cmp_gt_u32 vcc, 32, v{lane}
    v_cndmask_b32 v{vKV}, v{u}, v{t}, vcc''')
    cexp = (192 ** -0.5) * math.log2(math.e)
    cbits = struct.unpack('<I', struct.pack('<f', cexp))[0]
    e(f'''s_mov_b32 s{sCexp}, {cbits:#x}
    s_mul_i32 s{sMEMBx}, s{sX}, 40960
    s_add_u32 s{sMEMBx}, s{sMEMBx}, {L.MEMB}
    s_mul_i32 s{sQKh}, s{sH}, 24576
    s_add_u32 s{sQKh}, s{sQKh}, {L.QK}
    s_mul_i32 s{sOBx}, s{sX}, 49152
    s_add_u32 s{sOBx}, s{sOBx}, {L.OB}''')
    if stamps:
        e(f'''s_sub_u32 s{sT1}, s{sC}, 8
        s_cmp_ge_u32 s{sC}, 20
        s_cselect_b32 s{sT1}, s{sT1}, s{sC}
        s_lshl_b32 s{sT0}, s{sT1}, 2
        s_add_u32 s{sT0}, s{sT0}, s{sW}
        s_lshl_b32 s{sT0}, s{sT0}, 14
        s_add_u32 s{sSTB}, s{sT0}, {L.STAMP}
        s_cmp_eq_u32 s{sX}, 0
        s_cselect_b32 s{sSTB}, s{sSTB}, 0x7f000000
        s_cmp_lt_u32 s{sC}, 12
        s_cselect_b32 s{sT1}, s{sSTB}, 0x7f000000
        s_cmp_ge_u32 s{sC}, 20
        s_cselect_b32 s{sSTB}, s{sSTB}, s{sT1}''')
        for i in range(NST): e(f's_mov_b32 s{64+2*i}, 0')
    e(f'''s_mov_b32 s60, s{sPTR+4}
    s_mov_b32 s61, s{sPTR+5}
    s_mov_b32 s62, 10240
    s_mov_b32 s63, 0x20000
    v_and_b32 v{lane}, 63, v0
    v_and_b32 v{t}, 7, v{lane}
    v_mul_u32_u24 v{t}, 1280, v{t}
    v_lshrrev_b32 v{u}, 3, v{lane}
    v_and_b32 v{u}, 3, v{u}
    v_lshl_add_u32 v{t}, v{u}, 4, v{t}
    s_mul_i32 s{sT0}, s{sW}, 320
    v_add_u32 v{t}, s{sT0}, v{t}
    v_add_u32 v{a_}, 256, v{t}
    v_lshrrev_b32 v{u}, 5, v{lane}
    v_lshl_add_u32 v{t}, v{u}, 6, v{t}
    buffer_load_dwordx4 {R(MEMR)}, v{t}, s[60:63], 0 offen
    buffer_load_dwordx4 {R(MEMR+4)}, v{t}, s[60:63], 0 offen offset:128
    buffer_load_dwordx4 {R(MEMR+8)}, v{a_}, s[60:63], 0 offen''')
    if TLBW == 1:
        e(f'''v_and_b32 v{t}, 63, v0
        v_and_b32 v{u}, 3, v{t}
        v_lshlrev_b32 v{u}, 21, v{u}
        v_min_u32 v{u}, {L.RING*98304 - 64}, v{u}
        v_add_u32 v{a_}, {L.KM}, v{u}
        v_add_u32 v{u}, {L.VM}, v{u}
        v_cmp_gt_u32 vcc, 4, v{t}
        v_cndmask_b32 v{a_}, v{u}, v{a_}, vcc
        s_mul_i32 s{sT0}, s{sH}, {L.RING*12288}
        v_and_b32 v{u}, 1, v{t}
        v_mul_u32_u24 v{u}, {L.RING*12288 - 64}, v{u}
        v_add_u32 v{u}, s{sT0}, v{u}
        v_add_u32 v{vT0}, {L.KT}, v{u}
        v_add_u32 v{u}, {L.VT}, v{u}
        v_cmp_gt_u32 vcc, 10, v{t}
        v_cndmask_b32 v{u}, v{u}, v{vT0}, vcc
        v_cmp_gt_u32 vcc, 8, v{t}
        v_cndmask_b32 v{a_}, v{u}, v{a_}, vcc
        v_cmp_gt_u32 vcc, 12, v{t}
        v_cndmask_b32 v{a_}, v{vT3}, v{a_}, vcc
        buffer_load_dword v234, v{a_}, {WS}, 0 offen''')
    if TLBW and TWIN:
        e(f'''v_and_b32 v{t}, 63, v0
        v_lshlrev_b32 v{u}, 21, v{t}
        v_min_u32 v{u}, {128*192*1024 - 64}, v{u}
        v_add_u32 v{u}, {L.OT}, v{u}
        s_lshl_b32 s{sT0}, s{sX}, 2
        s_add_u32 s{sT0}, s{sT0}, s{sC}
        s_sub_u32 s{sT0}, s{sT0}, 20
        s_and_b32 s{sT0}, s{sT0}, 31
        s_mul_i32 s{sT0}, s{sT0}, {L.RING*12288}
        s_add_u32 s{sT0}, s{sT0}, {L.QT}
        v_and_b32 v{a_}, 1, v{t}
        v_mul_u32_u24 v{a_}, {L.RING*12288 - 64}, v{a_}
        v_add_u32 v{a_}, s{sT0}, v{a_}
        v_cmp_gt_u32 vcc, 13, v{t}
        v_cndmask_b32 v{a_}, v{a_}, v{u}, vcc
        v_cmp_gt_u32 vcc, 15, v{t}
        v_cndmask_b32 v{a_}, v{vT3}, v{a_}, vcc
        buffer_load_dword v235, v{a_}, {WS}, 0 offen''')
    if TLBW >= 2:
        e(f'''v_and_b32 v{t}, 63, v0
        v_and_b32 v{u}, 31, v{t}
        v_mul_u32_u24 v{a_}, {196608}, v{u}
        v_lshrrev_b32 v{vT0}, 5, v{t}
        v_mul_u32_u24 v{vT1}, {L.VM - L.KM}, v{vT0}
        v_add_u32 v{a_}, v{a_}, v{vT1}
        v_add_u32 v{a_}, {L.KM}, v{a_}
        buffer_load_dword v234, v{a_}, {WS}, 0 offen
        v_mul_u32_u24 v{a_}, {24576}, v{u}
        s_mov_b32 s{sT1}, {L.VT - L.KT}
        v_mul_lo_u32 v{vT1}, v{vT0}, s{sT1}
        v_add_u32 v{a_}, v{a_}, v{vT1}
        s_mul_i32 s{sT0}, s{sH}, {L.RING*12288}
        s_add_u32 s{sT0}, s{sT0}, {L.KT}
        buffer_load_dword v235, v{a_}, {WS}, s{sT0} offen''')
    census_wait()
    if DUAL:
        e(f'''v_add_u32 v{vPst2}, 0x2000, v{vPst}
        s_lshr_b32 s{sPRB}, s2, 4
        s_lshl_b32 s{sPRB}, s{sPRB}, 14
        s_and_b32 s{sT0}, s2, 15
        s_lshl_b32 s{sT0}, s{sT0}, 9
        s_add_u32 s{sPRB}, s{sPRB}, s{sT0}
        s_add_u32 s{sPRB}, s{sPRB}, {L.PROBE_OFF}
        s_add_u32 s{sPRB}, s{sPRB}, s{sPARTB}
        s_mov_b32 s{sPM0}, -1
        s_mov_b32 s{sPM1}, -1''')
        if NEARF is not None:
            e(f'''s_lshr_b32 s{sT0}, s{sXCC}, 2
            s_xor_b32 s{sT0}, s{sT0}, {NEARF}
            s_lshl_b32 s{sT0}, s{sT0}, 13''')
            for xx in range(8): e(f'v_add_u32 v{vPld+xx}, s{sT0}, v{vPld+xx}')
    else:
        for xx in range(8):
            e(f'''s_lshr_b32 s{sT0}, s{sPAR}, {xx}
            s_and_b32 s{sT0}, s{sT0}, 1
            s_lshl_b32 s{sT0}, s{sT0}, 13
            v_add_u32 v{vPld+xx}, s{sT0}, v{vPld+xx}''')
        e(f'''s_lshr_b32 s{sT0}, s{sPAR}, s{sX}
        s_and_b32 s{sT0}, s{sT0}, 1
        s_lshl_b32 s{sT0}, s{sT0}, 13
        v_add_u32 v{vPst}, s{sT0}, v{vPst}''')
    if stamps:
        for i in range(NST): e(f's_mov_b32 s{64+2*i}, 0')

    tS, tL, tO, tOp = MEMR, MEMR + 20, MEMR + 28, MEMR + 44
    tP, tInv, tCM, tCD, tKM, tVM = 72, 82, 84, 88, 92, 93
    LDS_TP = 16384
    aK_, aQ_, aKm_, aV_, aVm_ = 120, 168, 216, 120, 168
    sHT, sTA, sTB, sTC = 59, 23, 60, 61
    AR = lambda b, n=4: f'a[{b}:{b+n-1}]'
    def twin_consts():
        e(f"""s_lshl_b32 s{sHT}, s{sX}, 2
        s_add_u32 s{sHT}, s{sHT}, s{sC}
        s_sub_u32 s{sHT}, s{sHT}, 20
        v_and_b32 v{vT1}, 63, v0
        v_and_b32 v{vT0}, 15, v{vT1}
        v_lshrrev_b32 v{vT2}, 4, v{vT1}
        v_lshlrev_b32 v{tKM}, 4, v{vT0}
        v_lshl_add_u32 v{tKM}, v{vT2}, 7, v{tKM}
        v_cmp_gt_u32 vcc, 8, v{vT0}
        v_cndmask_b32 v{tKM}, v{vT3}, v{tKM}, vcc
        v_lshlrev_b32 v{tVM}, 3, v{vT1}
        v_cmp_gt_u32 vcc, 32, v{vT1}
        v_cndmask_b32 v{tVM}, v{vT3}, v{tVM}, vcc
        v_mov_b32 v{tInv}, 0xf149f2ca
        v_cmp_le_u32 vcc, 2, v{vT2}
        v_cndmask_b32 v{tCM}, 0, v{tInv}, vcc
        v_mov_b32 v{tCM+1}, v{tCM}
        v_mov_b32 v{tCM+2}, v{tCM}
        v_mov_b32 v{tCM+3}, v{tCM}
        v_lshlrev_b32 v{vT2}, 2, v{vT2}""")
        for r in range(4):
            e(f"""v_add_u32 v{vT1}, {r}, v{vT2}
            v_cmp_gt_u32 vcc, v{vT1}, v{vT0}
            v_cndmask_b32 v{tCD+r}, 0, v{tInv}, vcc""")
    SM0, S00, SM1, S10, S11 = tS, tS + 4, tS + 8, tS + 12, tS + 16
    PM0, PT0, PM1, PT1 = tP, tP + 2, tP + 4, tP + 6
    def twin_softmax(regs, mx, t_):
        e(f'v_max3_f32 v{mx}, v{regs[0]}, v{regs[1]}, v{regs[2]}')
        r = regs[3:]
        while r:
            if len(r) >= 2: e(f'v_max3_f32 v{mx}, v{mx}, v{r[0]}, v{r[1]}'); r = r[2:]
            else: e(f'v_max_f32 v{mx}, v{mx}, v{r[0]}'); r = r[1:]
        e(f"""v_mov_b32 v{t_}, v{mx}
        v_permlane32_swap_b32 v{mx}, v{t_}
        v_max_f32 v{mx}, v{mx}, v{t_}
        v_mov_b32 v{t_}, v{mx}
        v_permlane16_swap_b32 v{mx}, v{t_}
        v_max_f32 v{mx}, v{mx}, v{t_}
        v_mul_f32 v{mx}, s{sCexp}, v{mx}""")
        for x in regs: e(f'v_fma_f32 v{x}, v{x}, s{sCexp}, -v{mx}')
        for x in regs: e(f'v_exp_f32 v{x}, v{x}')
    def twin_partA():
        vv = [vL16, vL16b, vL16c]
        e(f"""s_sub_u32 s{sT2}, s{sS}, 2
        s_and_b32 s{sT2}, s{sT2}, {L.RING-1}
        s_lshl_b32 s{sT0}, s{sHT}, {L.RL}
        s_add_u32 s{sT0}, s{sT0}, s{sT2}
        s_mul_i32 s{sT0}, s{sT0}, 12288
        s_add_u32 s{sTA}, s{sT0}, {L.KT}
        s_add_u32 s{sTB}, s{sT0}, {L.QT}
        s_lshl_b32 s{sT1}, s{sT2}, 5
        s_add_u32 s{sT1}, s{sT1}, s{sHT}
        s_mul_i32 s{sT1}, s{sT1}, 3072
        s_add_u32 s{sTC}, s{sT1}, {L.KM}""")
        for i in range(12): e(f'buffer_load_dwordx4 {AR(aK_+4*i)}, v{vv[i//4]}, {WS}, s{sTA} offen offset:{(i%4)*1024} sc1')
        for j in range(6): e(f'buffer_load_dwordx4 {AR(aKm_+4*j)}, v{tKM}, {WS}, s{sTC} offen offset:{j*512} sc1')
        for i in range(12): e(f'buffer_load_dwordx4 {AR(aQ_+4*i)}, v{vv[i//4]}, {WS}, s{sTB} offen offset:{(i%4)*1024} sc1')
        for j in range(6):
            e(f's_waitcnt vmcnt({5-j})')
            q0 = AR(aQ_ + 4 * j); q1 = AR(aQ_ + 24 + 4 * j); k0 = AR(aK_ + 4 * j); k1 = AR(aK_ + 24 + 4 * j); km = AR(aKm_ + 4 * j)
            f = j == 0
            e(f'v_mfma_f32_16x16x32_bf16 {R(SM0)}, {km}, {q0}, {R(tCM) if f else R(SM0)}')
            e(f'v_mfma_f32_16x16x32_bf16 {R(S00)}, {k0}, {q0}, {R(tCD) if f else R(S00)}')
            e(f'v_mfma_f32_16x16x32_bf16 {R(SM1)}, {km}, {q1}, {R(tCM) if f else R(SM1)}')
            e(f'v_mfma_f32_16x16x32_bf16 {R(S10)}, {k0}, {q1}, ' + ('0' if f else R(S10)))
            e(f'v_mfma_f32_16x16x32_bf16 {R(S11)}, {k1}, {q1}, {R(tCD) if f else R(S11)}')
        twin_softmax(list(range(SM0, SM0 + 8)), vT0, vT1)
        twin_softmax(list(range(SM1, SM1 + 12)), vT2, vT1)
        for (dst, src) in ((PM0, SM0), (PT0, S00), (PM1, SM1), (PT1, S10), (PT1 + 2, S11)):
            e(f'v_cvt_pk_bf16_f32 v{dst}, v{src}, v{src+1}')
            e(f'v_cvt_pk_bf16_f32 v{dst+1}, v{src+2}, v{src+3}')
        L0, L1 = tL, tL + 4
        e(f"""v_mfma_f32_16x16x16_bf16 {R(L0)}, {R(vONES,2)}, {R(PM0,2)}, 0
        v_mfma_f32_16x16x16_bf16 {R(L1)}, {R(vONES,2)}, {R(PM1,2)}, 0
        v_mfma_f32_16x16x16_bf16 {R(L0)}, {R(vONES,2)}, {R(PT0,2)}, {R(L0)}
        v_mfma_f32_16x16x32_bf16 {R(L1)}, {R(vONES)}, {R(PT1)}, {R(L1)}
        v_rcp_f32 v{tInv}, v{L0}
        v_rcp_f32 v{tInv+1}, v{L1}
        s_and_b32 s{sT0}, s{sS}, 1
        s_mul_i32 s{sT0}, s{sT0}, 3072
        v_add_u32 v{vT0}, s{sT0}, v{vL16}
        ds_write_b128 v{vT0}, {R(tP)} offset:{LDS_TP}
        ds_write_b128 v{vT0}, {R(tP+4)} offset:{LDS_TP+1024}
        ds_write_b128 v{vT0}, {R(tP+8)} offset:{LDS_TP+2048}
        s_waitcnt lgkmcnt(0)""")
    def twin_partB(half):
        vv = [vL16, vL16b, vL16c]
        e(f"""s_sub_u32 s{sT2}, s{sS}, 3
        s_and_b32 s{sT3}, s{sT2}, {L.RING-1}
        s_lshl_b32 s{sT0}, s{sHT}, {L.RL}
        s_add_u32 s{sT0}, s{sT0}, s{sT3}
        s_mul_i32 s{sT0}, s{sT0}, 12288
        s_add_u32 s{sTA}, s{sT0}, {L.VT}
        s_lshl_b32 s{sT1}, s{sT3}, 5
        s_add_u32 s{sT1}, s{sT1}, s{sHT}
        s_mul_i32 s{sT1}, s{sT1}, 3072
        s_add_u32 s{sTC}, s{sT1}, {L.VM}
        s_mul_i32 s{sT0}, s{sT2}, {2*192*1024}
        s_mul_i32 s{sT1}, s{sHT}, 6144
        s_add_u32 s{sT0}, s{sT0}, s{sT1}
        s_add_u32 s{sTB}, s{sT0}, {L.OT}""")
        e(f"""s_add_u32 s{sT0}, s{sS}, 1
        s_and_b32 s{sT0}, s{sT0}, 1
        s_mul_i32 s{sT0}, s{sT0}, 3072
        v_add_u32 v{vT0}, s{sT0}, v{vL16}
        ds_read_b128 {R(tP)}, v{vT0} offset:{LDS_TP}
        ds_read_b128 {R(tP+4)}, v{vT0} offset:{LDS_TP+1024}
        ds_read_b128 {R(tP+8)}, v{vT0} offset:{LDS_TP+2048}""")
        for i in range(6 * half, 6 * half + 6):
            e(f'buffer_load_dwordx2 {AR(aVm_+2*i,2)}, v{tVM}, {WS}, s{sTC} offen offset:{i*256} sc1')
            e(f'buffer_load_dwordx4 {AR(aV_+4*i)}, v{vv[i//4]}, {WS}, s{sTA} offen offset:{(i%4)*1024} sc1')
        npre = 0
        if PRE2:
            for j in range(3 * half, 3 * half + 3):
                for Tq in range(2):
                    e(f's_add_u32 s{sT0}, s{sTB}, {(2 + Tq)*192*1024}')
                    e(f'buffer_load_dwordx4 a[240:243], v{[vL16, vL16b][j//4]}, {WS}, s{sT0} offen offset:{(j%4)*1024} sc1')
                    npre += 1
        e('s_waitcnt lgkmcnt(0)')
        for jn, j in enumerate(range(3 * half, 3 * half + 3)):
            e(f's_waitcnt vmcnt({8 - 4*jn + 2*jn + npre})')
            for t_ in range(2):
                et = 2 * j + t_
                o0 = tO + 8 * t_; o1 = o0 + 4
                vt = aV_ + 4 * et; vm = aVm_ + 2 * et
                e(f'v_mfma_f32_16x16x16_bf16 {R(o0)}, {AR(vm,2)}, {R(PM0,2)}, 0')
                e(f'v_mfma_f32_16x16x16_bf16 {R(o1)}, {AR(vm,2)}, {R(PM1,2)}, 0')
                e(f'v_mfma_f32_16x16x16_bf16 {R(o0)}, {AR(vt,2)}, {R(PT0,2)}, {R(o0)}')
                e(f'v_mfma_f32_16x16x32_bf16 {R(o1)}, {AR(vt)}, {R(PT1)}, {R(o1)}')
            for Tq in range(2):
                p = tOp + 4 * Tq
                for t_ in range(2):
                    o = tO + 8 * t_ + 4 * Tq
                    for r in range(4): e(f'v_mul_f32 v{o+r}, v{o+r}, v{tInv+Tq}')
                    e(f'v_cvt_pk_bf16_f32 v{p+2*t_}, v{o}, v{o+1}')
                    e(f'v_cvt_pk_bf16_f32 v{p+2*t_+1}, v{o+2}, v{o+3}')
                if Tq: e(f's_add_u32 s{sT0}, s{sTB}, {192*1024}')
                e(f'buffer_store_dwordx4 {R(p)}, v{[vL16, vL16b][j//4]}, {WS}, s{sTB if Tq == 0 else sT0} offen offset:{(j%4)*1024} {"sc1" if OTSC else ""}')

    def prefetch(seg):
        if PROJ:
            Lf = k.label('pf'); Lfo = k.label('pfok')
            e(f's_add_u32 s{sT3}, s{seg}, 1')
            e(Lf + ':')
            e(f'''buffer_load_dword v{vT0}, v{vFl}, {WS}, 0 offen sc1
            s_waitcnt vmcnt(0)
            v_cmp_gt_i32 vcc, s{sT3}, v{vT0}
            s_cbranch_vccz {Lfo}
            s_sleep 1
            s_sub_u32 s{sTO}, s{sTO}, 1
            s_cbranch_scc0 {Lf}
            s_mov_b32 s{sTO}, 0''')
            e(Lfo + ':')
        e(f'''s_lshl_b32 s{sT0}, s{sH}, {L.RL}
        s_and_b32 s{sT1}, s{seg}, {L.RING-1}
        s_add_u32 s{sT0}, s{sT0}, s{sT1}
        s_mul_i32 s{sT0}, s{sT0}, 12288
        s_add_u32 s{sKT}, s{sT0}, {L.KT}
        s_lshl_b32 s{sT1}, s{sJ}, 11
        s_add_u32 s{sT0}, s{sT0}, s{sT1}
        s_add_u32 s{sVT}, s{sT0}, {L.VT}''')
        vv = [vL16, vL16b, vL16c]
        for i in range(12):
            e(f'buffer_load_dwordx4 a[{aKT+4*i}:{aKT+4*i+3}], v{vv[i//4]}, {WS}, s{sKT} offen offset:{(i%4)*1024} sc1')
        for q in range(2):
            e(f'buffer_load_dwordx4 a[{aVT+4*q}:{aVT+4*q+3}], v{vL16}, {WS}, s{sVT} offen offset:{q*1024} sc1')
        if PRE2:
            e(f'''s_and_b32 s{sT0}, s{seg}, {L.RING-1}
            s_lshl_b32 s{sT0}, s{sT0}, 5
            s_add_u32 s{sT0}, s{sT0}, s{sH}
            s_mul_i32 s{sT0}, s{sT0}, 3072
            s_lshl_b32 s{sT1}, s{sJ}, 9
            s_add_u32 s{sT0}, s{sT0}, s{sT1}
            buffer_load_dwordx4 a[240:243], v{vKV}, {WS}, s{sT0} offen sc1''')

    if DUAL and NEARF is None:
        Lnpr = k.label('noprobe')
        e(f's_cmp_lg_u32 s{sW}, 2\ns_cbranch_scc1 {Lnpr}')
        for q in range(NPR):
            for par in range(2):
                e(f'''s_add_u32 s{sT1}, s{sPRB}, {par*8192 + q*128}
                s_memtime s[60:61]
                s_waitcnt lgkmcnt(0)
                buffer_load_dword v{vT0}, v{vZ}, {WS}, s{sT1} offen sc1
                s_waitcnt vmcnt(0)
                s_memtime s[62:63]
                s_waitcnt lgkmcnt(0)
                s_sub_u32 s{sT2}, s62, s60
                s_min_u32 s{sPM0 if par == 0 else sPM1}, s{sPM0 if par == 0 else sPM1}, s{sT2}''')
        e(f's_cmp_lt_u32 s{sPM1}, s{sPM0}\ns_cbranch_scc0 {Lnpr}')
        for xx in range(8): e(f'v_add_u32 v{vPld+xx}, 0x2000, v{vPld+xx}')
        e(Lnpr + ':')
    if TWIN: twin_consts()
    e(f's_mov_b32 s{sS}, 0')
    Lnp = k.label('nopf0')
    e(f's_cmp_lg_u32 s{sW}, 3\ns_cbranch_scc1 {Lnp}')
    prefetch(sS)
    e('s_waitcnt vmcnt(0)')
    e(Lnp + ':')
    tl(2)
    Lslow = k.label('slow')
    e(f's_cmp_lg_u32 s{sMODE}, 0\ns_cbranch_scc1 {Lslow}')

    def loop(SF, twin=False):
        ool = []
        def prog(n, load, chk, consume, cnt=None, second=None):
            extra = n if second else 0
            def test(r):
                if len(r) == 1: return [f'v_cmp_eq_u32 vcc, -1, v{r[0]}']
                return [f'v_max_u32 v{vT1}, v{r[0]}, v{r[1]}', f'v_cmp_eq_u32 vcc, -1, v{vT1}']
            for i in range(n + 1):
                if i < n:
                    e(f's_waitcnt vmcnt({n - 1 - i + extra})')
                    r = chk(i)
                    for x in test(r): e(x)
                if i > 0: consume(i - 1)
                if i < n:
                    Lr = k.label('retry'); Lb = k.label('resume')
                    e(f's_cbranch_vccnz {Lr}')
                    e(Lb + ':')
                    blk = [Lr + ':']
                    if stamps and cnt is not None: blk.append(f's_add_u32 s{64+2*cnt}, s{64+2*cnt}, 1')
                    if second:
                        load2, ra, rb_ = second
                        A = ra(i); B = rb_(i)
                        d = B[0] - A[0]
                        blk += [f's_waitcnt vmcnt({n - 1 - i})'] + test([x + d for x in r]) + [f's_cbranch_vccnz {Lr}_2']
                        blk += [f'v_mov_b32 v{x}, v{y}' for x, y in zip(A, B)] + [f's_branch {Lb}', Lr + '_2:']
                        if stamps and cnt is not None: blk.append(f's_add_u32 s{64+2*cnt}, s{64+2*cnt}, 0x100')
                        blk += [f's_sub_u32 s{sTO}, s{sTO}, 1', f's_cbranch_scc1 {Lr}_to', load(i), 's_waitcnt vmcnt(0)'] + test(r)
                        blk += [f's_cbranch_vccnz {Lr}_2', f's_branch {Lb}']
                    else:
                        blk += [f's_sub_u32 s{sTO}, s{sTO}, 1', f's_cbranch_scc1 {Lr}_to'] + [load(q) for q in range(i, n)] + [f's_waitcnt vmcnt({n - 1 - i})'] + test(r)
                        blk += [f's_cbranch_vccnz {Lr}', f's_branch {Lb}']
                    blk += [Lr + '_to:', f's_mov_b32 s{sTO}, 0', 's_waitcnt vmcnt(0)', f's_branch {Lb}']
                    ool.append(blk)
        Ltop = k.label('step'); Lafter = k.label('gotmem'); Lafter2 = k.label('gotmem2')
        e(f's_branch {Lafter}')
        e(Ltop + ':')
        e(f'''s_and_b32 s{sT0}, s{sS}, 3
        s_mul_i32 s{sA}, s{sT0}, 10240
        s_add_u32 s{sA}, s{sA}, s{sMEMBx}''')
        if (D4T if twin else D4): e(f's_sleep {D4T if twin else D4}')
        mld = [f'buffer_load_dwordx4 {R(MEMR)}, v{vMld}, {WS}, s{sA} offen sc1',
               f'buffer_load_dwordx4 {R(MEMR+4)}, v{vMld}, {WS}, s{sA} offen offset:1024 sc1',
               f'buffer_load_dwordx4 {R(MEMR+8)}, v{vMld2}, {WS}, s{sA} offen sc1']
        mwr = [f'ds_write_b128 v{vMld}, {R(MEMR)}', f'ds_write_b128 v{vMld}, {R(MEMR+4)} offset:1024', f'ds_write_b128 v{vMld2}, {R(MEMR+8)}']
        for x in mld: e(x)
        sec = None
        if DS4 is not None:
            if DS4: e(f's_sleep {DS4}')
            for i, x in enumerate(mld): e(x.replace(R(MEMR+4*i), R(vX+4*i)))
            sec = (None, lambda i: list(range(MEMR+4*i, MEMR+4*i+4)), lambda i: list(range(vX+4*i, vX+4*i+4)))
        prog(3, lambda i: mld[i], lambda i: [MEMR+4*i, MEMR+4*i+2], lambda i: e(mwr[i]), cnt=13, second=sec)
        e(f's_branch {Lafter2}')
        e(Lafter + ':')
        for x in mwr: e(x)
        e(Lafter2 + ':')
        stamp(0)
        e(f'''s_and_b32 s{sT0}, s{sS}, 3
        s_mul_i32 s{sB}, s{sT0}, 6144
        s_add_u32 s{sB}, s{sB}, s{sQKh}
        s_mul_i32 s{sO_}, s{sT0}, 12288
        s_add_u32 s{sO_}, s{sO_}, s{sOBx}
        s_mul_i32 s{sPp}, s{sT0}, 393216
        s_add_u32 s{sPp}, s{sPp}, s{sPARTB}
        s_add_u32 s{sT1}, s{sS}, 1
        s_and_b32 s{sT1}, s{sT1}, 3
        s_mul_i32 s{sE}, s{sT1}, 10240
        s_add_u32 s{sE}, s{sE}, s{sMEMBx}
        s_waitcnt lgkmcnt(0)
        s_barrier''')
        stamp(1, True)
        if DENSE:
            VR = MEMR + 40
            for i in range(10):
                e(f'ds_read_b128 {R(MEMR+4*i)}, v{vMdA if i < 5 else vMdB} offset:{(i%5)*1024}')
            for i in range(10):
                e('s_waitcnt lgkmcnt(9)')
                e(f'v_mfma_f32_16x16x32_bf16 {R(vACC)}, a[{aW1+8*i}:{aW1+8*i+3}], {R(MEMR+4*i)}, ' + ('0' if i == 0 else R(vACC)))
                e(f'ds_read_b128 {R(VR+4*i)}, v{vMrdA} offset:{i*512}')
                e(f'v_mfma_f32_16x16x32_bf16 {R(vAC2)}, a[{aW1+8*i+4}:{aW1+8*i+7}], {R(MEMR+4*i)}, ' + ('0' if i == 0 else R(vAC2)))
            e('s_waitcnt lgkmcnt(9)')
            e(f'v_mfma_f32_16x16x32_bf16 {R(vACV)}, {R(VR)}, a[{aWV}:{aWV+3}], 0')
        else:
            VR = MEMR
            def memrd(b): return f'ds_read_b128 {R(MEMR+4*b)}, v{vMrdA if b < 10 else vMrdB} offset:{(b%10)*512}'
            NPRE = 12
            for b in range(NPRE): e(memrd(b))
            for b in range(20):
                nxt = b + NPRE
                if nxt < 20: e(memrd(nxt)); e(f's_waitcnt lgkmcnt({NPRE})')
                else: e(f's_waitcnt lgkmcnt({19-b})')
                c = '0' if b == 0 else R(vACC)
                e(f'v_mfma_f32_16x16x32_bf16 {R(vACC)}, a[{aW1+4*b}:{aW1+4*b+3}], {R(MEMR+4*b)}, {c}')
            e(f'v_mfma_f32_16x16x32_bf16 {R(vACV)}, {R(MEMR)}, a[{aWV}:{aWV+3}], 0')
        e(f'''s_and_b32 s{sT0}, s{sS}, {L.RING-1}
        s_lshl_b32 s{sT0}, s{sT0}, 5
        s_add_u32 s{sT0}, s{sT0}, s{sH}
        s_mul_i32 s{sT0}, s{sT0}, 3072
        s_lshl_b32 s{sT1}, s{sJ}, 9
        s_add_u32 s{sT0}, s{sT0}, s{sT1}
        s_add_u32 s{sKM}, s{sT0}, {L.KM}
        s_add_u32 s{sVM}, s{sT0}, {L.VM}
''')
        if DENSE:
            for r in range(4): e(f'v_add_f32_dpp v{vACC+r}, v{vAC2+r}, v{vACC+r} row_ror:8 row_mask:0xf bank_mask:0xf')
        e(f'''v_cvt_pk_bf16_f32 v{vQK}, v{vACC}, v{vACC+1}
        v_cvt_pk_bf16_f32 v{vQK+1}, v{vACC+2}, v{vACC+3}
        buffer_store_dwordx2 {R(vQK,2)}, v{vXst}, {WS}, s{sB} offen {SF}''')
        stamp(2)
        for b in range(1, 10):
            if DENSE: e(f's_waitcnt lgkmcnt({9-b})')
            e(f'v_mfma_f32_16x16x32_bf16 {R(vACV)}, {R(VR+4*b)}, a[{aWV+4*b}:{aWV+4*b+3}], {R(vACV)}')
        LS = k.label('swave'); Lnk = k.label('nokm'); Llast = k.label('last')
        xloads = [f'buffer_load_dwordx4 {R(vX+4*i)}, v{[vL16, vL16b][i//4]}, {WS}, s{sB} offen offset:{(i%4)*1024} sc1' for i in range(6)]
        Lb3 = k.label('b3'); Lb4 = k.label('b4'); Lb5 = k.label('b5')
        def poison_soffsets():
            e(f"""s_add_u32 s{sT0}, s{sS}, 2
            s_and_b32 s{sT0}, s{sT0}, 3
            s_mul_i32 s{sA2}, s{sT0}, 10240
            s_add_u32 s{sA2}, s{sA2}, s{sMEMBx}
            s_mul_i32 s{sB2}, s{sT0}, 6144
            s_add_u32 s{sB2}, s{sB2}, s{sQKh}
            s_mul_i32 s{sO2}, s{sT0}, 12288
            s_add_u32 s{sO2}, s{sO2}, s{sOBx}
            s_mul_i32 s{sP2}, s{sT0}, 393216
            s_add_u32 s{sP2}, s{sP2}, s{sPARTB}""")
        def v_assemble():
            for r in range(4):
                e(f'v_add_f32 v{vVPr+r}, v{vVPr+r}, v{vVPr+8+r}')
                e(f'v_add_f32 v{vVPr+4+r}, v{vVPr+4+r}, v{vACV+r}')
            e(f"""v_cvt_pk_bf16_f32 v{vVMf}, v{vVPr}, v{vVPr+1}
            v_cvt_pk_bf16_f32 v{vVMf+1}, v{vVPr+2}, v{vVPr+3}
            v_cvt_pk_bf16_f32 v{vVMf+2}, v{vVPr+4}, v{vVPr+5}
            v_cvt_pk_bf16_f32 v{vVMf+3}, v{vVPr+6}, v{vVPr+7}""")
        vp_reads = f"""ds_read_b128 {R(vVPr)}, v{vL16} offset:{LDS_VP}
        ds_read_b128 {R(vVPr+4)}, v{vL16} offset:{LDS_VP+1024}
        ds_read_b128 {R(vVPr+8)}, v{vL16} offset:{LDS_VP+2048}"""
        e(f's_cmp_eq_u32 s{sW}, 3\ns_cbranch_scc1 {LS}')
        e(f'ds_write_b128 v{vVP}, {R(vACV)}')
        poison_soffsets()
        e(f"""s_waitcnt lgkmcnt(0)
        s_barrier
        s_cmp_eq_u32 s{sS}, {nsteps-1}
        s_cbranch_scc1 {Llast}
        buffer_store_dwordx2 {R(vNEG1,2)}, v{vXst}, {WS}, s{sB2} offen {SF}""")
        if twin:
            L1_ = k.label('tw1'); L2_ = k.label('tw2')
            e(f"""s_cmp_lg_u32 s{sW}, 2
            s_cbranch_scc1 {L1_}_n
            buffer_store_dwordx2 {R(vQK,2)}, v{vKMst}, {WS}, s{sKM} offen {SF}""")
            e(L1_ + '_n:')
            e(f"""s_barrier
            s_cmp_eq_u32 s{sW}, 1
            s_cbranch_scc1 {L1_}
            s_cmp_eq_u32 s{sW}, 2
            s_cbranch_scc1 {L2_}
            s_cmp_lt_u32 s{sS}, 2
            s_cbranch_scc1 {Lb5}
            s_cmp_gt_u32 s{sS}, {nsteps-3}
            s_cbranch_scc1 {Lb5}""")
            twin_partA()
            stamp(6)
            e(f's_branch {Lb5}')
            e(L1_ + ':')
            e(f's_cmp_lt_u32 s{sS}, 3\ns_cbranch_scc1 {Lb5}')
            twin_partB(0)
            stamp(7)
            e(f's_branch {Lb5}')
            e(L2_ + ':')
            e(f's_cmp_lt_u32 s{sS}, 3\ns_cbranch_scc1 {Lb5}')
            twin_partB(1)
            stamp(7)
            e(f's_branch {Lb5}')
        e(f"""s_cmp_lg_u32 s{sW}, 2
        s_cbranch_scc1 {Lb3}""")
        e(f"""buffer_store_dwordx2 {R(vQK,2)}, v{vKMst}, {WS}, s{sKM} offen {SF}
        buffer_store_dwordx2 {R(vNEG1,2)}, v{vMst}, {WS}, s{sA2} offen {SF}""")
        stamp_flush()
        e(f"""s_cmp_lg_u32 s{sC}, 0
        s_cbranch_scc1 {Lb3}
        v_mov_b32 v{vT0}, s{sS}
        s_lshl_b32 s{sT0}, s{sX}, 7
        s_add_u32 s{sT0}, s{sT0}, {L.PROG}
        buffer_store_dword v{vT0}, v{vZ}, {WS}, s{sT0} offen {SF}
        s_branch {Lb3}""")
        e(Llast + ':')
        e(f"""s_cmp_lg_u32 s{sW}, 2
        s_cbranch_scc1 {Lexit}
        buffer_store_dwordx2 {R(vQK,2)}, v{vKMst}, {WS}, s{sKM} offen
        s_branch {Lexit}""")
        e(LS + ':')
        Lvmst = k.label('vmst')
        e(f's_cmp_lg_u32 s{sS}, {nsteps-1}\ns_cbranch_scc1 {Lvmst}')
        e('s_barrier')
        e(vp_reads)
        e('s_waitcnt lgkmcnt(0)')
        v_assemble()
        e(f"""buffer_store_dwordx2 {R(vQK,2)}, v{vKMst}, {WS}, s{sKM} offen
        buffer_store_dwordx2 {R(vVMf,2)}, v{vVMst}, {WS}, s{sVM} offen
        buffer_store_dwordx2 {R(vVMf+2,2)}, v{vVMst}, {WS}, s{sVM} offen offset:256
        s_branch {Lexit}""")
        e(Lvmst + ':')
        if D1: e(f's_sleep {D1}')
        for x in xloads: e(x)
        SM, S0, S1 = vS, vS + 4, vS + 8
        def sc_consume(j):
            X = R(vX + 4 * j)
            e(f'v_mfma_f32_16x16x32_bf16 {R(S0)}, a[{aKT+4*j}:{aKT+4*j+3}], {X}, ' + ('0' if j == 0 else R(S0)))
            e(f'v_mfma_f32_16x16x32_bf16 {R(S1)}, a[{aKT+24+4*j}:{aKT+24+4*j+3}], {X}, ' + ('0' if j == 0 else R(S1)))
            e(f'v_mfma_f32_16x16x32_bf16 {R(SM)}, {X}, {X}, ' + (R(vCM) if j == 0 else R(SM)))
        sec = None
        if DS1 is not None:
            if DS1: e(f's_sleep {DS1}')
            for i, x in enumerate(xloads): e(x.replace(R(vX+4*i), R(MEMR+4*i)))
            sec = (None, lambda i: list(range(vX+4*i, vX+4*i+4)), lambda i: list(range(MEMR+4*i, MEMR+4*i+4)))
        prog(6, lambda j: xloads[j], lambda j: [vX+4*j, vX+4*j+2], sc_consume, cnt=10, second=sec)
        e('s_barrier')
        e(vp_reads)
        stamp(4)
        e(f"""v_max3_f32 v{vT0}, v{S0}, v{S0+1}, v{S0+2}
        v_max3_f32 v{vT1}, v{S1}, v{S1+1}, v{S1+2}
        v_max3_f32 v{vT0}, v{vT0}, v{S0+3}, v{S1+3}
        v_max3_f32 v{vT1}, v{vT1}, v{SM}, v{SM+1}
        v_max3_f32 v{vT0}, v{vT0}, v{SM+2}, v{SM+3}
        v_max_f32 v{vT0}, v{vT0}, v{vT1}
        v_mov_b32 v{vT1}, v{vT0}
        v_permlane32_swap_b32 v{vT0}, v{vT1}
        v_max_f32 v{vT0}, v{vT0}, v{vT1}
        v_mov_b32 v{vT1}, v{vT0}
        v_permlane16_swap_b32 v{vT0}, v{vT1}
        v_max_f32 v{vT0}, v{vT0}, v{vT1}
        v_mul_f32 v{vT0}, s{sCexp}, v{vT0}""")
        for r in list(range(4, 12)) + list(range(4)): e(f'v_fma_f32 v{vS+r}, v{vS+r}, s{sCexp}, -v{vT0}')
        for r in range(4, 12): e(f'v_exp_f32 v{vS+r}, v{vS+r}')
        PT = R(vP); PM = R(vP + 4, 2)
        e(f"""v_cvt_pk_bf16_f32 v{vP}, v{S0}, v{S0+1}
        v_cvt_pk_bf16_f32 v{vP+1}, v{S0+2}, v{S0+3}
        v_cvt_pk_bf16_f32 v{vP+2}, v{S1}, v{S1+1}
        v_cvt_pk_bf16_f32 v{vP+3}, v{S1+2}, v{S1+3}
        v_exp_f32 v{SM}, v{SM}
        v_exp_f32 v{SM+1}, v{SM+1}
        v_mfma_f32_16x16x32_bf16 {R(vLs)}, {R(vONES)}, {PT}, 0
        v_exp_f32 v{SM+2}, v{SM+2}
        v_exp_f32 v{SM+3}, v{SM+3}
        v_mfma_f32_16x16x32_bf16 {R(vO)}, a[{aVT}:{aVT+3}], {PT}, 0
        v_cvt_pk_bf16_f32 v{vP+4}, v{SM}, v{SM+1}
        v_cvt_pk_bf16_f32 v{vP+5}, v{SM+2}, v{SM+3}
        v_mfma_f32_16x16x32_bf16 {R(vO+4)}, a[{aVT+4}:{aVT+7}], {PT}, 0
        s_waitcnt lgkmcnt(0)
        v_mfma_f32_16x16x16_bf16 {R(vLs)}, {R(vONES,2)}, {PM}, {R(vLs)}""")
        v_assemble()
        e(f"""v_mfma_f32_16x16x16_bf16 {R(vO)}, {R(vVMf,2)}, {PM}, {R(vO)}
        v_rcp_f32 v{vT0}, v{vLs}
        v_mfma_f32_16x16x16_bf16 {R(vO+4)}, {R(vVMf+2,2)}, {PM}, {R(vO+4)}
        v_mov_b32 v{vT1}, v{vT0}""")
        for r in range(4): e(f'v_pk_mul_f32 {R(vO+2*r,2)}, {R(vO+2*r,2)}, v[{vT0}:{vT0+1}]')
        for r in range(4): e(f'v_cvt_pk_bf16_f32 v{vOp+r}, v{vO+2*r}, v{vO+2*r+1}')
        e(f'buffer_store_dwordx4 {R(vOp)}, v{vOst}, {WS}, s{sO_} offen {SF}')
        stamp(5)
        if twin:
            e('s_barrier')
            poison_soffsets()
            e(f'''buffer_store_dwordx2 {R(vNEG1,2)}, v{vXst}, {WS}, s{sB2} offen {SF}
            buffer_store_dwordx4 {R(vNEG1)}, v{vOst}, {WS}, s{sO2} offen {SF}''')
            Lnopf = k.label('nopf')
            e(f'''s_add_u32 s{sT2}, s{sS}, 1
            s_cmp_ge_u32 s{sT2}, {nsteps-1}
            s_cbranch_scc1 {Lnopf}''')
            prefetch(sT2)
            e(Lnopf + ':')
            e(f'''buffer_store_dwordx2 {R(vQK,2)}, v{vKMst}, {WS}, s{sKM} offen {SF}
            buffer_store_dwordx2 {R(vVMf,2)}, v{vVMst}, {WS}, s{sVM} offen {SF}
            buffer_store_dwordx2 {R(vVMf+2,2)}, v{vVMst}, {WS}, s{sVM} offen offset:256 {SF}''')
            stamp(8)
            e(Lb5 + ':')
            e('s_barrier')
            stamp(9)
            stamp_flush()
            e(f'''s_add_u32 s{sS}, s{sS}, 1
            s_branch {Ltop}''')
            e(Lb3 + ':')
            e('s_endpgm')
            for blk in ool:
                for x in blk: e(x)
            return
        e(Lb3 + ':')
        Lnotg2 = k.label('notg2')
        e(f's_barrier\ns_cmp_ge_u32 s{sW}, 2\ns_cbranch_scc1 {Lnotg2}')
        if D2: e(f's_sleep {D2}')
        vO_ = [vOld, vOldb, vOldc]
        oloads = [f'buffer_load_dwordx4 {R(vG2+4*i)}, v{vO_[i//4]}, {WS}, s{sO_} offen offset:{(i%4)*1024} sc1' for i in range(12)]
        for x in oloads: e(x)
        def g2_consume(i):
            e(f'v_mfma_f32_16x16x32_bf16 {R(vD1)}, a[{aW2+8*i}:{aW2+8*i+3}], {R(vG2+4*i)}, ' + ('0' if i == 0 else R(vD1)))
            e(f'v_mfma_f32_16x16x32_bf16 {R(vD2)}, a[{aW2+8*i+4}:{aW2+8*i+7}], {R(vG2+4*i)}, ' + ('0' if i == 0 else R(vD2)))
        prog(12, lambda i: oloads[i], lambda i: [vG2+4*i], g2_consume, cnt=11)
        for r in range(4): e(f'v_add_f32_dpp v{vR+r}, v{vD2+r}, v{vD1+r} row_ror:8 row_mask:0xf bank_mask:0xf')
        e(f'buffer_store_dwordx4 {R(vR)}, v{vPst}, {WS}, s{sPp} offen sc1')
        if DUAL: e(f'buffer_store_dwordx4 {R(vR)}, v{vPst2}, {WS}, s{sPp} offen sc1')
        stamp(7)
        e(f'buffer_store_dwordx4 {R(vNEG1)}, v{vPst}, {WS}, s{sP2} offen sc1')
        if DUAL: e(f'buffer_store_dwordx4 {R(vNEG1)}, v{vPst2}, {WS}, s{sP2} offen sc1')
        e(f's_branch {Lb4}')
        e(Lnotg2 + ':')
        e(f's_cmp_lg_u32 s{sW}, 3\ns_cbranch_scc1 {Lb4}')
        poison_soffsets()
        e(f'''buffer_store_dwordx2 {R(vNEG1,2)}, v{vXst}, {WS}, s{sB2} offen {SF}
        buffer_store_dwordx4 {R(vNEG1)}, v{vOst}, {WS}, s{sO2} offen {SF}''')
        e(Lb4 + ':')
        Lnot2 = k.label('not2')
        e(f's_barrier\ns_cmp_lg_u32 s{sW}, 2\ns_cbranch_scc1 {Lnot2}')
        if D3: e(f's_sleep {D3}')
        ploads = [f'buffer_load_dwordx4 {R(vH3+4*i)}, v{vPld+i}, {WS}, s{sPp} offen sc1' for i in range(8)]
        for x in ploads: e(x)
        def h3_consume(i):
            if i == 0: return
            e(f'v_pk_add_f32 {R(vR,2)}, ' + (R(vH3,2) if i == 1 else R(vR,2)) + f', {R(vH3+4*i,2)}')
            e(f'v_pk_add_f32 {R(vR+2,2)}, ' + (R(vH3+2,2) if i == 1 else R(vR+2,2)) + f', {R(vH3+4*i+2,2)}')
        sec = None
        if DS3 is not None:
            if DS3: e(f's_sleep {DS3}')
            for i, x in enumerate(ploads): e(x.replace(R(vH3+4*i), R(vH3+32+4*i)))
            sec = (None, lambda i: list(range(vH3+4*i, vH3+4*i+4)), lambda i: list(range(vH3+32+4*i, vH3+32+4*i+4)))
        prog(8, lambda i: ploads[i], lambda i: [vH3+4*i], h3_consume, cnt=12, second=sec)
        e(f'''v_cvt_pk_bf16_f32 v{vH3+4}, v{vR}, v{vR+1}
        v_cvt_pk_bf16_f32 v{vH3+5}, v{vR+2}, v{vR+3}
        buffer_store_dwordx2 {R(vH3+4,2)}, v{vMst}, {WS}, s{sE} offen {SF}''')
        stamp(9)
        e(f's_branch {Lb5}')
        e(Lnot2 + ':')
        stamp_flush()
        e(f'''s_cmp_lg_u32 s{sW}, 3
        s_cbranch_scc1 {Lb5}''')
        Lnopf = k.label('nopf')
        e(f'''s_add_u32 s{sT2}, s{sS}, 1
        s_cmp_ge_u32 s{sT2}, {nsteps-1}
        s_cbranch_scc1 {Lnopf}''')
        prefetch(sT2)
        e(Lnopf + ':')
        e(f'''buffer_store_dwordx2 {R(vQK,2)}, v{vKMst}, {WS}, s{sKM} offen {SF}
        buffer_store_dwordx2 {R(vVMf,2)}, v{vVMst}, {WS}, s{sVM} offen {SF}
        buffer_store_dwordx2 {R(vVMf+2,2)}, v{vVMst}, {WS}, s{sVM} offen offset:256 {SF}''')
        e(Lb5 + ':')
        e(f'''s_barrier
        s_add_u32 s{sS}, s{sS}, 1
        s_branch {Ltop}''')
        for blk in ool:
            for x in blk: e(x)
    if TWIN:
        Ltw = k.label('twinf'); Ltw2 = k.label('twins')
        e(f's_cmp_ge_u32 s{sC}, 20\ns_cbranch_scc1 {Ltw}')
        loop('')
        e(Ltw + ':')
        loop('', twin=True)
        e(Lslow + ':')
        e(f's_cmp_ge_u32 s{sC}, 20\ns_cbranch_scc1 {Ltw2}')
        loop('sc1')
        e(Ltw2 + ':')
        loop('sc1', twin=True)
    else:
        loop('')
        e(Lslow + ':')
        loop('sc1')
    e(Lproj + ':')
    if PROJ:
        proj.emit(k, sWS, sX, sC, sW, sTO, Lexit, nsteps, LEAD=PLEAD, census_wait=census_wait, sMODE=sMODE, preread=PREREAD, pre_ot=not OTSC, pace=PACE, spread=SPREAD, prof=(TL is not None and PPROF), tlbw=(TLBW >= 2))
    e(Lexit + ':')
    if TL is not None:
        if PPROF:
            Lsk = k.label('sk3')
            e(f's_cmp_eq_u32 s99, 0x12345\ns_cbranch_scc1 {Lsk}')
            tl(3)
            e(Lsk + ':')
        else: tl(3)
        Lw2 = k.label('notw2')
        e(f'''s_cmp_lg_u32 s{sW}, 2
        s_cbranch_scc1 {Lw2}
        s_and_b32 s94, s{sPM0}, 0xffff
        s_lshl_b32 s96, s{sPM1}, 16
        s_or_b32 s94, s94, s96
        s_mov_b32 s96, s{sXCC}''')
        e(Lw2 + ':')
        e(f'''v_mov_b32 v10, s92
        v_mov_b32 v11, s94
        v_mov_b32 v12, s96
        v_mov_b32 v13, s98
        v_lshrrev_b32 v14, 6, v0
        v_and_b32 v15, 63, v0
        s_lshl_b32 s90, s91, 6
        v_lshlrev_b32 v14, 4, v14
        v_add_u32 v14, s90, v14
        v_cmp_eq_u32 vcc, 0, v15
        v_mov_b32 v15, 0x80000000
        v_cndmask_b32 v14, v15, v14, vcc
        s_mov_b32 s90, {L.STAMP + TL}
        buffer_store_dwordx4 v[10:13], v14, s[4:7], s90 offen
        s_sub_u32 s86, s86, s84
        v_mov_b32 v10, s86
        s_add_u32 s90, s90, 32768
        buffer_store_dword v10, v14, s[4:7], s90 offen''')
    e(Lexit2 + ':')
    e('s_endpgm')
    return k, max(LDS_SIZE, proj.LDS_SIZE if PROJ else 0)
```

```python
import struct
from asmgen import *
import layout as L
OOB = 0x80000000
def fbits(x): return struct.unpack('<I', struct.pack('<f', x))[0]

def gen(name, from_input, prof=None):
    k = Kernel(name, vgpr=248, agpr=0, sgpr=102 if prof is not None else 48); e = k.e; k.prof = prof
    Lx = k.label('exit')
    e(f'''s_cmp_ge_u32 s2, 128
    s_cbranch_scc1 {Lx}
    s_load_dwordx2 s[12:13], s[0:1], 96
    s_load_dwordx2 s[14:15], s[0:1], 0''')
    k.ts(0)
    e(f'''v_lshrrev_b32 v2, 6, v0
    s_nop 0
    v_readfirstlane_b32 s16, v2
    s_waitcnt lgkmcnt(0)
    s_mov_b32 s4, s12
    s_mov_b32 s5, s13
    s_mov_b32 s6, 0x10000000
    s_mov_b32 s7, 0x20000''')
    if from_input:
        e(f's_mov_b32 s8, s14\ns_mov_b32 s9, s15\ns_mov_b32 s10, {2048*1280}\ns_mov_b32 s11, 0x20000\ns_mov_b32 s20, 0')
    else:
        e(f's_mov_b32 s8, s12\ns_mov_b32 s9, s13\ns_mov_b32 s10, 0x10000000\ns_mov_b32 s11, 0x20000\ns_mov_b32 s20, {L.X1}')
    e('s_mov_b32 s19, s2')
    emit(k, '')
    k.ts(2)
    k.ts_flush(3, 's[4:7]', v0=240)
    e(Lx + ':')
    e('s_endpgm')
    return k, 512

def emit(k, LF):
    e = k.e
    srd = 's[4:7]'
    R = lambda b, n=4: f'v[{b}:{b+n-1}]'
    vA, vT0, vT1, vS, vLd, vL16, vXa = 1, 2, 3, 4, 5, 14, 15
    vX = 16
    vF = 36
    e(f'''v_and_b32 v{vT1}, 63, v0
    v_lshlrev_b32 v{vL16}, 4, v{vT1}''')
    e(f'''v_and_b32 v{vT0}, 15, v{vT1}
    v_lshrrev_b32 v{vS}, 4, v{vT1}
    s_lshl_b32 s17, s19, 4
    v_add_u32 v{vXa}, s17, v{vT0}
    v_mul_u32_u24 v{vXa}, 1280, v{vXa}
    v_lshl_add_u32 v{vXa}, v{vS}, 4, v{vXa}
    s_mul_i32 s17, s16, 320
    s_add_u32 s20, s20, s17
    s_add_u32 s21, s17, {L.X1}''')
    e(f'''s_mul_i32 s22, s19, 20
    s_mul_i32 s23, s16, 5
    s_add_u32 s22, s22, s23
    s_lshl_b32 s22, s22, 10
    s_add_u32 s22, s22, {L.PARTO}''')
    XS = 128 * 20 * 1024
    for x in range(8): e(f's_add_u32 s{24+x}, s22, {x*XS}')
    e(f'v_add_u32 v6, 0x1000, v{vL16}')
    for q in range(5): e(f'buffer_load_dwordx4 {R(vX+4*q)}, v{vXa}, s[8:11], s20 offen offset:{q*64}')
    vPp = 80
    for q in range(5):
        for x in range(8):
            r = vPp + 32 * q + 4 * x
            e(f'buffer_load_dwordx4 {R(r)}, v{vL16 if q < 4 else 6}, {srd}, s{24+x} offen offset:{(q%4)*1024} {LF}')
    for q in range(5):
        e(f's_waitcnt vmcnt({8*(4-q) + q})')
        r = vPp + 32 * q; f = vF + 8 * q
        for i in range(4):
            e(f'v_lshlrev_b32 v{f+2*i}, 16, v{r+i}')
            e(f'v_and_b32 v{f+2*i+1}, 0xffff0000, v{r+i}')
        for x in range(1, 8):
            for i in range(4):
                e(f'v_lshlrev_b32 v8, 16, v{r+4*x+i}')
                e(f'v_and_b32 v9, 0xffff0000, v{r+4*x+i}')
                e(f'v_pk_add_f32 {R(f+2*i,2)}, {R(f+2*i,2)}, v[8:9]')
        for i in range(4):
            xr = vX + 4 * q + i
            e(f'''v_cvt_pk_bf16_f32 v8, v{f+2*i}, v{f+2*i+1}
            v_lshlrev_b32 v{f+2*i}, 16, v8
            v_and_b32 v{f+2*i+1}, 0xffff0000, v8
            v_lshlrev_b32 v10, 16, v{xr}
            v_and_b32 v11, 0xffff0000, v{xr}
            v_pk_add_f32 {R(f+2*i,2)}, {R(f+2*i,2)}, v[10:11]
            v_cvt_pk_bf16_f32 v{xr}, v{f+2*i}, v{f+2*i+1}
            v_lshlrev_b32 v{f+2*i}, 16, v{xr}
            v_and_b32 v{f+2*i+1}, 0xffff0000, v{xr}''')
        e(f'buffer_store_dwordx4 {R(vX+4*q)}, v{vXa}, {srd}, s21 offen offset:{q*64} {stf("x1")}')
    e(f'''v_and_b32 v{vT1}, 63, v0
    v_and_b32 v{vT0}, 15, v{vT1}
    v_lshlrev_b32 v{vLd}, 2, v{vT0}
    s_lshl_b32 s17, s16, 6
    v_add_u32 v{vA}, s17, v{vLd}''')
    def reduce_row(off):
        e(f'''v_mov_b32 v{vT0}, v{vS}
        v_permlane32_swap_b32 v{vS}, v{vT0}
        v_add_f32 v{vS}, v{vS}, v{vT0}
        v_mov_b32 v{vT0}, v{vS}
        v_permlane16_swap_b32 v{vS}, v{vT0}
        v_add_f32 v{vS}, v{vS}, v{vT0}
        ds_write_b32 v{vA}, v{vS} offset:{off}
        s_waitcnt lgkmcnt(0)
        s_barrier
        ds_read_b32 v{vS}, v{vLd} offset:{off}
        ds_read_b32 v{vT0}, v{vLd} offset:{off+64}
        ds_read_b32 v{vT1}, v{vLd} offset:{off+128}
        ds_read_b32 v6, v{vLd} offset:{off+192}
        s_waitcnt lgkmcnt(0)
        v_add_f32 v{vS}, v{vS}, v{vT0}
        v_add_f32 v{vT1}, v{vT1}, v6
        v_add_f32 v{vS}, v{vS}, v{vT1}''')
    e(f'v_pk_add_f32 v[6:7], {R(vF,2)}, {R(vF+2,2)}')
    for i in range(2, 20): e(f'v_pk_add_f32 v[6:7], v[6:7], {R(vF+2*i,2)}')
    e(f'v_add_f32 v{vS}, v6, v7')
    reduce_row(0)
    e(f'v_mul_f32 v6, {fbits(-1/640):#x}, v{vS}\nv_mov_b32 v7, v6')
    for i in range(20): e(f'v_pk_add_f32 {R(vF+2*i,2)}, {R(vF+2*i,2)}, v[6:7]')
    e(f'v_pk_mul_f32 v[6:7], {R(vF,2)}, {R(vF,2)}')
    for i in range(1, 20): e(f'v_pk_fma_f32 v[6:7], {R(vF+2*i,2)}, {R(vF+2*i,2)}, v[6:7]')
    e(f'v_add_f32 v{vS}, v6, v7')
    reduce_row(256)
    e(f'''v_mov_b32 v{vT0}, {fbits(1e-5):#x}
    v_fmac_f32 v{vT0}, {fbits(1/640):#x}, v{vS}
    v_rsq_f32 v6, v{vT0}''')
    e('v_mov_b32 v7, v6')
    for i in range(20): e(f'v_pk_mul_f32 {R(vF+2*i,2)}, {R(vF+2*i,2)}, v[6:7]')
    for i in range(20): e(f'v_cvt_pk_bf16_f32 v{vX+i}, v{vF+2*i}, v{vF+2*i+1}')
    e(f'''v_and_b32 v{vT1}, 63, v0
    v_and_b32 v{vT0}, 15, v{vT1}
    v_lshlrev_b32 v{vA}, 4, v{vT0}
    v_bfe_u32 v{vT0}, v{vT1}, 4, 1
    v_lshl_add_u32 v{vA}, v{vT0}, 9, v{vA}
    v_lshrrev_b32 v{vT0}, 5, v{vT1}
    v_lshl_add_u32 v{vA}, v{vT0}, 10, v{vA}
    s_lshr_b32 s17, s19, 1
    s_mul_i32 s17, s17, 40960
    s_and_b32 s18, s19, 1
    s_lshl_b32 s18, s18, 8
    s_add_u32 s17, s17, s18
    s_mul_i32 s18, s16, 10240
    s_add_u32 s17, s17, s18
    s_add_u32 s17, s17, {L.XNB}''')
    for q in range(5):
        if q == 2 or q == 4: e('s_add_u32 s17, s17, 4096')
        e(f'buffer_store_dwordx4 {R(vX+4*q)}, v{vA}, {srd}, s17 offen offset:{(q%2)*2048} {stf("redln")}')
```

```python
import sys; sys.path.insert(0, 'gen')
import prep, ln, rec2 as rec, attn_a, outproj_a, qkv_b, attn_b, fin, redln, layout as L
from asmgen import *
def build(path, rec_kw=None, upto=None, tl=False, prof=False):
    rec_kw = dict(rec_kw or {}); FUSE = rec_kw.pop('FUSE', 0)
    assert L.RING == 64 or rec_kw.get('TWIN', rec.TWIN_DEFAULT), 'ring buffers need the in-kernel token attention'
    P = (lambda o: o) if prof else (lambda o: None)
    if prof == 'cyc': Kernel.tsi = 's_memtime'
    rec_kw = {} if rec_kw is None else rec_kw
    kp, nwg, lds_p = prep.gen('prep_kernel')
    kl2, lds_ln = ln.gen('ln2_kernel', False)
    ka, lds_a = rec.gen('reca_kernel', **rec_kw, **(dict(TL=0) if tl else {}))
    ka2 = rec.gen('reca2_kernel', **rec_kw, TL=65536)[0] if tl else None
    kf, lds_f = fin.gen('fin_kernel', prof=P(0), twin=bool(rec_kw.get('TWIN', rec.TWIN_DEFAULT)), fuse=FUSE)
    kr1, lds_r = redln.gen('redln1_kernel', True, prof=P(262144)); kr2, _ = redln.gen('redln2_kernel', False)
    kq, lds_q = qkv_b.gen('qkvb_kernel', prof=P(65536)); kab, _ = attn_b.gen('attnb_kernel', prof=P(131072))
    kb1 = outproj_a.gen('outb1_kernel', False, nk=32, wbase=L.WB2, abase=L.OB2, prof=P(196608))
    kb2 = outproj_a.gen('outb2_kernel', False, nk=32, wbase=L.WB2, abase=L.OB2, out_to_dout=True)
    B = (256, 1, 1); G = lambda n: (n, 1, 1); lo = outproj_a.LDS_SIZE
    launches = [('prep_kernel', G(nwg), B, lds_p)]
    for layer in range(2):
        launches += ([('ln2_kernel', G(128), B, lds_ln)] if layer else []) + [('reca2_kernel' if (tl and layer) else 'reca_kernel', G(256), B, lds_a), ('fin_kernel', G(256), B, lds_f)] + ([] if FUSE else [('redln1_kernel' if layer == 0 else 'redln2_kernel', G(128), B, lds_r)]) + [ ('qkvb_kernel', G(256), B, lds_q), ('attnb_kernel', G(256), B, 0),
                     ('outb1_kernel' if layer == 0 else 'outb2_kernel', G(256), B, lo)]
    txt = build_file(launches, [kp, kl2, ka, kf] + ([] if FUSE else [kr1, kr2]) + [kq, kab, kb1, kb2] + ([ka2] if tl else []))
    open(path, 'w').write(txt)
    print('written', path, len(txt))
if __name__ == '__main__':
    kw = {}
    for a in sys.argv[2:]:
        if '=' in a:
            x, y = a.split('='); kw[x] = int(y)
    build(sys.argv[1] if len(sys.argv) > 1 else '/code/' + NAME + '.s', rec_kw=kw, tl='tl' in sys.argv, prof=('cyc' if 'cyc' in sys.argv else 'prof' in sys.argv))
```

```python
import sys; sys.path.insert(0, 'gen')
import prep, ln, rec2 as rec, attn_a, outproj_a, qkv_b, attn_b, fin, redln, layout as L
from asmgen import *
def build(path, rec_kw=None, upto=None, tl=False, prof=False):
    rec_kw = dict(rec_kw or {}); FUSE = rec_kw.pop('FUSE', 0); PNT = rec_kw.pop('PNT', 2)
    import asmgen
    SB = rec_kw.pop('STF', 255)
    asmgen.STF.clear()
    for i, nm in enumerate(['fin', 'redln', 'qkvb', 'attnb', 'ln', 'pois', 'x1', 'outb']):
        if SB >> i & 1: asmgen.STF[nm] = 'sc1'
    assert L.RING == 64 or rec_kw.get('TWIN', rec.TWIN_DEFAULT), 'ring buffers need the in-kernel token attention'
    P = (lambda o: o) if prof else (lambda o: None)
    if prof == 'cyc': Kernel.tsi = 's_memtime'
    rec_kw = {} if rec_kw is None else rec_kw
    kp, nwg, lds_p = prep.gen('prep_kernel', NT={0: '', 1: 'nt', 2: 'sc1', 3: 'sc0 sc1', 4: 'sc1 nt'}[PNT])
    kl2, lds_ln = ln.gen('ln2_kernel', False)
    ka, lds_a = rec.gen('reca_kernel', **rec_kw, **(dict(TL=0) if tl else {}))
    ka2 = rec.gen('reca2_kernel', **rec_kw, TL=65536)[0] if tl else None
    kf, lds_f = fin.gen('fin_kernel', prof=P(0), twin=bool(rec_kw.get('TWIN', rec.TWIN_DEFAULT)), fuse=FUSE)
    kr1, lds_r = redln.gen('redln1_kernel', True, prof=P(262144)); kr2, _ = redln.gen('redln2_kernel', False)
    kq, lds_q = qkv_b.gen('qkvb_kernel', prof=P(65536)); kab, _ = attn_b.gen('attnb_kernel', prof=P(131072))
    kb1 = outproj_a.gen('outb1_kernel', False, nk=32, wbase=L.WB2, abase=L.OB2, prof=P(196608))
    kb2 = outproj_a.gen('outb2_kernel', False, nk=32, wbase=L.WB2, abase=L.OB2, out_to_dout=True)
    B = (256, 1, 1); G = lambda n: (n, 1, 1); lo = outproj_a.LDS_SIZE
    launches = [('prep_kernel', G(nwg), B, lds_p)]
    for layer in range(2):
        launches += ([('ln2_kernel', G(128), B, lds_ln)] if layer else []) + [('reca2_kernel' if (tl and layer) else 'reca_kernel', G(256), B, lds_a), ('fin_kernel', G(256), B, lds_f)] + ([] if FUSE else [('redln1_kernel' if layer == 0 else 'redln2_kernel', G(128), B, lds_r)]) + [ ('qkvb_kernel', G(256), B, lds_q), ('attnb_kernel', G(256), B, 0),
                     ('outb1_kernel' if layer == 0 else 'outb2_kernel', G(256), B, lo)]
    txt = build_file(launches, [kp, kl2, ka, kf] + ([] if FUSE else [kr1, kr2]) + [kq, kab, kb1, kb2] + ([ka2] if tl else []))
    open(path, 'w').write(txt)
    print('written', path, len(txt))
if __name__ == '__main__':
    kw = {}
    for a in sys.argv[2:]:
        if '=' in a:
            x, y = a.split('='); kw[x] = int(y)
    build(sys.argv[1] if len(sys.argv) > 1 else '/code/' + NAME + '.s', rec_kw=kw, tl='tl' in sys.argv, prof=('cyc' if 'cyc' in sys.argv else 'prof' in sys.argv))
```

```python
import struct
from asmgen import *
import layout as L
def fbits(x): return struct.unpack('<I', struct.pack('<f', x))[0]

def gen(name='attnb_kernel', force_fallback=False, prof=None):
    k = Kernel(name, vgpr=200, agpr=0, sgpr=102 if prof is not None else 48); e = k.e; k.prof = prof
    srd = 's[4:7]'
    vL16, vT0, vT1, vT2 = 1, 2, 3, 4
    vQ = 8
    vC = 24
    vO = 56
    vS = 88
    vP = 120
    vKV = 136
    R = lambda b, n=4: f'v[{b}:{b+n-1}]'
    Lx = k.label('exit')
    e(f'''s_cmp_ge_u32 s2, 256
    s_cbranch_scc1 {Lx}
    s_load_dwordx2 s[12:13], s[0:1], 96''')
    k.ts(0)
    e(f'''v_lshrrev_b32 v{vT0}, 6, v0
    v_and_b32 v{vT1}, 63, v0
    s_nop 0
    v_readfirstlane_b32 s16, v{vT0}
    v_lshlrev_b32 v{vL16}, 4, v{vT1}
    s_and_b32 s17, s2, 7
    s_lshl_b32 s17, s17, 2
    s_lshr_b32 s18, s2, 3
    s_and_b32 s19, s18, 3
    s_add_u32 s17, s17, s19
    s_lshr_b32 s18, s18, 2
    s_waitcnt lgkmcnt(0)
    s_mov_b32 s4, s12
    s_mov_b32 s5, s13
    s_mov_b32 s6, 0x10000000
    s_mov_b32 s7, 0x20000
    s_lshl_b32 s20, s17, 17
    s_add_u32 s21, s20, {L.KB}
    s_add_u32 s22, s20, {L.VB}
    s_lshl_b32 s23, s18, 3
    s_lshl_b32 s24, s16, 1
    s_add_u32 s23, s23, s24
    s_lshl_b32 s24, s23, 11
    s_add_u32 s24, s24, s20
    s_add_u32 s24, s24, {L.QB}''')
    for q in range(4):
        e(f'buffer_load_dwordx4 {R(vQ+4*q)}, v{vL16}, {srd}, s24 offen offset:{q*1024}')
    def kvload(slot, sK, sV):
        b = vKV + 16 * slot
        e(f'''buffer_load_dwordx4 {R(b)}, v{vL16}, {srd}, s{sK} offen
        buffer_load_dwordx4 {R(b+4)}, v{vL16}, {srd}, s{sK} offen offset:1024
        buffer_load_dwordx4 {R(b+8)}, v{vL16}, {srd}, s{sV} offen
        buffer_load_dwordx4 {R(b+12)}, v{vL16}, {srd}, s{sV} offen offset:1024
        s_add_u32 s{sK}, s{sK}, 2048
        s_add_u32 s{sV}, s{sV}, 2048''')
    def smfma(qt, slot, cin):
        b = vKV + 16 * slot; s = vS + 16 * qt
        e(f'v_mfma_f32_32x32x16_bf16 {R(s,16)}, {R(b)}, {R(vQ+8*qt)}, {cin}')
        e(f'v_mfma_f32_32x32x16_bf16 {R(s,16)}, {R(b+4)}, {R(vQ+8*qt+4)}, {R(s,16)}')
    def rowmax(qt, dst):
        s = vS + 16 * qt
        e(f'v_max3_f32 v{dst}, v{s}, v{s+1}, v{s+2}')
        for i in range(3, 15, 2): e(f'v_max3_f32 v{dst}, v{dst}, v{s+i}, v{s+i+1}')
        e(f'v_max_f32 v{dst}, v{dst}, v{s+15}')
    def xhalfmax(dst):
        e(f'''v_mov_b32 v{vT2}, v{dst}
        v_permlane32_swap_b32 v{dst}, v{vT2}
        v_max_f32 v{dst}, v{dst}, v{vT2}''')
    def setC(qt, m):
        for i in range(16): e(f'v_sub_f32 v{vC+16*qt+i}, 0, v{m}')
    e(f's_mov_b32 s25, s21\ns_mov_b32 s26, s22')
    kvload(0, 25, 26)
    e('s_waitcnt vmcnt(0)')
    for qt in range(2): smfma(qt, 0, '0')
    for qt in range(2):
        rowmax(qt, vT0 + qt); xhalfmax(vT0 + qt); setC(qt, vT0 + qt)
    k.ts(1)
    Lmain = k.label('main'); Lloop = k.label('loop'); Lfb = k.label('fb'); Ldone = k.label('done')
    e('s_mov_b32 s28, 0')
    e(Lmain + ':')
    e(f's_mov_b32 s25, s21\ns_mov_b32 s26, s22')
    kvload(0, 25, 26); kvload(1, 25, 26)
    for i in range(32): e(f'v_mov_b32 v{vO+i}, 0')
    def smf(qt, slot, part):
        b = vKV + 16 * slot; s_ = vS + 16 * qt
        if part == 0: e(f'v_mfma_f32_32x32x16_bf16 {R(s_,16)}, {R(b)}, {R(vQ+8*qt)}, {R(vC+16*qt,16)}')
        else: e(f'v_mfma_f32_32x32x16_bf16 {R(s_,16)}, {R(b+4)}, {R(vQ+8*qt+4)}, {R(s_,16)}')
    def pvm(qt, slot, part):
        b = vKV + 16 * slot; o = vO + 16 * qt; p = vP + 8 * qt
        e(f'v_mfma_f32_32x32x16_bf16 {R(o,16)}, {R(b+8+4*part)}, {R(p+4*part)}, {R(o,16)}')
    pending = [None]
    def half(qt, slot, nq, nslot):
        s_ = vS + 16 * qt; p = vP + 8 * qt
        ex = lambda i: e(f'v_exp_f32 v{s_+i}, v{s_+i}')
        cv = lambda i: e(f'v_cvt_pk_bf16_f32 v{p+i}, v{s_+2*i}, v{s_+2*i+1}')
        for i in range(4): ex(i)
        if pending[0] is not None: pvm(*pending[0], 1)
        for i in range(4, 8): ex(i)
        if nq is not None: smf(nq, nslot, 0)
        for i in range(4): cv(i)
        ex(8); ex(9)
        if nq is not None: smf(nq, nslot, 1)
        for i in range(10, 14): ex(i)
        pvm(qt, slot, 0)
        ex(14); ex(15)
        for i in range(4, 8): cv(i)
        pending[0] = (qt, slot)
    def tile(slot, load_slot, last=False, nwait=None):
        half(0, slot, 1, slot)
        if load_slot is not None: kvload(load_slot, 25, 26)
        if not last:
            e(f's_waitcnt vmcnt({nwait})')
            half(1, slot, 0, (slot + 1) % 3)
        else:
            half(1, slot, None, None)
    e('s_waitcnt vmcnt(4)')
    smf(0, 0, 0); smf(0, 0, 1)
    tile(0, 2, nwait=4)
    e('s_mov_b32 s27, 0')
    e(Lloop + ':')
    for slot in (1, 2, 0): tile(slot, (slot + 2) % 3, nwait=4)
    e(f's_add_u32 s27, s27, 1\ns_cmp_lt_u32 s27, 20\ns_cbranch_scc1 {Lloop}')
    tile(1, 0, nwait=4)
    tile(2, None, nwait=0)
    tile(0, None, last=True)
    pvm(*pending[0], 1)
    k.ts(2)
    for qt in range(2):
        l = vT0 + qt
        e(f'''v_mov_b32 v{l}, v{vO+16*qt+8}
        v_mov_b32 v{vT2}, v{l}
        v_permlane32_swap_b32 v{vT2}, v{l}''')
    e(f'''s_cmp_eq_u32 s28, 1
    s_cbranch_scc1 {Ldone}
    v_max_f32 v{vT2}, v{vT0}, v{vT1}
    v_cmp_nge_f32 vcc, {fbits(2.0**30):#x}, v{vT2}
    v_cmp_u_f32 s[30:31], v{vT0}, v{vT1}
    s_or_b64 s[32:33], vcc, s[30:31]''')
    e('s_movk_i32 s34, 0x207')
    for i in range(32):
        e(f'v_cmp_class_f32 vcc, v{vO+i}, s34')
        e('s_or_b64 s[32:33], s[32:33], vcc')
    e('s_mov_b64 vcc, s[32:33]')
    if force_fallback: e('s_mov_b64 vcc, -1')
    e(f's_cbranch_vccz {Ldone}')
    e(f'''s_mov_b32 s25, s21
    s_mov_b32 s27, 0
    v_mov_b32 v{vP}, 0xff800000
    v_mov_b32 v{vP+1}, 0xff800000''')
    e(Lfb + ':')
    e(f'''buffer_load_dwordx4 {R(vKV)}, v{vL16}, {srd}, s25 offen
    buffer_load_dwordx4 {R(vKV+4)}, v{vL16}, {srd}, s25 offen offset:1024
    s_add_u32 s25, s25, 2048
    s_waitcnt vmcnt(0)''')
    for qt in range(2): smfma(qt, 0, '0')
    for qt in range(2):
        rowmax(qt, vT0 + qt)
        e(f'v_max_f32 v{vP+qt}, v{vP+qt}, v{vT0+qt}')
    e(f's_add_u32 s27, s27, 1\ns_cmp_lt_u32 s27, 64\ns_cbranch_scc1 {Lfb}')
    for qt in range(2):
        xhalfmax(vP + qt); setC(qt, vP + qt)
    e(f's_mov_b32 s28, 1\ns_branch {Lmain}')
    e(Ldone + ':')
    a0, a1, a2, tq, th, tc, tt = vKV, vKV + 1, vKV + 2, vKV + 3, vKV + 4, vKV + 5, vKV + 6
    e(f'''v_and_b32 v{tq}, 63, v0
    v_lshrrev_b32 v{th}, 5, v{tq}
    v_and_b32 v{tt}, 15, v{tq}
    v_lshlrev_b32 v{tt}, 4, v{tt}
    v_bfe_u32 v{tc}, v{tq}, 4, 1
    v_mul_u32_u24 v{tc}, 20480, v{tc}
    v_add_u32 v{tt}, v{tt}, v{tc}
    s_mul_i32 s25, s17, 20
    v_lshlrev_b32 v{th}, 2, v{th}''')
    for (dst, add) in ((a0, 0), (a1, 8), (a2, 16)):
        e(f'''v_add_u32 v{tc}, s25, v{th}
        v_add_u32 v{tc}, {add}, v{tc}
        v_lshrrev_b32 v{dst}, 5, v{tc}
        v_lshlrev_b32 v{dst}, 10, v{dst}
        v_bfe_u32 v{tq}, v{tc}, 3, 2
        v_lshl_add_u32 v{dst}, v{tq}, 8, v{dst}
        v_bfe_u32 v{tq}, v{tc}, 2, 1
        v_lshl_add_u32 v{dst}, v{tq}, 3, v{dst}
        v_add_u32 v{dst}, v{dst}, v{tt}''')
    e(f'''v_cmp_eq_u32 vcc, 0, v{th}
    v_mov_b32 v{tq}, 0x80000000
    v_cndmask_b32 v{a2}, v{tq}, v{a2}, vcc
    s_mul_i32 s24, s23, 40960
    s_add_u32 s24, s24, {L.OB2}''')
    for qt in range(2):
        o = vO + 16 * qt; p = vP + 8 * qt
        e(f'v_rcp_f32 v{vT2}, v{vT0+qt}')
        for i in range(12): e(f'v_mul_f32 v{o+i}, v{o+i}, v{vT2}')
        for i in range(6): e(f'v_cvt_pk_bf16_f32 v{p+i}, v{o+2*i}, v{o+2*i+1}')
        if qt: e('s_add_u32 s24, s24, 40960')
        e(f'buffer_store_dwordx2 {R(p,2)}, v{a0}, {srd}, s24 offen {stf("attnb")}')
        e(f'buffer_store_dwordx2 {R(p+2,2)}, v{a1}, {srd}, s24 offen {stf("attnb")}')
        e(f'buffer_store_dwordx2 {R(p+4,2)}, v{a2}, {srd}, s24 offen {stf("attnb")}')
    k.ts(3)
    k.ts_flush(4, srd, v0=190)
    e(Lx + ':')
    e('s_endpgm')
    return k, 0
```

```python
import math, struct
from asmgen import *
import layout as L
import redln
OOB = 0x80000000
LDS_SIZE = 96 * 1024

def gen(name='fin_kernel', prof=None, twin=False, fuse=False):
    k = Kernel(name, vgpr=256, agpr=240, sgpr=102 if prof is not None else 64); e = k.e; k.prof = prof
    srd = 's[4:7]'
    R = lambda b, n=4: f'v[{b}:{b+n-1}]'
    vL16, vL16b, vL16c, vKM, vVM, vT0, vT1, vT2 = 1, 2, 3, 4, 5, 6, 7, 8
    vOOB, vLw, vLw2 = 9, 240, 241
    vCM, vCD, vONES = 12, 16, 20
    vS, vP, vLs, vO, vOp = 24, 44, 54, 64, 80
    vQ, vK, vKm = 88, 136, 184
    vV, vVm = 88, 136
    Lx = k.label('exit')
    cexp = (192 ** -0.5) * math.log2(math.e)
    cbits = struct.unpack('<I', struct.pack('<f', cexp))[0]
    e(f'''s_cmp_ge_u32 s2, 256
    s_cbranch_scc1 {Lx}
    s_load_dwordx2 s[8:9], s[0:1], 96''')
    k.ts(0)
    e(f'''v_lshrrev_b32 v{vT0}, 6, v0
    v_and_b32 v{vT1}, 63, v0
    s_and_b32 s13, s2, 7
    v_readfirstlane_b32 s12, v{vT0}
    v_lshlrev_b32 v{vL16}, 4, v{vT1}
    v_add_u32 v{vL16b}, 0x1000, v{vL16}
    v_add_u32 v{vL16c}, 0x2000, v{vL16}
    s_lshr_b32 s14, s2, 3
    s_lshl_b32 s15, s13, 2
    s_add_u32 s15, s15, s12
    s_waitcnt lgkmcnt(0)
    s_mov_b32 s4, s8
    s_mov_b32 s5, s9
    s_mov_b32 s6, 0x10000000
    s_mov_b32 s7, 0x20000
    s_mov_b32 s27, {cbits:#x}''')
    i16, g = vT0, vT2
    e(f'''v_and_b32 v{i16}, 15, v{vT1}
    v_lshrrev_b32 v{g}, 4, v{vT1}
    v_mov_b32 v{vOOB}, {OOB:#x}
    v_lshlrev_b32 v10, 4, v{i16}
    v_lshl_add_u32 v10, v{g}, 7, v10
    v_cmp_gt_u32 vcc, 8, v{i16}
    v_cndmask_b32 v{vKM}, v{vOOB}, v10, vcc
    v_lshlrev_b32 v10, 3, v{vT1}
    v_cmp_gt_u32 vcc, 32, v{vT1}
    v_cndmask_b32 v{vVM}, v{vOOB}, v10, vcc
    v_mov_b32 v10, 0xf149f2ca
    v_cmp_le_u32 vcc, 2, v{g}
    v_cndmask_b32 v{vCM}, 0, v10, vcc
    v_mov_b32 v{vCM+1}, v{vCM}
    v_mov_b32 v{vCM+2}, v{vCM}
    v_mov_b32 v{vCM+3}, v{vCM}
    v_lshlrev_b32 v11, 2, v{g}''')
    for r in range(4):
        e(f'''v_add_u32 v{vT1}, {r}, v11
        v_cmp_gt_u32 vcc, v{vT1}, v{i16}
        v_cndmask_b32 v{vCD+r}, 0, v10, vcc''')
    for r in range(4): e(f'v_mov_b32 v{vONES+r}, 0x3f803f80')
    e(f'''s_mul_i32 s16, s12, 6144
    v_add_u32 v{vLw}, s16, v{vL16}
    v_add_u32 v{vLw2}, {2*24576}, v{vLw}''')
    vLs_ = [vL16, vL16b, vL16c]
    SM0, S00, SM1, S10, S11 = vS, vS + 4, vS + 8, vS + 12, vS + 16
    PM0, PT0, PM1, PT1 = vP, vP + 2, vP + 4, vP + 6
    L0, L1 = vLs + 2, vLs + 6
    def softmax(regs, mx, t):
        e(f'v_max3_f32 v{mx}, v{regs[0]}, v{regs[1]}, v{regs[2]}')
        r = regs[3:]
        while r:
            if len(r) >= 2: e(f'v_max3_f32 v{mx}, v{mx}, v{r[0]}, v{r[1]}'); r = r[2:]
            else: e(f'v_max_f32 v{mx}, v{mx}, v{r[0]}'); r = r[1:]
        e(f'''v_mov_b32 v{t}, v{mx}
        v_permlane32_swap_b32 v{mx}, v{t}
        v_max_f32 v{mx}, v{mx}, v{t}
        v_mov_b32 v{t}, v{mx}
        v_permlane16_swap_b32 v{mx}, v{t}
        v_max_f32 v{mx}, v{mx}, v{t}
        v_mul_f32 v{mx}, s27, v{mx}''')
        for x in regs: e(f'v_fma_f32 v{x}, v{x}, s27, -v{mx}')
        for x in regs: e(f'v_exp_f32 v{x}, v{x}')
    e(f'''s_mul_i32 s16, s12, 10
    s_mul_i32 s16, s16, 192
    s_mul_i32 s17, s13, 24
    s_add_u32 s16, s16, s17
    s_lshl_b32 s16, s16, 10
    s_add_u32 s16, s16, {L.WOP}''')
    for i in range(10): e(f's_add_u32 s{30+i}, s16, {i*192*1024}')
    Lp2 = k.label('phase2'); Ldma = k.label('odma')
    if twin: e(f's_cmp_lt_u32 s14, 30\ns_cbranch_scc1 {Ldma}')
    AR = lambda b_, n=4: f'a[{b_}:{b_+n-1}]'
    def seg_offsets(seg, dQ, dK, dV, dKM, dVM):
        e(f'''s_lshl_b32 s17, s14, 1
        s_add_u32 s17, s17, {seg}
        s_and_b32 s17, s17, {L.RING-1}
        s_lshl_b32 s16, s15, {L.RL}
        s_add_u32 s16, s16, s17
        s_mul_i32 s16, s16, 12288
        s_add_u32 s{dQ}, s16, {L.QT}
        s_add_u32 s{dK}, s16, {L.KT}
        s_add_u32 s{dV}, s16, {L.VT}
        s_lshl_b32 s17, s17, 5
        s_add_u32 s17, s17, s15
        s_mul_i32 s17, s17, 3072
        s_add_u32 s{dKM}, s17, {L.KM}
        s_add_u32 s{dVM}, s17, {L.VM}''')
    seg_offsets(0, 20, 21, 22, 23, 24)
    seg_offsets(1, 40, 41, 42, 43, 44)
    for i in range(12): e(f'buffer_load_dwordx4 {R(vK+4*i)}, v{vLs_[i//4]}, {srd}, s21 offen offset:{(i%4)*1024}')
    for j in range(6): e(f'buffer_load_dwordx4 {R(vKm+4*j)}, v{vKM}, {srd}, s23 offen offset:{j*512}')
    for i in range(12): e(f'buffer_load_dwordx4 {R(vQ+4*i)}, v{vLs_[i//4]}, {srd}, s20 offen offset:{(i%4)*1024}')
    for i in range(12): e(f'buffer_load_dwordx4 {AR(4*i)}, v{vLs_[i//4]}, {srd}, s41 offen offset:{(i%4)*1024}')
    for j in range(6): e(f'buffer_load_dwordx4 {AR(48+4*j)}, v{vKM}, {srd}, s43 offen offset:{j*512}')
    for i in range(12): e(f'buffer_load_dwordx4 {AR(72+4*i)}, v{vLs_[i//4]}, {srd}, s40 offen offset:{(i%4)*1024}')
    for seg in range(2):
        for j in range(6):
            if seg == 0:
                e(f's_waitcnt vmcnt({35-j})')
                q0 = R(vQ + 4 * j); q1 = R(vQ + 24 + 4 * j); k0 = R(vK + 4 * j); k1 = R(vK + 24 + 4 * j); km = R(vKm + 4 * j)
            else:
                q0 = AR(72 + 4 * j); q1 = AR(72 + 24 + 4 * j); k0 = AR(4 * j); k1 = AR(24 + 4 * j); km = AR(48 + 4 * j)
            f_ = j == 0
            e(f'v_mfma_f32_16x16x32_bf16 {R(SM0)}, {km}, {q0}, {R(vCM) if f_ else R(SM0)}')
            e(f'v_mfma_f32_16x16x32_bf16 {R(S00)}, {k0}, {q0}, {R(vCD) if f_ else R(S00)}')
            e(f'v_mfma_f32_16x16x32_bf16 {R(SM1)}, {km}, {q1}, {R(vCM) if f_ else R(SM1)}')
            e(f'v_mfma_f32_16x16x32_bf16 {R(S10)}, {k0}, {q1}, ' + ('0' if f_ else R(S10)))
            e(f'v_mfma_f32_16x16x32_bf16 {R(S11)}, {k1}, {q1}, {R(vCD) if f_ else R(S11)}')
        if k.prof is not None: k.ts(5 + 3*seg)
        sV, sVM_ = (22, 24) if seg == 0 else (42, 44)
        for i in range(12): e(f'buffer_load_dwordx4 {R(vV+4*i)}, v{vLs_[i//4]}, {srd}, s{sV} offen offset:{(i%4)*1024}')
        for i in range(12): e(f'buffer_load_dwordx2 {R(vVm+2*i,2)}, v{vVM}, {srd}, s{sVM_} offen offset:{i*256}')
        softmax(list(range(SM0, SM0 + 8)), vT0, vT1)
        softmax(list(range(SM1, SM1 + 12)), vT2, 10)
        for (dst, src) in ((PM0, SM0), (PT0, S00), (PM1, SM1), (PT1, S10), (PT1 + 2, S11)):
            e(f'v_cvt_pk_bf16_f32 v{dst}, v{src}, v{src+1}')
            e(f'v_cvt_pk_bf16_f32 v{dst+1}, v{src+2}, v{src+3}')
        e(f'''v_mfma_f32_16x16x16_bf16 {R(L0)}, {R(vONES,2)}, {R(PM0,2)}, 0
        v_mfma_f32_16x16x16_bf16 {R(L1)}, {R(vONES,2)}, {R(PM1,2)}, 0
        v_mfma_f32_16x16x16_bf16 {R(L0)}, {R(vONES,2)}, {R(PT0,2)}, {R(L0)}
        v_mfma_f32_16x16x32_bf16 {R(L1)}, {R(vONES)}, {R(PT1)}, {R(L1)}
        v_rcp_f32 v10, v{L0}
        v_rcp_f32 v11, v{L1}''')
        if k.prof is not None: k.ts(6 + 3*seg)
        e('s_waitcnt vmcnt(0)')
        if seg == 1:
            for kk in range(2):
                for i in range(10):
                    b = 160 + 40 * kk + 4 * i
                    e(f'buffer_load_dwordx4 a[{b}:{b+3}], v{vL16}, {srd}, s{30+i} offen offset:{kk*1024}')
        for j in range(6):
            for t in range(2):
                et = 2 * j + t
                o0 = vO + 8 * t; o1 = o0 + 4
                vt = vV + 4 * et; vm = vVm + 2 * et
                e(f'v_mfma_f32_16x16x16_bf16 {R(o0)}, {R(vm,2)}, {R(PM0,2)}, 0')
                e(f'v_mfma_f32_16x16x16_bf16 {R(o1)}, {R(vm,2)}, {R(PM1,2)}, 0')
                e(f'v_mfma_f32_16x16x16_bf16 {R(o0)}, {R(vt,2)}, {R(PT0,2)}, {R(o0)}')
                e(f'v_mfma_f32_16x16x32_bf16 {R(o1)}, {R(vt)}, {R(PT1)}, {R(o1)}')
            for Tq in range(2):
                inv = 10 + Tq
                p = vOp + 4 * Tq
                for t in range(2):
                    o = vO + 8 * t + 4 * Tq
                    for r in range(4): e(f'v_mul_f32 v{o+r}, v{o+r}, v{inv}')
                    e(f'v_cvt_pk_bf16_f32 v{p+2*t}, v{o}, v{o+1}')
                    e(f'v_cvt_pk_bf16_f32 v{p+2*t+1}, v{o+2}, v{o+3}')
                Tt = 2 * seg + Tq
                base = vLw if Tt < 2 else vLw2
                e(f'ds_write_b128 v{base}, {R(p)} offset:{(Tt % 2)*24576 + j*1024}')
    if k.prof is not None: k.ts(10)
    if twin:
        e(f's_branch {Lp2}')
        e(Ldma + ':')
        e(f'''s_lshl_b32 s16, s14, 2
        s_add_u32 s16, s16, s12
        s_mul_i32 s16, s16, 192
        s_mul_i32 s17, s13, 24
        s_add_u32 s16, s16, s17
        s_lshl_b32 s16, s16, 10
        s_add_u32 s16, s16, {L.OT}
        s_mul_i32 s17, s12, 24576''')
        for grp in range(6):
            e(f's_add_u32 m0, s17, {grp*4096}\ns_nop 0')
            for q in range(4): e(f'buffer_load_dwordx4 v{vL16}, {srd}, s16 offen offset:{q*1024} lds')
            e('s_add_u32 s16, s16, 4096')
        for kk in range(2):
            for i in range(10):
                b = 160 + 40 * kk + 4 * i
                e(f'buffer_load_dwordx4 a[{b}:{b+3}], v{vL16}, {srd}, s{30+i} offen offset:{kk*1024}')
        e('s_waitcnt vmcnt(20)')
        e(Lp2 + ':')
    k.ts(1)
    vA = 24
    vB = 144
    NRING = 4
    vA = 24;
    vB = 184
    def areg(kk, i):
        if kk < 2: return f'a[{160+40*kk+4*i}:{160+40*kk+4*i+3}]'
        return R(vA + 40 * (kk % NRING) + 4 * i)
    def wl(kk):
        for i in range(10):
            e(f'buffer_load_dwordx4 {areg(kk, i)}, v{vLs_[0]}, {srd}, s{30+i} offen offset:{(kk%4)*1024}')
        if kk % 4 == 3:
            for i in range(10): e(f's_add_u32 s{30+i}, s{30+i}, 4096')
    def bl(kk):
        for T in range(4):
            b = vB + 16 * (kk % 2) + 4 * T
            e(f'ds_read_b128 {R(b)}, v{vL16 if T < 2 else vT0} offset:{(T % 2)*24576 + kk*1024}')
    e('s_waitcnt lgkmcnt(0)')
    wl(2); wl(3)
    e(f'v_add_u32 v{vT0}, {2*24576}, v{vL16}')
    e('s_barrier')
    bl(0)
    for kk in range(24):
        e(f's_waitcnt vmcnt({10*min(3, 23-kk)})')
        if kk + 1 < 24: bl(kk + 1); e('s_waitcnt lgkmcnt(4)')
        else: e('s_waitcnt lgkmcnt(0)')
        for i in range(10):
            a = areg(kk, i)
            for T in range(4):
                acc = f'a[{16*i+4*T}:{16*i+4*T+3}]'
                e(f'v_mfma_f32_16x16x32_bf16 {acc}, {a}, {R(vB + 16*(kk%2) + 4*T)}, ' + ('0' if kk == 0 else acc))
        if kk + 4 < 24: wl(kk + 4)
    k.ts(2)
    e(f'''s_lshl_b32 s16, s13, 7
    s_lshl_b32 s17, s14, 2
    s_add_u32 s16, s16, s17
    s_mul_i32 s16, s16, 20
    s_mul_i32 s17, s12, 5
    s_add_u32 s16, s16, s17
    s_lshl_b32 s16, s16, 10
    s_add_u32 s16, s16, {L.PARTO}
    s_nop 7''')
    n = 0
    for T in range(4):
        e(f's_add_u32 s17, s16, {T*20480}')
        for p in range(5):
            t = 24 + 12 * (n % 4); n += 1
            for q in range(8):
                src = 16 * (2 * p + q // 4) + 4 * T + q % 4
                e(f'v_accvgpr_read_b32 v{t+q}, a{src}')
            for q in range(4): e(f'v_cvt_pk_bf16_f32 v{t+8+q}, v{t+2*q}, v{t+2*q+1}')
            if p == 4: e('s_add_u32 s17, s17, 4096')
            e(f'buffer_store_dwordx4 {R(t+8)}, v{vL16}, {srd}, s17 offen offset:{(p%4)*1024} {"sc1" if fuse else stf("fin")}')
    k.ts(3)
    if fuse:
        Lw = k.label('w0'); Lp = k.label('cpoll'); Lpo = k.label('cok'); Lnr = k.label('nored')
        e(f'''s_load_dwordx2 s[40:41], s[0:1], 88
        s_waitcnt vmcnt(0) lgkmcnt(0)
        s_barrier
        s_mov_b32 s44, s40
        s_mov_b32 s45, s41
        s_mov_b32 s46, 256
        s_mov_b32 s47, 0x20000
        s_cmp_lg_u32 s12, 0
        s_cbranch_scc1 {Lw}
        v_and_b32 v2, 63, v0
        s_lshl_b32 s16, s14, 2
        v_mov_b32 v3, s16
        v_mov_b32 v4, {OOB:#x}
        v_cmp_eq_u32 vcc, 0, v2
        v_cndmask_b32 v4, v4, v3, vcc
        v_mov_b32 v5, 1
        buffer_atomic_add v5, v4, s[44:47], 0 offen
        s_cmp_ge_u32 s13, 4
        s_cbranch_scc1 {Lw}
        s_mov_b32 s17, 0x100000''')
        e(Lp + ':')
        e(f'''buffer_load_dword v5, v3, s[44:47], 0 offen sc1
        s_waitcnt vmcnt(0)
        v_readfirstlane_b32 s18, v5
        s_cmp_ge_u32 s18, 8
        s_cbranch_scc1 {Lpo}
        s_sleep 4
        s_sub_u32 s17, s17, 1
        s_cbranch_scc0 {Lp}''')
        e(Lpo + ':')
        e(Lw + ':')
        e(f'''s_cmp_ge_u32 s13, 4
        s_cbranch_scc1 {Lnr}
        s_barrier
        s_lshl_b32 s19, s14, 2
        s_add_u32 s19, s19, s13
        s_mov_b32 s16, s12
        s_mov_b32 s8, s4
        s_mov_b32 s9, s5
        s_mov_b32 s10, 0x10000000
        s_mov_b32 s11, 0x20000
        s_mov_b32 s20, {L.X1}''')
        redln.emit(k, 'sc1')
        e(Lnr + ':')
    k.ts(4)
    k.ts_flush(11, srd, v0=250)
    e(Lx + ':')
    e('s_endpgm')
    return k, LDS_SIZE
```

```python
from asmgen import *
import layout as L
import ln
OOB = 0x80000000
N1, N2, N3, N4 = 3 * 96 * 20, 10 * 192, 30 * 20, 10 * 20
NW = N1 + N2 + N3 + N4
NWG = NW // 4

def gen(name='prep_kernel', NT=''):
    k = Kernel(name, vgpr=80, agpr=0, sgpr=64); e = k.e
    ws = 's[4:7]'; src = 's[8:11]'
    vL, vI, vG, vA, vL16, vT = 1, 2, 3, 4, 5, 6
    vD = 16
    vPk = 48
    Lx = k.label('exit'); S2 = k.label('s2'); S3 = k.label('s3'); S4 = k.label('s4')
    Lln = k.label('notln'); Lpk = k.label('pack')
    e(f's_cmp_ge_u32 s2, 128\ns_cbranch_scc1 {Lln}')
    ln.emit_ln(k, True, copy_x1=True)
    e('s_endpgm')
    e(Lln + ':')
    e(f'''s_sub_u32 s2, s2, 128
    s_cmp_ge_u32 s2, {NWG}
    s_cbranch_scc1 {Lx}
    s_load_dwordx2 s[12:13], s[0:1], 96
    s_load_dwordx4 s[16:19], s[0:1], 16
    s_load_dwordx4 s[20:23], s[0:1], 32
    s_load_dwordx4 s[24:27], s[0:1], 64
    v_lshrrev_b32 v{vT}, 6, v0
    v_and_b32 v{vL}, 63, v0
    s_nop 0
    v_readfirstlane_b32 s14, v{vT}
    v_lshlrev_b32 v{vL16}, 4, v{vL}
    s_lshl_b32 s15, s2, 2
    s_add_u32 s15, s15, s14
    s_add_u32 s28, s15, {N1 + N2}
    s_sub_u32 s29, s15, {N3 + N4}
    s_cmp_lt_u32 s15, {N3 + N4}
    s_cselect_b32 s15, s28, s29
    s_waitcnt lgkmcnt(0)
    s_mov_b32 s4, s12
    s_mov_b32 s5, s13
    s_mov_b32 s6, 0x10000000
    s_mov_b32 s7, 0x20000
    s_mov_b32 s11, 0x20000
    v_and_b32 v{vI}, 15, v{vL}
    v_lshrrev_b32 v{vG}, 4, v{vL}''')
    def gather_pack_store(jj_off, frag_off, frag_dst, addr_regs=None):
        for i in range(4):
            for jj in range(8):
                off = frag_off[i] + jj_off[jj]
                va = vA if addr_regs is None else addr_regs[jj]
                e(f's_mov_b32 s29, {off}')
                e(f'buffer_load_ushort v{vD+8*i+jj}, v{va}, {src}, s29 offen')
        for i in range(4):
            e(f's_waitcnt vmcnt({8*(3-i) + i})')
            for q in range(4):
                e(f'v_lshl_or_b32 v{vPk+4*i+q}, v{vD+8*i+2*q+1}, 16, v{vD+8*i+2*q}')
            frag_dst(i)
            e(f'buffer_store_dwordx4 v[{vPk+4*i}:{vPk+4*i+3}], v{vL16}, {ws}, s30 offen {NT}')
    ROWS = 144
    LB = 512
    vLw, vR1, vR2 = 12, 13, 14
    def tr_block(rowstride, pi_rows, sigma_cols, dst):
        e(f'''v_lshrrev_b32 v{vT}, 3, v{vL}
        v_mul_u32_u24 v{vLw}, {ROWS}, v{vT}
        v_and_b32 v{vT}, 7, v{vL}
        v_lshl_add_u32 v{vLw}, v{vT}, 4, v{vLw}
        s_mul_i32 s36, s14, {32*ROWS}
        s_add_u32 s36, s36, {LB}
        v_add_u32 v{vLw}, s36, v{vLw}''')
        for q in range(4):
            e(f's_mov_b32 s29, {q*8*rowstride}')
            e(f'buffer_load_dwordx4 v[{vD+4*q}:{vD+4*q+3}], v{vA}, {src}, s29 offen')
        e(f'''v_bfe_u32 v{vT}, v{vL}, 2, 2
        v_lshlrev_b32 v{vR1}, {2 if pi_rows else 3}, v{vG}
        v_add_u32 v{vR1}, v{vR1}, v{vT}
        v_mul_u32_u24 v{vR1}, {ROWS}, v{vR1}
        v_and_b32 v{vT}, 3, v{vL}
        v_lshl_add_u32 v{vR1}, v{vT}, {4 if sigma_cols else 3}, v{vR1}
        v_add_u32 v{vR1}, s36, v{vR1}''')
        second = (16 if pi_rows else 4) * ROWS
        for q in range(4):
            e(f's_waitcnt vmcnt({3-q})')
            e(f'ds_write_b128 v{vLw}, v[{vD+4*q}:{vD+4*q+3}] offset:{q*8*ROWS}')
        e('s_waitcnt lgkmcnt(0)')
        for i in range(4):
            coff = (64 * (i >> 1) + 8 * (i & 1)) if sigma_cols else 32 * i
            e(f'ds_read_b64_tr_b16 v[{vPk+4*i}:{vPk+4*i+1}], v{vR1} offset:{coff}')
            e(f'ds_read_b64_tr_b16 v[{vPk+4*i+2}:{vPk+4*i+3}], v{vR1} offset:{coff+second}')
        for i in range(4):
            e(f's_waitcnt lgkmcnt({2*(3-i)})')
            dst(i)
            e(f'buffer_store_dwordx4 v[{vPk+4*i}:{vPk+4*i+3}], v{vL16}, {ws}, s30 offen {NT}')
    e(f'''s_cmp_ge_u32 s15, {N1}
    s_cbranch_scc1 {S2}''')
    e(f'''s_mul_hi_u32 s31, s15, {(1<<32)//1920 + 1}
    s_mul_i32 s32, s31, 1920
    s_sub_u32 s32, s15, s32
    s_mul_hi_u32 s33, s32, {(1<<32)//20 + 1}
    s_mul_i32 s34, s33, 20
    s_sub_u32 s34, s32, s34
    s_cmp_eq_u32 s31, 0
    s_cselect_b32 s8, s16, s18
    s_cselect_b32 s9, s17, s19
    s_cmp_eq_u32 s31, 2
    s_cselect_b32 s8, s20, s8
    s_cselect_b32 s9, s21, s9
    s_mov_b32 s10, {640*12288}
    s_mul_i32 s35, s31, {L.WKP - L.WQP}
    s_add_u32 s35, s35, {L.WQP}''')
    assert L.WVP - L.WKP == L.WKP - L.WQP
    e(f'''v_lshrrev_b32 v{vT}, 3, v{vL}
    s_lshl_b32 s36, s34, 5
    v_add_u32 v{vT}, s36, v{vT}
    s_mov_b32 s37, 12288
    v_mul_lo_u32 v{vA}, v{vT}, s37
    s_lshl_b32 s36, s33, 7
    v_and_b32 v{vT}, 7, v{vL}
    v_lshl_add_u32 v{vA}, v{vT}, 4, v{vA}
    v_add_u32 v{vA}, s36, v{vA}''')
    def d1(i):
        e(f'''s_lshl_b32 s30, s33, 2
        s_add_u32 s30, s30, {i}
        s_mul_i32 s30, s30, 20
        s_add_u32 s30, s30, s34
        s_lshl_b32 s30, s30, 10
        s_add_u32 s30, s30, s35''')
    tr_block(12288, False, False, d1)
    e(f's_branch {Lx}')
    e(S2 + ':')
    e(f'''s_sub_u32 s15, s15, {N1}
    s_cmp_ge_u32 s15, {N2}
    s_cbranch_scc1 {S3}''')
    e(f'''s_mul_hi_u32 s33, s15, {(1<<32)//192 + 1}
    s_mul_i32 s34, s33, 192
    s_sub_u32 s34, s15, s34
    s_mov_b32 s8, s22
    s_mov_b32 s9, s23
    s_mov_b32 s10, {6144*1280}''')
    e(f'''v_lshrrev_b32 v{vT}, 3, v{vL}
    s_lshl_b32 s36, s34, 5
    v_add_u32 v{vT}, s36, v{vT}
    v_mul_u32_u24 v{vA}, 1280, v{vT}
    s_lshl_b32 s36, s33, 7
    v_and_b32 v{vT}, 7, v{vL}
    v_lshl_add_u32 v{vA}, v{vT}, 4, v{vA}
    v_add_u32 v{vA}, s36, v{vA}''')
    def d2(i):
        e(f'''s_lshl_b32 s30, s33, 2
        s_add_u32 s30, s30, {i}
        s_mul_i32 s30, s30, 192
        s_add_u32 s30, s30, s34
        s_lshl_b32 s30, s30, 10
        s_add_u32 s30, s30, {L.WOP}''')
    tr_block(1280, True, True, d2)
    e(f's_branch {Lx}')
    e(S3 + ':')
    e(f'''s_sub_u32 s15, s15, {N2}
    s_cmp_ge_u32 s15, {N3}
    s_cbranch_scc1 {S4}''')
    e(f'''s_mul_hi_u32 s33, s15, {(1<<32)//20 + 1}
    s_mul_i32 s34, s33, 20
    s_sub_u32 s34, s15, s34
    s_mov_b32 s8, s24
    s_mov_b32 s9, s25
    s_mov_b32 s10, {640*3840}''')
    e(f'''v_lshrrev_b32 v{vT}, 3, v{vL}
    s_lshl_b32 s36, s34, 5
    v_add_u32 v{vT}, s36, v{vT}
    v_mul_u32_u24 v{vA}, 3840, v{vT}
    s_lshl_b32 s36, s33, 7
    v_and_b32 v{vT}, 7, v{vL}
    v_lshl_add_u32 v{vA}, v{vT}, 4, v{vA}
    v_add_u32 v{vA}, s36, v{vA}''')
    def d3(i):
        e(f'''s_lshl_b32 s30, s33, 2
        s_add_u32 s30, s30, {i}
        s_mul_i32 s30, s30, 20
        s_add_u32 s30, s30, s34
        s_lshl_b32 s30, s30, 10
        s_add_u32 s30, s30, {L.WB1}''')
    tr_block(3840, False, False, d3)
    e(f's_branch {Lx}')
    e(S4 + ':')
    e(f'''s_sub_u32 s15, s15, {N3}
    s_mul_hi_u32 s33, s15, {(1<<32)//20 + 1}
    s_mul_i32 s34, s33, 20
    s_sub_u32 s34, s15, s34
    s_mov_b32 s8, s26
    s_mov_b32 s9, s27
    s_mov_b32 s10, {640*1280}''')
    e(f'''v_lshrrev_b32 v{vT}, 3, v{vL}
    s_lshl_b32 s36, s34, 5
    v_add_u32 v{vT}, s36, v{vT}
    v_mul_u32_u24 v{vA}, 1280, v{vT}
    s_lshl_b32 s36, s33, 7
    v_and_b32 v{vT}, 7, v{vL}
    v_lshl_add_u32 v{vA}, v{vT}, 4, v{vA}
    v_add_u32 v{vA}, s36, v{vA}''')
    def d4(i):
        e(f'''s_lshl_b32 s30, s33, 2
        s_add_u32 s30, s30, {i}
        s_mul_i32 s30, s30, 20
        s_add_u32 s30, s30, s34
        s_lshl_b32 s30, s30, 10
        s_add_u32 s30, s30, {L.WB2}''')
    tr_block(1280, False, True, d4)
    e(Lx + ':')
    e('s_endpgm')
    return k, NWG + 128, 512 + 4 * 32 * 144
```

```python
import struct, math
from asmgen import *
import layout as L
OOB = 0x80000000
def fbits(x): return struct.unpack('<I', struct.pack('<f', x))[0]
LDS_SIZE = 4 * 20 * 1024
TILES = [[0, 1, 2, 3], [4, 5, 6, 7], [8, 9, 10, 11], [12, 13, 14]]

def gen(name='qkvb_kernel', prof=None):
    k = Kernel(name, vgpr=176, agpr=0, sgpr=102 if prof is not None else 64); e = k.e; k.prof = prof
    srd = 's[4:7]'
    R = lambda b, n=4: f'v[{b}:{b+n-1}]'
    vL16, vT0, vT1, vT2, vT3, vXr, vXr2 = 1, 2, 3, 4, 5, 6, 7
    vAcc = 8
    vA = 72
    vB = 136
    vAd = 168
    Lx = k.label('exit')
    e(f'''s_cmp_ge_u32 s2, 256
    s_cbranch_scc1 {Lx}
    s_load_dwordx2 s[12:13], s[0:1], 96''')
    k.ts(0)
    e(f'''v_lshrrev_b32 v{vT0}, 6, v0
    v_and_b32 v{vT1}, 63, v0
    s_and_b32 s17, s2, 7
    v_readfirstlane_b32 s16, v{vT0}
    v_lshlrev_b32 v{vL16}, 4, v{vT1}
    s_lshr_b32 s18, s2, 3
    s_waitcnt lgkmcnt(0)
    s_mov_b32 s4, s12
    s_mov_b32 s5, s13
    s_mov_b32 s6, 0x10000000
    s_mov_b32 s7, 0x20000''')
    e(f'''s_lshl_b32 s21, s18, 2
    s_add_u32 s21, s21, s16
    s_mul_i32 s21, s21, 20480
    s_add_u32 s21, s21, {L.XNB}
    s_mul_i32 s22, s16, 20480
    v_add_u32 v{vXr2}, {2*20480}, v{vL16}
    v_mov_b32 v{vXr}, v{vL16}''')
    def xdma(lo, hi):
        for q in range(lo, hi):
            if q % 4 == 0: e(f's_add_u32 m0, s22, {q*1024}\ns_add_u32 s23, s21, {q*1024}')
            e(f'buffer_load_dwordx4 v{vL16}, {srd}, s23 offen offset:{(q%4)*1024} lds')
    xdma(0, 4)
    Lw = [k.label('w%d_' % w) for w in range(4)]
    for w in range(3): e(f's_cmp_eq_u32 s16, {w}\ns_cbranch_scc1 {Lw[w]}')
    e(f's_branch {Lw[3]}')
    cq = (20 ** -0.5) * math.log2(math.e)
    for w in range(4):
        tiles = TILES[w]; nt = len(tiles)
        e(Lw[w] + ':')
        for i, t in enumerate(tiles):
            which, tt = t // 5, t % 5
            e(f'''s_mul_i32 s{30+i}, s17, 5
            s_add_u32 s{30+i}, s{30+i}, {which*40 + tt}
            s_mul_i32 s{30+i}, s{30+i}, 20480
            s_add_u32 s{30+i}, s{30+i}, {L.WB1}''')
        def wl(slot, off):
            for i in range(nt):
                e(f'buffer_load_dwordx4 {R(vA + 16*slot + 4*i)}, v{vL16}, {srd}, s{30+i} offen offset:{off}')
        wl(0, 0); wl(1, 1024); wl(2, 2048)
        xdma(4, 20)
        e(f's_waitcnt vmcnt({3*nt + 16})\ns_barrier')
        k.ts(1)
        def bl(buf, ks_off):
            for T in range(4):
                e(f'ds_read_b128 {R(vB + 16*buf + 4*T)}, v{vXr if T < 2 else vXr2} offset:{(T%2)*20480 + ks_off}')
        def mm(slot, buf, first):
            for i, t in enumerate(tiles):
                a = R(vA + 16*slot + 4*i)
                for T in range(4):
                    acc = R(vAcc + 16*i + 4*T); b = R(vB + 16*buf + 4*T)
                    c = '0' if first else acc
                    if t < 10: e(f'v_mfma_f32_16x16x32_bf16 {acc}, {a}, {b}, {c}')
                    else: e(f'v_mfma_f32_16x16x32_bf16 {acc}, {b}, {a}, {c}')
        bl(0, 0)
        for ks in range(4):
            if ks == 0: wl(3, 3072)
            else:
                if ks == 1:
                    for i in range(nt): e(f's_add_u32 s{30+i}, s{30+i}, 4096')
                wl((ks + 3) % 4, (ks - 1) * 1024)
            if ks == 0:
                e(f's_waitcnt vmcnt({3*nt + 16})')
            elif ks < 3:
                e(f's_waitcnt vmcnt({min(63, 3*nt + 16)})')
            else:
                e(f's_waitcnt vmcnt({3*nt})')
            if ks < 3:
                bl((ks + 1) % 2, (ks + 1) * 1024); e('s_waitcnt lgkmcnt(4)')
            else:
                e('s_barrier')
                bl(0, 4096); e('s_waitcnt lgkmcnt(4)')
            mm(ks % 4, ks % 2, ks == 0)
        k.ts(2)
        Ll = k.label('loop')
        e(f's_mov_b32 s40, 0\nv_add_u32 v{vXr}, 4096, v{vXr}\nv_add_u32 v{vXr2}, 4096, v{vXr2}')
        e(Ll + ':')
        for q in range(4):
            if q == 1:
                for i in range(nt): e(f's_add_u32 s{30+i}, s{30+i}, 4096')
            wl((q + 3) % 4, 3072 if q == 0 else (q - 1) * 1024)
            e(f's_waitcnt vmcnt({3*nt})')
            bl((q + 1) % 2, (q + 1) * 1024); e('s_waitcnt lgkmcnt(4)')
            mm(q % 4, q % 2, False)
        e(f'''v_add_u32 v{vXr}, 4096, v{vXr}
        v_add_u32 v{vXr2}, 4096, v{vXr2}
        s_add_u32 s40, s40, 1
        s_cmp_lt_u32 s40, 4
        s_cbranch_scc1 {Ll}''')
        k.ts(3)
        e(f'''s_waitcnt vmcnt(0) lgkmcnt(0)
        v_and_b32 v{vT0}, 63, v0
        v_and_b32 v{vT1}, 15, v{vT0}
        v_lshrrev_b32 v{vT2}, 4, v{vT0}
        s_lshl_b32 s41, s17, 19
        s_lshl_b32 s42, s18, 12
        s_add_u32 s41, s41, s42
        s_mov_b32 s46, {fbits(cq):#x}
        s_mov_b32 s47, {fbits(cq):#x}''')
        for i, t in enumerate(tiles):
            which, tt = t // 5, t % 5
            ad = vAd + i
            if which < 2:
                e(f'''v_lshlrev_b32 v{vT3}, 2, v{vT2}
                v_add_u32 v{vT3}, {16*tt}, v{vT3}
                v_mul_u32_u24 v{ad}, 205, v{vT3}
                v_lshrrev_b32 v{ad}, 12, v{ad}
                v_mul_u32_u24 v{vXr}, 20, v{ad}
                v_sub_u32 v{vT3}, v{vT3}, v{vXr}
                v_lshlrev_b32 v{ad}, 17, v{ad}
                v_lshrrev_b32 v{vXr}, 4, v{vT3}
                v_lshl_add_u32 v{ad}, v{vXr}, 10, v{ad}
                v_bfe_u32 v{vXr}, v{vT3}, 2, 1
                v_lshl_add_u32 v{ad}, v{vXr}, 9, v{ad}
                v_bfe_u32 v{vXr}, v{vT3}, 3, 1
                v_lshl_add_u32 v{ad}, v{vXr}, 3, v{ad}
                v_lshl_add_u32 v{ad}, v{vT1}, 4, v{ad}''')
            else:
                e(f'''v_add_u32 v{vT3}, {16*tt}, v{vT1}
                v_mul_u32_u24 v{ad}, 205, v{vT3}
                v_lshrrev_b32 v{ad}, 12, v{ad}
                v_mul_u32_u24 v{vXr}, 20, v{ad}
                v_sub_u32 v{vT3}, v{vT3}, v{vXr}
                v_lshlrev_b32 v{ad}, 17, v{ad}
                v_lshl_add_u32 v{ad}, v{vT3}, 4, v{ad}
                v_and_b32 v{vXr}, 1, v{vT2}
                v_lshl_add_u32 v{ad}, v{vXr}, 9, v{ad}
                v_lshrrev_b32 v{vXr}, 1, v{vT2}
                v_lshl_add_u32 v{ad}, v{vXr}, 3, v{ad}''')
        n = 0
        for i, t in enumerate(tiles):
            which, tt = t // 5, t % 5
            for T in range(4):
                a = vAcc + 16*i + 4*T; p = vB + 2 * (n % 8); n += 1
                if which == 0:
                    e(f'v_pk_mul_f32 {R(a,2)}, {R(a,2)}, s[46:47]\nv_pk_mul_f32 {R(a+2,2)}, {R(a+2,2)}, s[46:47]'.replace('s[46:47]', 's[46:47]'))
                e(f'v_cvt_pk_bf16_f32 v{p}, v{a}, v{a+1}\nv_cvt_pk_bf16_f32 v{p+1}, v{a+2}, v{a+3}')
                if which < 2:
                    off = (T >> 1) * 2048 + (T & 1) * 256
                    e(f's_add_u32 s43, s41, {(L.QB if which == 0 else L.KB) + off}')
                else:
                    e(f's_add_u32 s43, s41, {L.VB + T*1024}')
                e(f'buffer_store_dwordx2 {R(p,2)}, v{vAd+i}, {srd}, s43 offen {stf("qkvb")}')
        if w == 3:
            z = vA
            for r in range(4): e(f'v_mov_b32 v{z+r}, 0')
            e(f'''v_lshlrev_b32 v{vT3}, 17, v{vT2}
            v_lshl_add_u32 v{vT3}, v{vT1}, 4, v{vT3}
            v_add_u32 v{vXr}, {1024 + 8}, v{vT3}
            v_add_u32 v{vXr2}, {1024 + 512}, v{vT3}''')
            for base in (L.QB, L.KB):
                for T in range(4):
                    off = (T >> 1) * 2048 + (T & 1) * 256
                    e(f'''s_add_u32 s43, s41, {base + off}
                    buffer_store_dwordx2 {R(z,2)}, v{vXr}, {srd}, s43 offen {stf("qkvb")}
                    buffer_store_dwordx4 {R(z)}, v{vXr2}, {srd}, s43 offen {stf("qkvb")}''')
            e(f'''v_and_b32 v{vXr}, 1, v{vT2}
            v_lshlrev_b32 v{vXr}, 9, v{vXr}
            v_add_u32 v{vT3}, 20, v{vT1}
            v_lshl_add_u32 v{vXr}, v{vT3}, 4, v{vXr}
            v_lshrrev_b32 v{vT3}, 1, v{vT2}
            v_lshl_add_u32 v{vXr}, v{vT3}, 17, v{vXr}
            v_mov_b32 v{vT3}, {OOB:#x}
            v_cmp_gt_u32 vcc, 12, v{vT1}
            v_cndmask_b32 v{vXr}, v{vT3}, v{vXr}, vcc
            v_cmp_eq_u32 vcc, 0, v{vT1}
            v_mov_b32 v{vT3}, 0x3f803f80
            v_cndmask_b32 v{z+4}, 0, v{vT3}, vcc
            v_mov_b32 v{z+5}, v{z+4}
            v_mov_b32 v{z+6}, v{z+4}
            v_mov_b32 v{z+7}, v{z+4}''')
            for hp in range(2):
                for T in range(4):
                    e(f'''s_add_u32 s43, s41, {L.VB + T*1024 + hp*2*131072}
                    buffer_store_dwordx4 {R(z+4)}, v{vXr}, {srd}, s43 offen {stf("qkvb")}''')
        k.ts(4)
        k.ts_flush(5, srd, v0=170)
        e(f's_branch {Lx}')
    e(Lx + ':')
    e('s_endpgm')
    return k, LDS_SIZE
```

```python
import struct
from asmgen import *
import layout as L
OOB = 0x80000000
def fbits(x): return struct.unpack('<I', struct.pack('<f', x))[0]

def gen(name, from_input, prof=None):
    k = Kernel(name, vgpr=248, agpr=0, sgpr=102 if prof is not None else 48); e = k.e; k.prof = prof
    Lx = k.label('exit')
    e(f'''s_cmp_ge_u32 s2, 128
    s_cbranch_scc1 {Lx}
    s_load_dwordx2 s[12:13], s[0:1], 96
    s_load_dwordx2 s[14:15], s[0:1], 0''')
    k.ts(0)
    e(f'''v_lshrrev_b32 v2, 6, v0
    s_nop 0
    v_readfirstlane_b32 s16, v2
    s_waitcnt lgkmcnt(0)
    s_mov_b32 s4, s12
    s_mov_b32 s5, s13
    s_mov_b32 s6, 0x10000000
    s_mov_b32 s7, 0x20000''')
    if from_input:
        e(f's_mov_b32 s8, s14\ns_mov_b32 s9, s15\ns_mov_b32 s10, {2048*1280}\ns_mov_b32 s11, 0x20000\ns_mov_b32 s20, 0')
    else:
        e(f's_mov_b32 s8, s12\ns_mov_b32 s9, s13\ns_mov_b32 s10, 0x10000000\ns_mov_b32 s11, 0x20000\ns_mov_b32 s20, {L.X1}')
    e('s_mov_b32 s19, s2')
    emit(k, '')
    k.ts(2)
    k.ts_flush(3, 's[4:7]', v0=240)
    e(Lx + ':')
    e('s_endpgm')
    return k, 512

def emit(k, LF):
    e = k.e
    srd = 's[4:7]'
    R = lambda b, n=4: f'v[{b}:{b+n-1}]'
    vA, vT0, vT1, vS, vLd, vL16, vXa = 1, 2, 3, 4, 5, 14, 15
    vX = 16
    vF = 36
    e(f'''v_and_b32 v{vT1}, 63, v0
    v_lshlrev_b32 v{vL16}, 4, v{vT1}''')
    e(f'''v_and_b32 v{vT0}, 15, v{vT1}
    v_lshrrev_b32 v{vS}, 4, v{vT1}
    s_lshl_b32 s17, s19, 4
    v_add_u32 v{vXa}, s17, v{vT0}
    v_mul_u32_u24 v{vXa}, 1280, v{vXa}
    v_lshl_add_u32 v{vXa}, v{vS}, 4, v{vXa}
    s_mul_i32 s17, s16, 320
    s_add_u32 s20, s20, s17
    s_add_u32 s21, s17, {L.X1}''')
    e(f'''s_mul_i32 s22, s19, 20
    s_mul_i32 s23, s16, 5
    s_add_u32 s22, s22, s23
    s_lshl_b32 s22, s22, 10
    s_add_u32 s22, s22, {L.PARTO}''')
    XS = 128 * 20 * 1024
    for x in range(8): e(f's_add_u32 s{24+x}, s22, {x*XS}')
    e(f'v_add_u32 v6, 0x1000, v{vL16}')
    for q in range(5): e(f'buffer_load_dwordx4 {R(vX+4*q)}, v{vXa}, s[8:11], s20 offen offset:{q*64}')
    vPp = 80
    for q in range(5):
        for x in range(8):
            r = vPp + 32 * q + 4 * x
            e(f'buffer_load_dwordx4 {R(r)}, v{vL16 if q < 4 else 6}, {srd}, s{24+x} offen offset:{(q%4)*1024} {LF}')
    for q in range(5):
        e(f's_waitcnt vmcnt({8*(4-q) + q})')
        r = vPp + 32 * q; f = vF + 8 * q
        for i in range(4):
            e(f'v_lshlrev_b32 v{f+2*i}, 16, v{r+i}')
            e(f'v_and_b32 v{f+2*i+1}, 0xffff0000, v{r+i}')
        for x in range(1, 8):
            for i in range(4):
                e(f'v_lshlrev_b32 v8, 16, v{r+4*x+i}')
                e(f'v_and_b32 v9, 0xffff0000, v{r+4*x+i}')
                e(f'v_pk_add_f32 {R(f+2*i,2)}, {R(f+2*i,2)}, v[8:9]')
        for i in range(4):
            xr = vX + 4 * q + i
            e(f'''v_cvt_pk_bf16_f32 v8, v{f+2*i}, v{f+2*i+1}
            v_lshlrev_b32 v{f+2*i}, 16, v8
            v_and_b32 v{f+2*i+1}, 0xffff0000, v8
            v_lshlrev_b32 v10, 16, v{xr}
            v_and_b32 v11, 0xffff0000, v{xr}
            v_pk_add_f32 {R(f+2*i,2)}, {R(f+2*i,2)}, v[10:11]
            v_cvt_pk_bf16_f32 v{xr}, v{f+2*i}, v{f+2*i+1}
            v_lshlrev_b32 v{f+2*i}, 16, v{xr}
            v_and_b32 v{f+2*i+1}, 0xffff0000, v{xr}''')
        e(f'buffer_store_dwordx4 {R(vX+4*q)}, v{vXa}, {srd}, s21 offen offset:{q*64} {stf("x1")}')
    e(f'''v_and_b32 v{vT1}, 63, v0
    v_and_b32 v{vT0}, 15, v{vT1}
    v_lshlrev_b32 v{vLd}, 2, v{vT0}
    s_lshl_b32 s17, s16, 6
    v_add_u32 v{vA}, s17, v{vLd}''')
    def reduce_row(off):
        e(f'''v_mov_b32 v{vT0}, v{vS}
        v_permlane32_swap_b32 v{vS}, v{vT0}
        v_add_f32 v{vS}, v{vS}, v{vT0}
        v_mov_b32 v{vT0}, v{vS}
        v_permlane16_swap_b32 v{vS}, v{vT0}
        v_add_f32 v{vS}, v{vS}, v{vT0}
        ds_write_b32 v{vA}, v{vS} offset:{off}
        s_waitcnt lgkmcnt(0)
        s_barrier
        ds_read_b32 v{vS}, v{vLd} offset:{off}
        ds_read_b32 v{vT0}, v{vLd} offset:{off+64}
        ds_read_b32 v{vT1}, v{vLd} offset:{off+128}
        ds_read_b32 v6, v{vLd} offset:{off+192}
        s_waitcnt lgkmcnt(0)
        v_add_f32 v{vS}, v{vS}, v{vT0}
        v_add_f32 v{vT1}, v{vT1}, v6
        v_add_f32 v{vS}, v{vS}, v{vT1}''')
    e(f'v_pk_add_f32 v[6:7], {R(vF,2)}, {R(vF+2,2)}')
    for i in range(2, 20): e(f'v_pk_add_f32 v[6:7], v[6:7], {R(vF+2*i,2)}')
    e(f'v_add_f32 v{vS}, v6, v7')
    reduce_row(0)
    e(f'v_mul_f32 v6, {fbits(-1/640):#x}, v{vS}\nv_mov_b32 v7, v6')
    for i in range(20): e(f'v_pk_add_f32 {R(vF+2*i,2)}, {R(vF+2*i,2)}, v[6:7]')
    e(f'v_pk_mul_f32 v[6:7], {R(vF,2)}, {R(vF,2)}')
    for i in range(1, 20): e(f'v_pk_fma_f32 v[6:7], {R(vF+2*i,2)}, {R(vF+2*i,2)}, v[6:7]')
    e(f'v_add_f32 v{vS}, v6, v7')
    reduce_row(256)
    e(f'''v_mov_b32 v{vT0}, {fbits(1e-5):#x}
    v_fmac_f32 v{vT0}, {fbits(1/640):#x}, v{vS}
    v_rsq_f32 v6, v{vT0}''')
    e('v_mov_b32 v7, v6')
    for i in range(20): e(f'v_pk_mul_f32 {R(vF+2*i,2)}, {R(vF+2*i,2)}, v[6:7]')
    for i in range(20): e(f'v_cvt_pk_bf16_f32 v{vX+i}, v{vF+2*i}, v{vF+2*i+1}')
    e(f'''s_mul_i32 s17, s19, 20480
    s_mul_i32 s18, s16, 5120
    s_add_u32 s17, s17, s18
    s_add_u32 s17, s17, {L.XNB}''')
    for q in range(5):
        if q == 4: e('s_add_u32 s17, s17, 4096')
        e(f'buffer_store_dwordx4 {R(vX+4*q)}, v{vL16}, {srd}, s17 offen offset:{(q%4)*1024} {stf("redln")}')
```

```python
import sys; sys.path.insert(0, 'gen')
import prep, ln, rec2 as rec, attn_a, outproj_a, qkv_b2 as qkv_b, attn_b, fin, redln, redln2, layout as L
from asmgen import *
def build(path, rec_kw=None, upto=None, tl=False, prof=False):
    rec_kw = dict(rec_kw or {}); K8 = rec_kw.pop('K8', 1); FUSE = rec_kw.pop('FUSE', 0); PNT = rec_kw.pop('PNT', 2)
    import asmgen
    SB = rec_kw.pop('STF', 255)
    asmgen.STF.clear()
    for i, nm in enumerate(['fin', 'redln', 'qkvb', 'attnb', 'ln', 'pois', 'x1', 'outb']):
        if SB >> i & 1: asmgen.STF[nm] = 'sc1'
    assert L.RING == 64 or rec_kw.get('TWIN', rec.TWIN_DEFAULT), 'ring buffers need the in-kernel token attention'
    assert L.RING == 64 or L.RING >= rec_kw.get('PLEAD', 3) + 5, 'slot reuse must be causally after the last reader (token attention part B)'
    P = (lambda o: o) if prof else (lambda o: None)
    if prof == 'cyc': Kernel.tsi = 's_memtime'
    rec_kw = {} if rec_kw is None else rec_kw
    if rec_kw.pop('RT', 0): rec.STAMPI = 's_memrealtime'
    kp, nwg, lds_p = prep.gen('prep_kernel', NT={0: '', 1: 'nt', 2: 'sc1', 3: 'sc0 sc1', 4: 'sc1 nt'}[PNT], skip1=bool(rec_kw.get('DIRECT', rec.DIRECT_DEFAULT)), COPYX=bool(FUSE))
    kl2, lds_ln = ln.gen('ln2_kernel', False)
    ka, lds_a = rec.gen('reca_kernel', **rec_kw, **(dict(TL=0) if tl else {}))
    ka2 = rec.gen('reca2_kernel', **rec_kw, TL=65536)[0] if tl else None
    kf, lds_f = fin.gen('fin_kernel', prof=P(0), twin=bool(rec_kw.get('TWIN', rec.TWIN_DEFAULT)), fuse=FUSE)
    kr1, lds_r = redln2.gen('redln1_kernel', True); kr2, _ = redln2.gen('redln2_kernel', False)
    kq, lds_q = qkv_b.gen('qkvb_kernel', prof=P(65536)); kab, _ = attn_b.gen('attnb_kernel', prof=P(131072), K8=K8)
    kb1 = outproj_a.gen('outb1_kernel', False, nk=20, wbase=L.WB2, abase=L.OB2, prof=P(196608))
    kb2 = outproj_a.gen('outb2_kernel', False, nk=20, wbase=L.WB2, abase=L.OB2, out_to_dout=True)
    B = (256, 1, 1); G = lambda n: (n, 1, 1); lo = outproj_a.LDS_SIZE
    launches = [('prep_kernel', G(nwg), B, lds_p)]
    for layer in range(2):
        launches += ([('ln2_kernel', G(128), B, lds_ln)] if layer else []) + [('reca2_kernel' if (tl and layer) else 'reca_kernel', G(256), B, lds_a), ('fin_kernel', G(256), B, lds_f)] + ([] if FUSE else [('redln1_kernel' if layer == 0 else 'redln2_kernel', G(256), (128, 1, 1), lds_r)]) + [ ('qkvb_kernel', G(256), B, lds_q), ('attnb_kernel', G(256), B, 0),
                     ('outb1_kernel' if layer == 0 else 'outb2_kernel', G(256), B, lo)]
    txt = build_file(launches, [kp, kl2, ka, kf] + ([] if FUSE else [kr1, kr2]) + [kq, kab, kb1, kb2] + ([ka2] if tl else []))
    open(path, 'w').write(txt)
    print('written', path, len(txt))
if __name__ == '__main__':
    kw = {}
    for a in sys.argv[2:]:
        if '=' in a:
            x, y = a.split('='); kw[x] = int(y)
    build(sys.argv[1] if len(sys.argv) > 1 else '/code/' + NAME + '.s', rec_kw=kw, tl='tl' in sys.argv, prof=('cyc' if 'cyc' in sys.argv else 'prof' in sys.argv))
```

```python
import math, struct
from asmgen import *
import layout as L
import redln
OOB = 0x80000000
LDS_SIZE = 96 * 1024

def gen(name='fin_kernel', prof=None, twin=False, fuse=False):
    k = Kernel(name, vgpr=256, agpr=240, sgpr=102 if prof is not None else 64); e = k.e; k.prof = prof
    srd = 's[4:7]'
    R = lambda b, n=4: f'v[{b}:{b+n-1}]'
    vL16, vL16b, vL16c, vKM, vVM, vT0, vT1, vT2 = 1, 2, 3, 4, 5, 6, 7, 8
    vOOB, vLw, vLw2 = 9, 240, 241
    vCM, vCD, vONES = 12, 16, 20
    vS, vP, vLs, vO, vOp = 24, 44, 54, 64, 80
    vQ, vK, vKm = 88, 136, 184
    vV, vVm = 88, 136
    Lx = k.label('exit')
    cexp = (192 ** -0.5) * math.log2(math.e)
    cbits = struct.unpack('<I', struct.pack('<f', cexp))[0]
    e(f'''s_cmp_ge_u32 s2, 256
    s_cbranch_scc1 {Lx}
    s_load_dwordx2 s[8:9], s[0:1], 96''')
    k.ts(0)
    e(f'''v_lshrrev_b32 v{vT0}, 6, v0
    v_and_b32 v{vT1}, 63, v0
    s_and_b32 s13, s2, 7
    v_readfirstlane_b32 s12, v{vT0}
    v_lshlrev_b32 v{vL16}, 4, v{vT1}
    v_add_u32 v{vL16b}, 0x1000, v{vL16}
    v_add_u32 v{vL16c}, 0x2000, v{vL16}
    s_lshr_b32 s14, s2, 3
    s_lshl_b32 s15, s13, 2
    s_add_u32 s15, s15, s12
    s_waitcnt lgkmcnt(0)
    s_mov_b32 s4, s8
    s_mov_b32 s5, s9
    s_mov_b32 s6, 0x10000000
    s_mov_b32 s7, 0x20000
    s_mov_b32 s27, {cbits:#x}''')
    i16, g = vT0, vT2
    e(f'''v_and_b32 v{i16}, 15, v{vT1}
    v_lshrrev_b32 v{g}, 4, v{vT1}
    v_mov_b32 v{vOOB}, {OOB:#x}
    v_lshlrev_b32 v10, 4, v{i16}
    v_lshl_add_u32 v10, v{g}, 7, v10
    v_cmp_gt_u32 vcc, 8, v{i16}
    v_cndmask_b32 v{vKM}, v{vOOB}, v10, vcc
    v_lshlrev_b32 v10, 3, v{vT1}
    v_cmp_gt_u32 vcc, 32, v{vT1}
    v_cndmask_b32 v{vVM}, v{vOOB}, v10, vcc
    v_mov_b32 v10, 0xf149f2ca
    v_cmp_le_u32 vcc, 2, v{g}
    v_cndmask_b32 v{vCM}, 0, v10, vcc
    v_mov_b32 v{vCM+1}, v{vCM}
    v_mov_b32 v{vCM+2}, v{vCM}
    v_mov_b32 v{vCM+3}, v{vCM}
    v_lshlrev_b32 v11, 2, v{g}''')
    for r in range(4):
        e(f'''v_add_u32 v{vT1}, {r}, v11
        v_cmp_gt_u32 vcc, v{vT1}, v{i16}
        v_cndmask_b32 v{vCD+r}, 0, v10, vcc''')
    for r in range(4): e(f'v_mov_b32 v{vONES+r}, 0x3f803f80')
    e(f'''s_mul_i32 s16, s12, 6144
    v_add_u32 v{vLw}, s16, v{vL16}
    v_add_u32 v{vLw2}, {2*24576}, v{vLw}''')
    vLs_ = [vL16, vL16b, vL16c]
    SM0, S00, SM1, S10, S11 = vS, vS + 4, vS + 8, vS + 12, vS + 16
    PM0, PT0, PM1, PT1 = vP, vP + 2, vP + 4, vP + 6
    L0, L1 = vLs + 2, vLs + 6
    def softmax(regs, mx, t):
        e(f'v_max3_f32 v{mx}, v{regs[0]}, v{regs[1]}, v{regs[2]}')
        r = regs[3:]
        while r:
            if len(r) >= 2: e(f'v_max3_f32 v{mx}, v{mx}, v{r[0]}, v{r[1]}'); r = r[2:]
            else: e(f'v_max_f32 v{mx}, v{mx}, v{r[0]}'); r = r[1:]
        e(f'''v_mov_b32 v{t}, v{mx}
        v_permlane32_swap_b32 v{mx}, v{t}
        v_max_f32 v{mx}, v{mx}, v{t}
        v_mov_b32 v{t}, v{mx}
        v_permlane16_swap_b32 v{mx}, v{t}
        v_max_f32 v{mx}, v{mx}, v{t}
        v_mul_f32 v{mx}, s27, v{mx}''')
        for x in regs: e(f'v_fma_f32 v{x}, v{x}, s27, -v{mx}')
        for x in regs: e(f'v_exp_f32 v{x}, v{x}')
    e(f'''s_mul_i32 s16, s12, 10
    s_mul_i32 s16, s16, 192
    s_mul_i32 s17, s13, 24
    s_add_u32 s16, s16, s17
    s_lshl_b32 s16, s16, 10
    s_add_u32 s16, s16, {L.WOP}''')
    for i in range(10): e(f's_add_u32 s{30+i}, s16, {i*192*1024}')
    Lp2 = k.label('phase2'); Ldma = k.label('odma')
    if twin: e(f's_cmp_lt_u32 s14, 30\ns_cbranch_scc1 {Ldma}')
    AR = lambda b_, n=4: f'a[{b_}:{b_+n-1}]'
    def seg_offsets(seg, dQ, dK, dV, dKM, dVM):
        e(f'''s_lshl_b32 s17, s14, 1
        s_add_u32 s17, s17, {seg}
        s_and_b32 s17, s17, {L.RING-1}
        s_lshl_b32 s16, s15, {L.RL}
        s_add_u32 s16, s16, s17
        s_mul_i32 s16, s16, 12288
        s_add_u32 s{dQ}, s16, {L.QT}
        s_add_u32 s{dK}, s16, {L.KT}
        s_add_u32 s{dV}, s16, {L.VT}
        s_lshl_b32 s17, s17, 5
        s_add_u32 s17, s17, s15
        s_mul_i32 s17, s17, 3072
        s_add_u32 s{dKM}, s17, {L.KM}
        s_add_u32 s{dVM}, s17, {L.VM}''')
    seg_offsets(0, 20, 21, 22, 23, 24)
    seg_offsets(1, 40, 41, 42, 43, 44)
    for i in range(12): e(f'buffer_load_dwordx4 {R(vK+4*i)}, v{vLs_[i//4]}, {srd}, s21 offen offset:{(i%4)*1024}')
    for j in range(6): e(f'buffer_load_dwordx4 {R(vKm+4*j)}, v{vKM}, {srd}, s23 offen offset:{j*512}')
    for i in range(12): e(f'buffer_load_dwordx4 {R(vQ+4*i)}, v{vLs_[i//4]}, {srd}, s20 offen offset:{(i%4)*1024}')
    for i in range(12): e(f'buffer_load_dwordx4 {AR(4*i)}, v{vLs_[i//4]}, {srd}, s41 offen offset:{(i%4)*1024}')
    for j in range(6): e(f'buffer_load_dwordx4 {AR(48+4*j)}, v{vKM}, {srd}, s43 offen offset:{j*512}')
    for i in range(12): e(f'buffer_load_dwordx4 {AR(72+4*i)}, v{vLs_[i//4]}, {srd}, s40 offen offset:{(i%4)*1024}')
    for seg in range(2):
        for j in range(6):
            if seg == 0:
                e(f's_waitcnt vmcnt({35-j})')
                q0 = R(vQ + 4 * j); q1 = R(vQ + 24 + 4 * j); k0 = R(vK + 4 * j); k1 = R(vK + 24 + 4 * j); km = R(vKm + 4 * j)
            else:
                q0 = AR(72 + 4 * j); q1 = AR(72 + 24 + 4 * j); k0 = AR(4 * j); k1 = AR(24 + 4 * j); km = AR(48 + 4 * j)
            f_ = j == 0
            e(f'v_mfma_f32_16x16x32_bf16 {R(SM0)}, {km}, {q0}, {R(vCM) if f_ else R(SM0)}')
            e(f'v_mfma_f32_16x16x32_bf16 {R(S00)}, {k0}, {q0}, {R(vCD) if f_ else R(S00)}')
            e(f'v_mfma_f32_16x16x32_bf16 {R(SM1)}, {km}, {q1}, {R(vCM) if f_ else R(SM1)}')
            e(f'v_mfma_f32_16x16x32_bf16 {R(S10)}, {k0}, {q1}, ' + ('0' if f_ else R(S10)))
            e(f'v_mfma_f32_16x16x32_bf16 {R(S11)}, {k1}, {q1}, {R(vCD) if f_ else R(S11)}')
        if k.prof is not None: k.ts(5 + 3*seg)
        sV, sVM_ = (22, 24) if seg == 0 else (42, 44)
        for i in range(12): e(f'buffer_load_dwordx4 {R(vV+4*i)}, v{vLs_[i//4]}, {srd}, s{sV} offen offset:{(i%4)*1024}')
        for i in range(12): e(f'buffer_load_dwordx2 {R(vVm+2*i,2)}, v{vVM}, {srd}, s{sVM_} offen offset:{i*256}')
        softmax(list(range(SM0, SM0 + 8)), vT0, vT1)
        softmax(list(range(SM1, SM1 + 12)), vT2, 10)
        for (dst, src) in ((PM0, SM0), (PT0, S00), (PM1, SM1), (PT1, S10), (PT1 + 2, S11)):
            e(f'v_cvt_pk_bf16_f32 v{dst}, v{src}, v{src+1}')
            e(f'v_cvt_pk_bf16_f32 v{dst+1}, v{src+2}, v{src+3}')
        e(f'''v_mfma_f32_16x16x16_bf16 {R(L0)}, {R(vONES,2)}, {R(PM0,2)}, 0
        v_mfma_f32_16x16x16_bf16 {R(L1)}, {R(vONES,2)}, {R(PM1,2)}, 0
        v_mfma_f32_16x16x16_bf16 {R(L0)}, {R(vONES,2)}, {R(PT0,2)}, {R(L0)}
        v_mfma_f32_16x16x32_bf16 {R(L1)}, {R(vONES)}, {R(PT1)}, {R(L1)}
        v_rcp_f32 v10, v{L0}
        v_rcp_f32 v11, v{L1}''')
        if k.prof is not None: k.ts(6 + 3*seg)
        e('s_waitcnt vmcnt(0)')
        if seg == 1:
            for kk in range(2):
                for i in range(10):
                    b = 160 + 40 * kk + 4 * i
                    e(f'buffer_load_dwordx4 a[{b}:{b+3}], v{vL16}, {srd}, s{30+i} offen offset:{kk*1024}')
        for j in range(6):
            for t in range(2):
                et = 2 * j + t
                o0 = vO + 8 * t; o1 = o0 + 4
                vt = vV + 4 * et; vm = vVm + 2 * et
                e(f'v_mfma_f32_16x16x16_bf16 {R(o0)}, {R(vm,2)}, {R(PM0,2)}, 0')
                e(f'v_mfma_f32_16x16x16_bf16 {R(o1)}, {R(vm,2)}, {R(PM1,2)}, 0')
                e(f'v_mfma_f32_16x16x16_bf16 {R(o0)}, {R(vt,2)}, {R(PT0,2)}, {R(o0)}')
                e(f'v_mfma_f32_16x16x32_bf16 {R(o1)}, {R(vt)}, {R(PT1)}, {R(o1)}')
            for Tq in range(2):
                inv = 10 + Tq
                p = vOp + 4 * Tq
                for t in range(2):
                    o = vO + 8 * t + 4 * Tq
                    for r in range(4): e(f'v_mul_f32 v{o+r}, v{o+r}, v{inv}')
                    e(f'v_cvt_pk_bf16_f32 v{p+2*t}, v{o}, v{o+1}')
                    e(f'v_cvt_pk_bf16_f32 v{p+2*t+1}, v{o+2}, v{o+3}')
                Tt = 2 * seg + Tq
                base = vLw if Tt < 2 else vLw2
                e(f'ds_write_b128 v{base}, {R(p)} offset:{(Tt % 2)*24576 + j*1024}')
    if k.prof is not None: k.ts(10)
    NRING = 4
    vA = 24
    vB = 184
    def areg(kk, i):
        if kk < 2: return f'a[{160+40*kk+4*i}:{160+40*kk+4*i+3}]'
        return R(vA + 40 * (kk % NRING) + 4 * i)
    def wl(kk):
        for i in range(10):
            e(f'buffer_load_dwordx4 {areg(kk, i)}, v{vLs_[0]}, {srd}, s{30+i} offen offset:{(kk%4)*1024}')
        if kk % 4 == 3:
            for i in range(10): e(f's_add_u32 s{30+i}, s{30+i}, 4096')
    def bl(kk):
        for T in range(4):
            b = vB + 16 * (kk % 2) + 4 * T
            e(f'ds_read_b128 {R(b)}, v{vL16 if T < 2 else vT0} offset:{(T % 2)*24576 + kk*1024}')
    def mm(kk):
        for i in range(10):
            a = areg(kk, i)
            for T in range(4):
                acc = f'a[{16*i+4*T}:{16*i+4*T+3}]'
                e(f'v_mfma_f32_16x16x32_bf16 {acc}, {a}, {R(vB + 16*(kk%2) + 4*T)}, ' + ('0' if kk == 0 else acc))
    Lst = k.label('store')
    k.ts(1)
    e('s_waitcnt lgkmcnt(0)')
    wl(2); wl(3)
    e(f'v_add_u32 v{vT0}, {2*24576}, v{vL16}')
    e('s_barrier')
    bl(0)
    for kk in range(24):
        e(f's_waitcnt vmcnt({10*min(3, 23-kk)})')
        if kk + 1 < 24: bl(kk + 1); e('s_waitcnt lgkmcnt(4)')
        else: e('s_waitcnt lgkmcnt(0)')
        mm(kk)
        if kk + 4 < 24: wl(kk + 4)
    if twin:
        e(f's_branch {Lst}')
        e(Ldma + ':')
        e(f'''s_lshl_b32 s16, s14, 2
        s_add_u32 s16, s16, s12
        s_mul_i32 s16, s16, 192
        s_mul_i32 s17, s13, 24
        s_add_u32 s16, s16, s17
        s_lshl_b32 s16, s16, 10
        s_add_u32 s16, s16, {L.OT}
        s_mul_i32 s17, s12, 24576
        v_add_u32 v{vT0}, {2*24576}, v{vL16}''')
        log = []
        def odma(c):
            for q in range(6):
                kk = 6 * c + q
                if q % 4 == 0: e(f's_add_u32 m0, s17, {kk*1024}\ns_add_u32 s18, s16, {kk*1024}')
                e(f'buffer_load_dwordx4 v{vL16}, {srd}, s18 offen offset:{(q%4)*1024} lds')
                log.append('O%d' % c)
        def wll(kk): wl(kk); log.extend(['W%d' % kk] * 10)
        def wait_for(tag):
            last = max(i for i, t in enumerate(log) if t == tag)
            n = len(log) - 1 - last
            assert n <= 63
            e(f's_waitcnt vmcnt({n})')
        odma(0); wll(0); wll(1); odma(1); wll(2)
        wait_for('O0'); e('s_barrier')
        k.ts(1)
        odma(2); wll(3)
        bl(0)
        for kk in range(24):
            if kk == 1: odma(3)
            if kk + 1 < 24 and (kk + 1) % 6 == 0:
                if (kk + 1) // 6 < 4:
                    tag = 'O%d' % ((kk + 1) // 6)
                    last = max(i for i, t in enumerate(log) if t == tag)
                    if len(log) - 1 - last <= 63: wait_for(tag)
                    e('s_barrier')
            wait_for('W%d' % kk)
            if kk + 1 < 24: bl(kk + 1); e('s_waitcnt lgkmcnt(4)')
            else: e('s_waitcnt lgkmcnt(0)')
            mm(kk)
            if kk + 4 < 24: wll(kk + 4)
    e(Lst + ':')
    k.ts(2)
    e(f'''s_lshl_b32 s16, s13, 7
    s_lshl_b32 s17, s14, 2
    s_add_u32 s16, s16, s17
    s_mul_i32 s16, s16, 20
    s_mul_i32 s17, s12, 5
    s_add_u32 s16, s16, s17
    s_lshl_b32 s16, s16, 10
    s_add_u32 s16, s16, {L.PARTO}
    s_nop 7''')
    n = 0
    for T in range(4):
        e(f's_add_u32 s17, s16, {T*20480}')
        for p in range(5):
            t = 24 + 12 * (n % 4); n += 1
            for q in range(8):
                src = 16 * (2 * p + q // 4) + 4 * T + q % 4
                e(f'v_accvgpr_read_b32 v{t+q}, a{src}')
            for q in range(4): e(f'v_cvt_pk_bf16_f32 v{t+8+q}, v{t+2*q}, v{t+2*q+1}')
            if p == 4: e('s_add_u32 s17, s17, 4096')
            e(f'buffer_store_dwordx4 {R(t+8)}, v{vL16}, {srd}, s17 offen offset:{(p%4)*1024} {"sc1" if fuse else stf("fin")}')
    k.ts(3)
    if fuse:
        Lw = k.label('w0'); Lp = k.label('cpoll'); Lpo = k.label('cok'); Lnr = k.label('nored')
        e(f'''s_load_dwordx2 s[40:41], s[0:1], 88
        s_waitcnt vmcnt(0) lgkmcnt(0)
        s_barrier
        s_mov_b32 s44, s40
        s_mov_b32 s45, s41
        s_mov_b32 s46, 256
        s_mov_b32 s47, 0x20000
        s_cmp_lg_u32 s12, 0
        s_cbranch_scc1 {Lw}
        v_and_b32 v2, 63, v0
        s_lshl_b32 s16, s14, 2
        v_mov_b32 v3, s16
        v_mov_b32 v4, {OOB:#x}
        v_cmp_eq_u32 vcc, 0, v2
        v_cndmask_b32 v4, v4, v3, vcc
        v_mov_b32 v5, 1
        buffer_atomic_add v5, v4, s[44:47], 0 offen
        s_cmp_ge_u32 s13, 4
        s_cbranch_scc1 {Lw}
        s_mov_b32 s17, 0x100000''')
        e(Lp + ':')
        e(f'''buffer_load_dword v5, v3, s[44:47], 0 offen sc1
        s_waitcnt vmcnt(0)
        v_readfirstlane_b32 s18, v5
        s_cmp_ge_u32 s18, 8
        s_cbranch_scc1 {Lpo}
        s_sleep 4
        s_sub_u32 s17, s17, 1
        s_cbranch_scc0 {Lp}''')
        e(Lpo + ':')
        e(Lw + ':')
        e(f'''s_cmp_ge_u32 s13, 4
        s_cbranch_scc1 {Lnr}
        s_barrier
        s_lshl_b32 s19, s14, 2
        s_add_u32 s19, s19, s13
        s_mov_b32 s16, s12
        s_mov_b32 s8, s4
        s_mov_b32 s9, s5
        s_mov_b32 s10, 0x10000000
        s_mov_b32 s11, 0x20000
        s_mov_b32 s20, {L.X1}''')
        redln.emit(k, 'sc1')
        e(Lnr + ':')
    k.ts(4)
    k.ts_flush(11, srd, v0=250)
    e(Lx + ':')
    e('s_endpgm')
    return k, LDS_SIZE
```

```python
from asmgen import *
import layout as L
import ln
OOB = 0x80000000
N1, N2, N3, N4 = 3 * 96 * 20, 10 * 192, 30 * 20, 10 * 20
NW = N1 + N2 + N3 + N4
NWG = NW // 4

def gen(name='prep_kernel', NT=''):
    k = Kernel(name, vgpr=80, agpr=0, sgpr=64); e = k.e
    ws = 's[4:7]'; src = 's[8:11]'
    vL, vI, vG, vA, vL16, vT = 1, 2, 3, 4, 5, 6
    vD = 16
    vPk = 48
    Lx = k.label('exit'); S2 = k.label('s2'); S3 = k.label('s3'); S4 = k.label('s4')
    Lln = k.label('notln'); Lpk = k.label('pack')
    e(f's_cmp_ge_u32 s2, 128\ns_cbranch_scc1 {Lln}')
    ln.emit_ln(k, True, copy_x1=True)
    e('s_endpgm')
    e(Lln + ':')
    e(f'''s_sub_u32 s2, s2, 128
    s_cmp_ge_u32 s2, {NWG}
    s_cbranch_scc1 {Lx}
    s_load_dwordx2 s[12:13], s[0:1], 96
    s_load_dwordx4 s[16:19], s[0:1], 16
    s_load_dwordx4 s[20:23], s[0:1], 32
    s_load_dwordx4 s[24:27], s[0:1], 64
    v_lshrrev_b32 v{vT}, 6, v0
    v_and_b32 v{vL}, 63, v0
    s_nop 0
    v_readfirstlane_b32 s14, v{vT}
    v_lshlrev_b32 v{vL16}, 4, v{vL}
    s_lshl_b32 s15, s2, 2
    s_add_u32 s15, s15, s14
    s_add_u32 s28, s15, {N1 + N2}
    s_sub_u32 s29, s15, {N3 + N4}
    s_cmp_lt_u32 s15, {N3 + N4}
    s_cselect_b32 s15, s28, s29
    s_waitcnt lgkmcnt(0)
    s_mov_b32 s4, s12
    s_mov_b32 s5, s13
    s_mov_b32 s6, 0x10000000
    s_mov_b32 s7, 0x20000
    s_mov_b32 s11, 0x20000
    v_and_b32 v{vI}, 15, v{vL}
    v_lshrrev_b32 v{vG}, 4, v{vL}''')
    def gather_pack_store(jj_off, frag_off, frag_dst, addr_regs=None):
        for i in range(4):
            for jj in range(8):
                off = frag_off[i] + jj_off[jj]
                va = vA if addr_regs is None else addr_regs[jj]
                e(f's_mov_b32 s29, {off}')
                e(f'buffer_load_ushort v{vD+8*i+jj}, v{va}, {src}, s29 offen')
        for i in range(4):
            e(f's_waitcnt vmcnt({8*(3-i) + i})')
            for q in range(4):
                e(f'v_lshl_or_b32 v{vPk+4*i+q}, v{vD+8*i+2*q+1}, 16, v{vD+8*i+2*q}')
            frag_dst(i)
            e(f'buffer_store_dwordx4 v[{vPk+4*i}:{vPk+4*i+3}], v{vL16}, {ws}, s30 offen {NT}')
    ROWS = 144
    LB = 512
    vLw, vR1, vR2 = 12, 13, 14
    def tr_block(rowstride, pi_rows, sigma_cols, dst):
        e(f'''v_lshrrev_b32 v{vT}, 3, v{vL}
        v_mul_u32_u24 v{vLw}, {ROWS}, v{vT}
        v_and_b32 v{vT}, 7, v{vL}
        v_lshl_add_u32 v{vLw}, v{vT}, 4, v{vLw}
        s_mul_i32 s36, s14, {32*ROWS}
        s_add_u32 s36, s36, {LB}
        v_add_u32 v{vLw}, s36, v{vLw}''')
        for q in range(4):
            e(f's_mov_b32 s29, {q*8*rowstride}')
            e(f'buffer_load_dwordx4 v[{vD+4*q}:{vD+4*q+3}], v{vA}, {src}, s29 offen')
        e(f'''v_bfe_u32 v{vT}, v{vL}, 2, 2
        v_lshlrev_b32 v{vR1}, {2 if pi_rows else 3}, v{vG}
        v_add_u32 v{vR1}, v{vR1}, v{vT}
        v_mul_u32_u24 v{vR1}, {ROWS}, v{vR1}
        v_and_b32 v{vT}, 3, v{vL}
        v_lshl_add_u32 v{vR1}, v{vT}, {4 if sigma_cols else 3}, v{vR1}
        v_add_u32 v{vR1}, s36, v{vR1}''')
        second = (16 if pi_rows else 4) * ROWS
        for q in range(4):
            e(f's_waitcnt vmcnt({3-q})')
            e(f'ds_write_b128 v{vLw}, v[{vD+4*q}:{vD+4*q+3}] offset:{q*8*ROWS}')
        e('s_waitcnt lgkmcnt(0)')
        for i in range(4):
            coff = (64 * (i >> 1) + 8 * (i & 1)) if sigma_cols else 32 * i
            e(f'ds_read_b64_tr_b16 v[{vPk+4*i}:{vPk+4*i+1}], v{vR1} offset:{coff}')
            e(f'ds_read_b64_tr_b16 v[{vPk+4*i+2}:{vPk+4*i+3}], v{vR1} offset:{coff+second}')
        for i in range(4):
            e(f's_waitcnt lgkmcnt({2*(3-i)})')
            dst(i)
            e(f'buffer_store_dwordx4 v[{vPk+4*i}:{vPk+4*i+3}], v{vL16}, {ws}, s30 offen {NT}')
    e(f'''s_cmp_ge_u32 s15, {N1}
    s_cbranch_scc1 {S2}''')
    e(f'''s_mul_hi_u32 s31, s15, {(1<<32)//1920 + 1}
    s_mul_i32 s32, s31, 1920
    s_sub_u32 s32, s15, s32
    s_mul_hi_u32 s34, s32, {(1<<32)//96 + 1}
    s_mul_i32 s33, s34, 96
    s_sub_u32 s33, s32, s33
    s_cmp_eq_u32 s31, 0
    s_cselect_b32 s8, s16, s18
    s_cselect_b32 s9, s17, s19
    s_cmp_eq_u32 s31, 2
    s_cselect_b32 s8, s20, s8
    s_cselect_b32 s9, s21, s9
    s_mov_b32 s10, {640*12288}
    s_mul_i32 s35, s31, {L.WKP - L.WQP}
    s_add_u32 s35, s35, {L.WQP}''')
    assert L.WVP - L.WKP == L.WKP - L.WQP
    e(f'''v_lshrrev_b32 v{vT}, 3, v{vL}
    s_lshl_b32 s36, s34, 5
    v_add_u32 v{vT}, s36, v{vT}
    s_mov_b32 s37, 12288
    v_mul_lo_u32 v{vA}, v{vT}, s37
    s_lshl_b32 s36, s33, 7
    v_and_b32 v{vT}, 7, v{vL}
    v_lshl_add_u32 v{vA}, v{vT}, 4, v{vA}
    v_add_u32 v{vA}, s36, v{vA}''')
    def d1(i):
        e(f'''s_lshl_b32 s30, s33, 2
        s_add_u32 s30, s30, {i}
        s_mul_i32 s30, s30, 20
        s_add_u32 s30, s30, s34
        s_lshl_b32 s30, s30, 10
        s_add_u32 s30, s30, s35''')
    tr_block(12288, False, False, d1)
    e(f's_branch {Lx}')
    e(S2 + ':')
    e(f'''s_sub_u32 s15, s15, {N1}
    s_cmp_ge_u32 s15, {N2}
    s_cbranch_scc1 {S3}''')
    e(f'''s_mul_hi_u32 s34, s15, {(1<<32)//10 + 1}
    s_mul_i32 s33, s34, 10
    s_sub_u32 s33, s15, s33
    s_mov_b32 s8, s22
    s_mov_b32 s9, s23
    s_mov_b32 s10, {6144*1280}''')
    e(f'''v_lshrrev_b32 v{vT}, 3, v{vL}
    s_lshl_b32 s36, s34, 5
    v_add_u32 v{vT}, s36, v{vT}
    v_mul_u32_u24 v{vA}, 1280, v{vT}
    s_lshl_b32 s36, s33, 7
    v_and_b32 v{vT}, 7, v{vL}
    v_lshl_add_u32 v{vA}, v{vT}, 4, v{vA}
    v_add_u32 v{vA}, s36, v{vA}''')
    def d2(i):
        e(f'''s_lshl_b32 s30, s33, 2
        s_add_u32 s30, s30, {i}
        s_mul_i32 s30, s30, 192
        s_add_u32 s30, s30, s34
        s_lshl_b32 s30, s30, 10
        s_add_u32 s30, s30, {L.WOP}''')
    tr_block(1280, True, True, d2)
    e(f's_branch {Lx}')
    e(S3 + ':')
    e(f'''s_sub_u32 s15, s15, {N2}
    s_cmp_ge_u32 s15, {N3}
    s_cbranch_scc1 {S4}''')
    e(f'''s_mul_hi_u32 s34, s15, {(1<<32)//30 + 1}
    s_mul_i32 s33, s34, 30
    s_sub_u32 s33, s15, s33
    s_mov_b32 s8, s24
    s_mov_b32 s9, s25
    s_mov_b32 s10, {640*3840}''')
    e(f'''v_lshrrev_b32 v{vT}, 3, v{vL}
    s_lshl_b32 s36, s34, 5
    v_add_u32 v{vT}, s36, v{vT}
    v_mul_u32_u24 v{vA}, 3840, v{vT}
    s_lshl_b32 s36, s33, 7
    v_and_b32 v{vT}, 7, v{vL}
    v_lshl_add_u32 v{vA}, v{vT}, 4, v{vA}
    v_add_u32 v{vA}, s36, v{vA}''')
    def d3(i):
        e(f'''s_lshl_b32 s30, s33, 2
        s_add_u32 s30, s30, {i}
        s_mul_i32 s30, s30, 20
        s_add_u32 s30, s30, s34
        s_lshl_b32 s30, s30, 10
        s_add_u32 s30, s30, {L.WB1}''')
    tr_block(3840, False, False, d3)
    e(f's_branch {Lx}')
    e(S4 + ':')
    e(f'''s_sub_u32 s15, s15, {N3}
    s_mul_hi_u32 s34, s15, {(1<<32)//10 + 1}
    s_mul_i32 s33, s34, 10
    s_sub_u32 s33, s15, s33
    s_mov_b32 s8, s26
    s_mov_b32 s9, s27
    s_mov_b32 s10, {640*1280}''')
    e(f'''v_lshrrev_b32 v{vT}, 3, v{vL}
    s_lshl_b32 s36, s34, 5
    v_add_u32 v{vT}, s36, v{vT}
    v_mul_u32_u24 v{vA}, 1280, v{vT}
    s_lshl_b32 s36, s33, 7
    v_and_b32 v{vT}, 7, v{vL}
    v_lshl_add_u32 v{vA}, v{vT}, 4, v{vA}
    v_add_u32 v{vA}, s36, v{vA}''')
    def d4(i):
        e(f'''s_lshl_b32 s30, s33, 2
        s_add_u32 s30, s30, {i}
        s_mul_i32 s30, s30, 20
        s_add_u32 s30, s30, s34
        s_lshl_b32 s30, s30, 10
        s_add_u32 s30, s30, {L.WB2}''')
    tr_block(1280, False, True, d4)
    e(Lx + ':')
    e('s_endpgm')
    return k, NWG + 128, 512 + 4 * 32 * 144
```

```python
import struct
from asmgen import *
import layout as L
def fbits(x): return struct.unpack('<I', struct.pack('<f', x))[0]

def gen(name, from_input, prof=None):
    k = Kernel(name, vgpr=248, agpr=0, sgpr=48); e = k.e
    srd = 's[4:7]'
    R = lambda b, n=4: f'v[{b}:{b+n-1}]'
    vA, vT0, vT1, vS, vLd, vPa, vXa = 1, 2, 3, 4, 5, 14, 15
    vX = 16
    vF = 36
    vPp = 80
    Lx = k.label('exit')
    e(f'''s_cmp_ge_u32 s2, 256
    s_cbranch_scc1 {Lx}
    s_load_dwordx2 s[12:13], s[0:1], 96
    s_load_dwordx2 s[14:15], s[0:1], 0
    v_lshrrev_b32 v{vT0}, 6, v0
    v_and_b32 v{vT1}, 63, v0
    s_lshr_b32 s19, s2, 1
    v_readfirstlane_b32 s16, v{vT0}
    s_and_b32 s18, s2, 1
    s_waitcnt lgkmcnt(0)
    s_mov_b32 s4, s12
    s_mov_b32 s5, s13
    s_mov_b32 s6, 0x10000000
    s_mov_b32 s7, 0x20000''')
    if from_input:
        e(f's_mov_b32 s8, s14\ns_mov_b32 s9, s15\ns_mov_b32 s10, {2048*1280}\ns_mov_b32 s11, 0x20000\ns_mov_b32 s20, 0')
    else:
        e(f's_mov_b32 s8, s12\ns_mov_b32 s9, s13\ns_mov_b32 s10, 0x10000000\ns_mov_b32 s11, 0x20000\ns_mov_b32 s20, {L.X1}')
    e(f'''v_and_b32 v{vT0}, 7, v{vT1}
    v_bfe_u32 v{vS}, v{vT1}, 3, 2
    v_lshrrev_b32 v{vLd}, 5, v{vT1}
    s_lshl_b32 s17, s18, 7
    v_lshlrev_b32 v{vPa}, 4, v{vT0}
    v_lshl_add_u32 v{vPa}, v{vS}, 8, v{vPa}
    v_lshl_add_u32 v{vPa}, v{vLd}, 10, v{vPa}
    v_add_u32 v{vPa}, s17, v{vPa}
    s_lshl_b32 s17, s2, 3
    v_add_u32 v{vXa}, s17, v{vT0}
    v_mul_u32_u24 v{vXa}, 1280, v{vXa}
    v_lshl_add_u32 v{vXa}, v{vS}, 4, v{vXa}
    v_lshl_add_u32 v{vXa}, v{vLd}, 6, v{vXa}
    s_mul_i32 s17, s16, 640
    s_add_u32 s20, s20, s17
    s_add_u32 s21, s17, {L.X1}
    s_mul_i32 s22, s19, 20
    s_mul_i32 s23, s16, 10
    s_add_u32 s22, s22, s23
    s_lshl_b32 s22, s22, 10
    s_add_u32 s34, s22, {L.XNB}
    s_add_u32 s22, s22, {L.PARTO}''')
    XS = 128 * 20 * 1024
    for x in range(8): e(f's_add_u32 s{24+x}, s22, {x*XS}')
    e(f'v_add_u32 v6, 0x1000, v{vPa}\nv_add_u32 v7, 0x2000, v{vPa}')
    for q in range(5): e(f'buffer_load_dwordx4 {R(vX+4*q)}, v{vXa}, s[8:11], s20 offen offset:{q*128}')
    pa = lambda q: (vPa, q * 2048) if q < 2 else (6, (q - 2) * 2048) if q < 4 else (7, 0)
    for q in range(5):
        for x in range(8):
            a_, off = pa(q)
            e(f'buffer_load_dwordx4 {R(vPp + 32*q + 4*x)}, v{a_}, {srd}, s{24+x} offen offset:{off}')
    for q in range(5):
        e(f's_waitcnt vmcnt({8*(4-q) + q})')
        r = vPp + 32 * q; f = vF + 8 * q
        for i in range(4):
            e(f'v_lshlrev_b32 v{f+2*i}, 16, v{r+i}')
            e(f'v_and_b32 v{f+2*i+1}, 0xffff0000, v{r+i}')
        for x in range(1, 8):
            for i in range(4):
                t = 8 + 2 * (i % 2)
                e(f'v_lshlrev_b32 v{t}, 16, v{r+4*x+i}')
                e(f'v_and_b32 v{t+1}, 0xffff0000, v{r+4*x+i}')
                e(f'v_pk_add_f32 {R(f+2*i,2)}, {R(f+2*i,2)}, v[{t}:{t+1}]')
        for i in range(4):
            xr = vX + 4 * q + i
            e(f'''v_cvt_pk_bf16_f32 v8, v{f+2*i}, v{f+2*i+1}
            v_lshlrev_b32 v{f+2*i}, 16, v8
            v_and_b32 v{f+2*i+1}, 0xffff0000, v8
            v_lshlrev_b32 v10, 16, v{xr}
            v_and_b32 v11, 0xffff0000, v{xr}
            v_pk_add_f32 {R(f+2*i,2)}, {R(f+2*i,2)}, v[10:11]
            v_cvt_pk_bf16_f32 v{xr}, v{f+2*i}, v{f+2*i+1}
            v_lshlrev_b32 v{f+2*i}, 16, v{xr}
            v_and_b32 v{f+2*i+1}, 0xffff0000, v{xr}''')
        e(f'buffer_store_dwordx4 {R(vX+4*q)}, v{vXa}, {srd}, s21 offen offset:{q*128} {stf("x1")}')
    e(f'''v_and_b32 v{vT1}, 63, v0
    v_and_b32 v{vT0}, 7, v{vT1}
    v_lshlrev_b32 v{vLd}, 2, v{vT0}
    s_lshl_b32 s17, s16, 5
    v_add_u32 v{vA}, s17, v{vLd}''')
    def reduce_row(off):
        e(f'''v_add_f32_dpp v{vS}, v{vS}, v{vS} row_ror:8 row_mask:0xf bank_mask:0xf
        v_mov_b32 v{vT0}, v{vS}
        v_permlane16_swap_b32 v{vS}, v{vT0}
        v_add_f32 v{vS}, v{vS}, v{vT0}
        v_mov_b32 v{vT0}, v{vS}
        v_permlane32_swap_b32 v{vS}, v{vT0}
        v_add_f32 v{vS}, v{vS}, v{vT0}
        ds_write_b32 v{vA}, v{vS} offset:{off}
        s_waitcnt lgkmcnt(0)
        s_barrier
        ds_read_b32 v{vS}, v{vLd} offset:{off}
        ds_read_b32 v{vT0}, v{vLd} offset:{off+32}
        s_waitcnt lgkmcnt(0)
        v_add_f32 v{vS}, v{vS}, v{vT0}''')
    e(f'v_pk_add_f32 v[6:7], {R(vF,2)}, {R(vF+2,2)}')
    for i in range(2, 20): e(f'v_pk_add_f32 v[6:7], v[6:7], {R(vF+2*i,2)}')
    e(f'v_add_f32 v{vS}, v6, v7')
    reduce_row(0)
    e(f'v_mul_f32 v6, {fbits(-1/640):#x}, v{vS}\nv_mov_b32 v7, v6')
    for i in range(20): e(f'v_pk_add_f32 {R(vF+2*i,2)}, {R(vF+2*i,2)}, v[6:7]')
    e(f'v_pk_mul_f32 v[6:7], {R(vF,2)}, {R(vF,2)}')
    for i in range(1, 20): e(f'v_pk_fma_f32 v[6:7], {R(vF+2*i,2)}, {R(vF+2*i,2)}, v[6:7]')
    e(f'v_add_f32 v{vS}, v6, v7')
    reduce_row(64)
    e(f'''v_mov_b32 v{vT0}, {fbits(1e-5):#x}
    v_fmac_f32 v{vT0}, {fbits(1/640):#x}, v{vS}
    v_rsq_f32 v6, v{vT0}''')
    e('v_mov_b32 v7, v6')
    for i in range(20): e(f'v_pk_mul_f32 {R(vF+2*i,2)}, {R(vF+2*i,2)}, v[6:7]')
    for i in range(20): e(f'v_cvt_pk_bf16_f32 v{vX+i}, v{vF+2*i}, v{vF+2*i+1}')
    e(f'v_add_u32 v6, 0x1000, v{vPa}\nv_add_u32 v7, 0x2000, v{vPa}')
    for q in range(5):
        a_, off = pa(q)
        e(f'buffer_store_dwordx4 {R(vX+4*q)}, v{a_}, {srd}, s34 offen offset:{off} {stf("redln")}')
    e(Lx + ':')
    e('s_endpgm')
    return k, 128
```

```python
import struct
from asmgen import *
import layout as L
def fbits(x): return struct.unpack('<I', struct.pack('<f', x))[0]

def gen(name='attnb_kernel', force_fallback=False, prof=None, K8=1):
    k = Kernel(name, vgpr=200, agpr=0, sgpr=102 if prof is not None else 48); e = k.e; k.prof = prof
    srd = 's[4:7]'
    vL16, vT0, vT1, vT2 = 1, 2, 3, 4
    vQ = 8
    vC = 24
    vO = 56
    vS = 88
    vP = 120
    vKV = 136
    R = lambda b, n=4: f'v[{b}:{b+n-1}]'
    Lx = k.label('exit')
    e(f'''s_cmp_ge_u32 s2, 256
    s_cbranch_scc1 {Lx}
    s_load_dwordx2 s[12:13], s[0:1], 96''')
    k.ts(0)
    e(f'''v_lshrrev_b32 v{vT0}, 6, v0
    v_and_b32 v{vT1}, 63, v0
    s_nop 0
    v_readfirstlane_b32 s16, v{vT0}
    v_lshlrev_b32 v{vL16}, 4, v{vT1}
    s_and_b32 s17, s2, 7
    s_lshl_b32 s17, s17, 2
    s_lshr_b32 s18, s2, 3
    s_and_b32 s19, s18, 3
    s_add_u32 s17, s17, s19
    s_lshr_b32 s18, s18, 2
    s_waitcnt lgkmcnt(0)
    s_mov_b32 s4, s12
    s_mov_b32 s5, s13
    s_mov_b32 s6, 0x10000000
    s_mov_b32 s7, 0x20000
    s_lshl_b32 s20, s17, 17
    s_add_u32 s21, s20, {L.KB}
    s_add_u32 s22, s20, {L.VB}
    s_lshl_b32 s23, s18, 3
    s_lshl_b32 s24, s16, 1
    s_add_u32 s23, s23, s24
    s_lshl_b32 s24, s23, 11
    s_add_u32 s24, s24, s20
    s_add_u32 s24, s24, {L.QB}''')
    for q in range(4):
        e(f'buffer_load_dwordx4 {R(vQ+4*q)}, v{vL16}, {srd}, s24 offen offset:{q*1024}')
    def kvload(slot, sK, sV):
        b = vKV + 16 * slot
        e(f'''buffer_load_dwordx4 {R(b)}, v{vL16}, {srd}, s{sK} offen
        buffer_load_dwordx4 {R(b+4)}, v{vL16}, {srd}, s{sK} offen offset:1024
        buffer_load_dwordx4 {R(b+8)}, v{vL16}, {srd}, s{sV} offen
        buffer_load_dwordx4 {R(b+12)}, v{vL16}, {srd}, s{sV} offen offset:1024
        s_add_u32 s{sK}, s{sK}, 2048
        s_add_u32 s{sV}, s{sV}, 2048''')
    def smfma(qt, slot, cin):
        b = vKV + 16 * slot; s = vS + 16 * qt
        e(f'v_mfma_f32_32x32x16_bf16 {R(s,16)}, {R(b)}, {R(vQ+8*qt)}, {cin}')
        e(f'v_mfma_f32_32x32x16_bf16 {R(s,16)}, {R(b+4)}, {R(vQ+8*qt+4)}, {R(s,16)}')
    def rowmax(qt, dst):
        s = vS + 16 * qt
        e(f'v_max3_f32 v{dst}, v{s}, v{s+1}, v{s+2}')
        for i in range(3, 15, 2): e(f'v_max3_f32 v{dst}, v{dst}, v{s+i}, v{s+i+1}')
        e(f'v_max_f32 v{dst}, v{dst}, v{s+15}')
    def xhalfmax(dst):
        e(f'''v_mov_b32 v{vT2}, v{dst}
        v_permlane32_swap_b32 v{dst}, v{vT2}
        v_max_f32 v{dst}, v{dst}, v{vT2}''')
    def setC(qt, m):
        for i in range(16): e(f'v_sub_f32 v{vC+16*qt+i}, 0, v{m}')
    e(f's_mov_b32 s25, s21\ns_mov_b32 s26, s22')
    kvload(0, 25, 26)
    e('s_waitcnt vmcnt(0)')
    for qt in range(2): smfma(qt, 0, '0')
    for qt in range(2):
        rowmax(qt, vT0 + qt); xhalfmax(vT0 + qt); setC(qt, vT0 + qt)
    k.ts(1)
    Lmain = k.label('main'); Lloop = k.label('loop'); Lfb = k.label('fb'); Ldone = k.label('done')
    e('s_mov_b32 s28, 0')
    e(Lmain + ':')
    e(f's_mov_b32 s25, s21\ns_mov_b32 s26, s22')
    kvload(0, 25, 26); kvload(1, 25, 26)
    for i in range(32): e(f'v_mov_b32 v{vO+i}, 0')
    def smf(qt, slot, part):
        b = vKV + 16 * slot; s_ = vS + 16 * qt
        if part == 0: e(f'v_mfma_f32_32x32x16_bf16 {R(s_,16)}, {R(b)}, {R(vQ+8*qt)}, {R(vC+16*qt,16)}')
        elif K8: e(f'v_mfma_f32_32x32x8_bf16 {R(s_,16)}, {R(b+4,2)}, {R(vQ+8*qt+4,2)}, {R(s_,16)}')
        else: e(f'v_mfma_f32_32x32x16_bf16 {R(s_,16)}, {R(b+4)}, {R(vQ+8*qt+4)}, {R(s_,16)}')
    def pvm(qt, slot, part):
        b = vKV + 16 * slot; o = vO + 16 * qt; p = vP + 8 * qt
        e(f'v_mfma_f32_32x32x16_bf16 {R(o,16)}, {R(b+8+4*part)}, {R(p+4*part)}, {R(o,16)}')
    pending = [None]
    def half(qt, slot, nq, nslot, xtra=()):
        s_ = vS + 16 * qt; p = vP + 8 * qt
        ex = lambda i: e(f'v_exp_f32 v{s_+i}, v{s_+i}')
        cv = lambda i: e(f'v_cvt_pk_bf16_f32 v{p+i}, v{s_+2*i}, v{s_+2*i+1}')
        xtra = list(xtra)
        for i in range(4): ex(i)
        if pending[0] is not None: pvm(*pending[0], 1)
        ex(4); ex(5)
        if xtra: e(xtra.pop(0))
        ex(6); ex(7)
        if nq is not None: smf(nq, nslot, 0)
        for i in range(4): cv(i)
        ex(8); ex(9)
        if nq is not None: smf(nq, nslot, 1)
        ex(10); ex(11)
        if xtra: e(xtra.pop(0))
        ex(12); ex(13)
        pvm(qt, slot, 0)
        ex(14); ex(15)
        for i in range(4, 8): cv(i)
        pending[0] = (qt, slot)
    def tile(slot, load_slot, last=False, nwait=None, vwait=None):
        xk = xv = ()
        if load_slot is not None:
            b_ = vKV + 16 * load_slot
            xk = (f'buffer_load_dwordx4 {R(b_)}, v{vL16}, {srd}, s25 offen', (f'buffer_load_dwordx2 {R(b_+4,2)}, v{vL16}, {srd}, s25 offen offset:1024' if K8 else f'buffer_load_dwordx4 {R(b_+4)}, v{vL16}, {srd}, s25 offen offset:1024') + '\ns_add_u32 s25, s25, 2048')
            xv = (f'buffer_load_dwordx4 {R(b_+8)}, v{vL16}, {srd}, s26 offen', f'buffer_load_dwordx4 {R(b_+12)}, v{vL16}, {srd}, s26 offen offset:1024\ns_add_u32 s26, s26, 2048')
        if vwait is not None: e(f's_waitcnt vmcnt({vwait})')
        half(0, slot, 1, slot, xk)
        if not last:
            e(f's_waitcnt vmcnt({nwait})')
            half(1, slot, 0, (slot + 1) % 3, xv)
        else:
            half(1, slot, None, None)
    e('s_waitcnt vmcnt(4)')
    smf(0, 0, 0); smf(0, 0, 1)
    tile(0, 2, nwait=4, vwait=4)
    e('s_mov_b32 s27, 0')
    e(Lloop + ':')
    for slot in (1, 2, 0): tile(slot, (slot + 2) % 3, nwait=4, vwait=4)
    e(f's_add_u32 s27, s27, 1\ns_cmp_lt_u32 s27, 20\ns_cbranch_scc1 {Lloop}')
    tile(1, 0, nwait=4, vwait=4)
    tile(2, None, nwait=2, vwait=4)
    tile(0, None, last=True, vwait=0)
    pvm(*pending[0], 1)
    k.ts(2)
    for qt in range(2):
        l = vT0 + qt
        e(f'''v_mov_b32 v{l}, v{vO+16*qt+8}
        v_mov_b32 v{vT2}, v{l}
        v_permlane32_swap_b32 v{vT2}, v{l}''')
    e(f'''s_cmp_eq_u32 s28, 1
    s_cbranch_scc1 {Ldone}
    v_max_f32 v{vT2}, v{vT0}, v{vT1}
    v_cmp_nge_f32 vcc, {fbits(2.0**30):#x}, v{vT2}
    v_cmp_u_f32 s[30:31], v{vT0}, v{vT1}
    s_or_b64 s[32:33], vcc, s[30:31]''')
    e('s_movk_i32 s34, 0x207')
    for i in range(32):
        e(f'v_cmp_class_f32 vcc, v{vO+i}, s34')
        e('s_or_b64 s[32:33], s[32:33], vcc')
    e('s_mov_b64 vcc, s[32:33]')
    if force_fallback: e('s_mov_b64 vcc, -1')
    e(f's_cbranch_vccz {Ldone}')
    e(f'''s_mov_b32 s25, s21
    s_mov_b32 s27, 0
    v_mov_b32 v{vP}, 0xff800000
    v_mov_b32 v{vP+1}, 0xff800000''')
    e(Lfb + ':')
    e(f'''buffer_load_dwordx4 {R(vKV)}, v{vL16}, {srd}, s25 offen
    buffer_load_dwordx4 {R(vKV+4)}, v{vL16}, {srd}, s25 offen offset:1024
    s_add_u32 s25, s25, 2048
    s_waitcnt vmcnt(0)''')
    for qt in range(2): smfma(qt, 0, '0')
    for qt in range(2):
        rowmax(qt, vT0 + qt)
        e(f'v_max_f32 v{vP+qt}, v{vP+qt}, v{vT0+qt}')
    e(f's_add_u32 s27, s27, 1\ns_cmp_lt_u32 s27, 64\ns_cbranch_scc1 {Lfb}')
    for qt in range(2):
        xhalfmax(vP + qt); setC(qt, vP + qt)
    e(f's_mov_b32 s28, 1\ns_branch {Lmain}')
    e(Ldone + ':')
    a0, a1, a2, tq, th, tc, tt = vKV, vKV + 1, vKV + 2, vKV + 3, vKV + 4, vKV + 5, vKV + 6
    e(f'''v_and_b32 v{tq}, 63, v0
    v_lshrrev_b32 v{th}, 5, v{tq}
    v_and_b32 v{tt}, 15, v{tq}
    v_lshlrev_b32 v{tt}, 4, v{tt}
    v_bfe_u32 v{tc}, v{tq}, 4, 1
    v_mul_u32_u24 v{tc}, 20480, v{tc}
    v_add_u32 v{tt}, v{tt}, v{tc}
    s_mul_i32 s25, s17, 20
    v_lshlrev_b32 v{th}, 2, v{th}''')
    for (dst, add) in ((a0, 0), (a1, 8), (a2, 16)):
        e(f'''v_add_u32 v{tc}, s25, v{th}
        v_add_u32 v{tc}, {add}, v{tc}
        v_lshrrev_b32 v{dst}, 5, v{tc}
        v_lshlrev_b32 v{dst}, 10, v{dst}
        v_bfe_u32 v{tq}, v{tc}, 3, 2
        v_lshl_add_u32 v{dst}, v{tq}, 8, v{dst}
        v_bfe_u32 v{tq}, v{tc}, 2, 1
        v_lshl_add_u32 v{dst}, v{tq}, 3, v{dst}
        v_add_u32 v{dst}, v{dst}, v{tt}''')
    e(f'''v_cmp_eq_u32 vcc, 0, v{th}
    v_mov_b32 v{tq}, 0x80000000
    v_cndmask_b32 v{a2}, v{tq}, v{a2}, vcc
    s_mul_i32 s24, s23, 40960
    s_add_u32 s24, s24, {L.OB2}''')
    for qt in range(2):
        o = vO + 16 * qt; p = vP + 8 * qt
        e(f'v_rcp_f32 v{vT2}, v{vT0+qt}')
        for i in range(12): e(f'v_mul_f32 v{o+i}, v{o+i}, v{vT2}')
        for i in range(6): e(f'v_cvt_pk_bf16_f32 v{p+i}, v{o+2*i}, v{o+2*i+1}')
        if qt: e('s_add_u32 s24, s24, 40960')
        e(f'buffer_store_dwordx2 {R(p,2)}, v{a0}, {srd}, s24 offen {stf("attnb")}')
        e(f'buffer_store_dwordx2 {R(p+2,2)}, v{a1}, {srd}, s24 offen {stf("attnb")}')
        e(f'buffer_store_dwordx2 {R(p+4,2)}, v{a2}, {srd}, s24 offen {stf("attnb")}')
    k.ts(3)
    k.ts_flush(4, srd, v0=190)
    e(Lx + ':')
    e('s_endpgm')
    return k, 0
```

```python
import math, struct
from asmgen import *
import layout as L
import redln
OOB = 0x80000000
LDS_SIZE = 96 * 1024

def gen(name='fin_kernel', prof=None, twin=False, fuse=False):
    k = Kernel(name, vgpr=256, agpr=240, sgpr=102 if prof is not None else 64); e = k.e; k.prof = prof
    srd = 's[4:7]'
    R = lambda b, n=4: f'v[{b}:{b+n-1}]'
    vL16, vL16b, vL16c, vKM, vVM, vT0, vT1, vT2 = 1, 2, 3, 4, 5, 6, 7, 8
    vOOB, vLw, vLw2 = 9, 240, 241
    vCM, vCD, vONES = 12, 16, 20
    vS, vP, vLs, vO, vOp = 24, 44, 54, 64, 80
    vQ, vK, vKm = 88, 136, 184
    vV, vVm = 88, 136
    Lx = k.label('exit')
    cexp = (192 ** -0.5) * math.log2(math.e)
    cbits = struct.unpack('<I', struct.pack('<f', cexp))[0]
    e(f'''s_cmp_ge_u32 s2, 256
    s_cbranch_scc1 {Lx}
    s_load_dwordx2 s[8:9], s[0:1], 96''')
    k.ts(0)
    e(f'''v_lshrrev_b32 v{vT0}, 6, v0
    v_and_b32 v{vT1}, 63, v0
    s_and_b32 s13, s2, 7
    v_readfirstlane_b32 s12, v{vT0}
    v_lshlrev_b32 v{vL16}, 4, v{vT1}
    v_add_u32 v{vL16b}, 0x1000, v{vL16}
    v_add_u32 v{vL16c}, 0x2000, v{vL16}
    s_lshr_b32 s14, s2, 3
    s_lshl_b32 s15, s13, 2
    s_add_u32 s15, s15, s12
    s_waitcnt lgkmcnt(0)
    s_mov_b32 s4, s8
    s_mov_b32 s5, s9
    s_mov_b32 s6, 0x10000000
    s_mov_b32 s7, 0x20000
    s_mov_b32 s27, {cbits:#x}''')
    i16, g = vT0, vT2
    e(f'''v_and_b32 v{i16}, 15, v{vT1}
    v_lshrrev_b32 v{g}, 4, v{vT1}
    v_mov_b32 v{vOOB}, {OOB:#x}
    v_lshlrev_b32 v10, 4, v{i16}
    v_lshl_add_u32 v10, v{g}, 7, v10
    v_cmp_gt_u32 vcc, 8, v{i16}
    v_cndmask_b32 v{vKM}, v{vOOB}, v10, vcc
    v_lshlrev_b32 v10, 3, v{vT1}
    v_cmp_gt_u32 vcc, 32, v{vT1}
    v_cndmask_b32 v{vVM}, v{vOOB}, v10, vcc
    v_mov_b32 v10, 0xf149f2ca
    v_cmp_le_u32 vcc, 2, v{g}
    v_cndmask_b32 v{vCM}, 0, v10, vcc
    v_mov_b32 v{vCM+1}, v{vCM}
    v_mov_b32 v{vCM+2}, v{vCM}
    v_mov_b32 v{vCM+3}, v{vCM}
    v_lshlrev_b32 v11, 2, v{g}''')
    for r in range(4):
        e(f'''v_add_u32 v{vT1}, {r}, v11
        v_cmp_gt_u32 vcc, v{vT1}, v{i16}
        v_cndmask_b32 v{vCD+r}, 0, v10, vcc''')
    for r in range(4): e(f'v_mov_b32 v{vONES+r}, 0x3f803f80')
    e(f'''s_mul_i32 s16, s12, 6144
    v_add_u32 v{vLw}, s16, v{vL16}
    v_add_u32 v{vLw2}, {2*24576}, v{vLw}''')
    vLs_ = [vL16, vL16b, vL16c]
    SM0, S00, SM1, S10, S11 = vS, vS + 4, vS + 8, vS + 12, vS + 16
    PM0, PT0, PM1, PT1 = vP, vP + 2, vP + 4, vP + 6
    L0, L1 = vLs + 2, vLs + 6
    def softmax(regs, mx, t):
        e(f'v_max3_f32 v{mx}, v{regs[0]}, v{regs[1]}, v{regs[2]}')
        r = regs[3:]
        while r:
            if len(r) >= 2: e(f'v_max3_f32 v{mx}, v{mx}, v{r[0]}, v{r[1]}'); r = r[2:]
            else: e(f'v_max_f32 v{mx}, v{mx}, v{r[0]}'); r = r[1:]
        e(f'''v_mov_b32 v{t}, v{mx}
        v_permlane32_swap_b32 v{mx}, v{t}
        v_max_f32 v{mx}, v{mx}, v{t}
        v_mov_b32 v{t}, v{mx}
        v_permlane16_swap_b32 v{mx}, v{t}
        v_max_f32 v{mx}, v{mx}, v{t}
        v_mul_f32 v{mx}, s27, v{mx}''')
        for x in regs: e(f'v_fma_f32 v{x}, v{x}, s27, -v{mx}')
        for x in regs: e(f'v_exp_f32 v{x}, v{x}')
    e(f'''s_mul_i32 s16, s12, 10
    s_mul_i32 s16, s16, 192
    s_mul_i32 s17, s13, 24
    s_add_u32 s16, s16, s17
    s_lshl_b32 s16, s16, 10
    s_add_u32 s16, s16, {L.WOP}''')
    for i in range(10): e(f's_add_u32 s{30+i}, s16, {i*192*1024}')
    Lp2 = k.label('phase2'); Ldma = k.label('odma')
    if twin: e(f's_cmp_lt_u32 s14, 30\ns_cbranch_scc1 {Ldma}')
    AR = lambda b_, n=4: f'a[{b_}:{b_+n-1}]'
    def seg_offsets(seg, dQ, dK, dV, dKM, dVM):
        e(f'''s_lshl_b32 s17, s14, 1
        s_add_u32 s17, s17, {seg}
        s_and_b32 s17, s17, {L.RING-1}
        s_lshl_b32 s16, s15, {L.RL}
        s_add_u32 s16, s16, s17
        s_mul_i32 s16, s16, 12288
        s_add_u32 s{dQ}, s16, {L.QT}
        s_add_u32 s{dK}, s16, {L.KT}
        s_add_u32 s{dV}, s16, {L.VT}
        s_lshl_b32 s17, s17, 5
        s_add_u32 s17, s17, s15
        s_mul_i32 s17, s17, 3072
        s_add_u32 s{dKM}, s17, {L.KM}
        s_add_u32 s{dVM}, s17, {L.VM}''')
    seg_offsets(0, 20, 21, 22, 23, 24)
    seg_offsets(1, 40, 41, 42, 43, 44)
    for i in range(12): e(f'buffer_load_dwordx4 {R(vK+4*i)}, v{vLs_[i//4]}, {srd}, s21 offen offset:{(i%4)*1024}')
    for j in range(6): e(f'buffer_load_dwordx4 {R(vKm+4*j)}, v{vKM}, {srd}, s23 offen offset:{j*512}')
    for i in range(12): e(f'buffer_load_dwordx4 {R(vQ+4*i)}, v{vLs_[i//4]}, {srd}, s20 offen offset:{(i%4)*1024}')
    for i in range(12): e(f'buffer_load_dwordx4 {AR(4*i)}, v{vLs_[i//4]}, {srd}, s41 offen offset:{(i%4)*1024}')
    for j in range(6): e(f'buffer_load_dwordx4 {AR(48+4*j)}, v{vKM}, {srd}, s43 offen offset:{j*512}')
    for i in range(12): e(f'buffer_load_dwordx4 {AR(72+4*i)}, v{vLs_[i//4]}, {srd}, s40 offen offset:{(i%4)*1024}')
    for seg in range(2):
        for j in range(6):
            if seg == 0:
                e(f's_waitcnt vmcnt({35-j})')
                q0 = R(vQ + 4 * j); q1 = R(vQ + 24 + 4 * j); k0 = R(vK + 4 * j); k1 = R(vK + 24 + 4 * j); km = R(vKm + 4 * j)
            else:
                q0 = AR(72 + 4 * j); q1 = AR(72 + 24 + 4 * j); k0 = AR(4 * j); k1 = AR(24 + 4 * j); km = AR(48 + 4 * j)
            f_ = j == 0
            e(f'v_mfma_f32_16x16x32_bf16 {R(SM0)}, {km}, {q0}, {R(vCM) if f_ else R(SM0)}')
            e(f'v_mfma_f32_16x16x32_bf16 {R(S00)}, {k0}, {q0}, {R(vCD) if f_ else R(S00)}')
            e(f'v_mfma_f32_16x16x32_bf16 {R(SM1)}, {km}, {q1}, {R(vCM) if f_ else R(SM1)}')
            e(f'v_mfma_f32_16x16x32_bf16 {R(S10)}, {k0}, {q1}, ' + ('0' if f_ else R(S10)))
            e(f'v_mfma_f32_16x16x32_bf16 {R(S11)}, {k1}, {q1}, {R(vCD) if f_ else R(S11)}')
        if k.prof is not None: k.ts(5 + 3*seg)
        sV, sVM_ = (22, 24) if seg == 0 else (42, 44)
        for i in range(12): e(f'buffer_load_dwordx4 {R(vV+4*i)}, v{vLs_[i//4]}, {srd}, s{sV} offen offset:{(i%4)*1024}')
        for i in range(12): e(f'buffer_load_dwordx2 {R(vVm+2*i,2)}, v{vVM}, {srd}, s{sVM_} offen offset:{i*256}')
        softmax(list(range(SM0, SM0 + 8)), vT0, vT1)
        softmax(list(range(SM1, SM1 + 12)), vT2, 10)
        for (dst, src) in ((PM0, SM0), (PT0, S00), (PM1, SM1), (PT1, S10), (PT1 + 2, S11)):
            e(f'v_cvt_pk_bf16_f32 v{dst}, v{src}, v{src+1}')
            e(f'v_cvt_pk_bf16_f32 v{dst+1}, v{src+2}, v{src+3}')
        e(f'''v_mfma_f32_16x16x16_bf16 {R(L0)}, {R(vONES,2)}, {R(PM0,2)}, 0
        v_mfma_f32_16x16x16_bf16 {R(L1)}, {R(vONES,2)}, {R(PM1,2)}, 0
        v_mfma_f32_16x16x16_bf16 {R(L0)}, {R(vONES,2)}, {R(PT0,2)}, {R(L0)}
        v_mfma_f32_16x16x32_bf16 {R(L1)}, {R(vONES)}, {R(PT1)}, {R(L1)}
        v_rcp_f32 v10, v{L0}
        v_rcp_f32 v11, v{L1}''')
        if k.prof is not None: k.ts(6 + 3*seg)
        e('s_waitcnt vmcnt(0)')
        if seg == 1:
            for kk in range(2):
                for i in range(10):
                    b = 160 + 40 * kk + 4 * i
                    e(f'buffer_load_dwordx4 a[{b}:{b+3}], v{vL16}, {srd}, s{30+i} offen offset:{kk*1024}')
        for j in range(6):
            for t in range(2):
                et = 2 * j + t
                o0 = vO + 8 * t; o1 = o0 + 4
                vt = vV + 4 * et; vm = vVm + 2 * et
                e(f'v_mfma_f32_16x16x16_bf16 {R(o0)}, {R(vm,2)}, {R(PM0,2)}, 0')
                e(f'v_mfma_f32_16x16x16_bf16 {R(o1)}, {R(vm,2)}, {R(PM1,2)}, 0')
                e(f'v_mfma_f32_16x16x16_bf16 {R(o0)}, {R(vt,2)}, {R(PT0,2)}, {R(o0)}')
                e(f'v_mfma_f32_16x16x32_bf16 {R(o1)}, {R(vt)}, {R(PT1)}, {R(o1)}')
            for Tq in range(2):
                inv = 10 + Tq
                p = vOp + 4 * Tq
                for t in range(2):
                    o = vO + 8 * t + 4 * Tq
                    for r in range(4): e(f'v_mul_f32 v{o+r}, v{o+r}, v{inv}')
                    e(f'v_cvt_pk_bf16_f32 v{p+2*t}, v{o}, v{o+1}')
                    e(f'v_cvt_pk_bf16_f32 v{p+2*t+1}, v{o+2}, v{o+3}')
                Tt = 2 * seg + Tq
                base = vLw if Tt < 2 else vLw2
                e(f'ds_write_b128 v{base}, {R(p)} offset:{(Tt % 2)*24576 + j*1024}')
    if k.prof is not None: k.ts(10)
    NRING = 4
    vA = 24
    vB = 184
    def areg(kk, i):
        if kk < 2: return f'a[{160+40*kk+4*i}:{160+40*kk+4*i+3}]'
        return R(vA + 40 * (kk % NRING) + 4 * i)
    def wl(kk):
        for i in range(10):
            e(f'buffer_load_dwordx4 {areg(kk, i)}, v{vLs_[0]}, {srd}, s{30+i} offen offset:{(kk%4)*1024}')
        if kk % 4 == 3:
            for i in range(10): e(f's_add_u32 s{30+i}, s{30+i}, 4096')
    def bl(kk):
        for T in range(4):
            b = vB + 16 * (kk % 2) + 4 * T
            e(f'ds_read_b128 {R(b)}, v{vL16 if T < 2 else vT0} offset:{(T % 2)*24576 + kk*1024}')
    def wl1(kk, i):
        e(f'buffer_load_dwordx4 {areg(kk, i)}, v{vLs_[0]}, {srd}, s{30+i} offen offset:{(kk%4)*1024}')
        if kk % 4 == 3: e(f's_add_u32 s{30+i}, s{30+i}, 4096')
    def bl1(kk, T):
        b = vB + 16 * (kk % 2) + 4 * T
        e(f'ds_read_b128 {R(b)}, v{vL16 if T < 2 else vT0} offset:{(T % 2)*24576 + kk*1024}')
    def mm(kk):
        for i in range(10):
            a = areg(kk, i)
            for T in range(4):
                acc = f'a[{16*i+4*T}:{16*i+4*T+3}]'
                e(f'v_mfma_f32_16x16x32_bf16 {acc}, {a}, {R(vB + 16*(kk%2) + 4*T)}, ' + ('0' if kk == 0 else acc))
            if i < 4 and kk + 1 < 24: bl1(kk + 1, i)
            if kk + 4 < 24: wl1(kk + 4, i)
    Lst = k.label('store')
    k.ts(1)
    e('s_waitcnt lgkmcnt(0)')
    wl(2); wl(3)
    e(f'v_add_u32 v{vT0}, {2*24576}, v{vL16}')
    e('s_barrier')
    bl(0)
    for kk in range(24):
        e(f's_waitcnt vmcnt({10*min(3, 23-kk)}) lgkmcnt(0)')
        mm(kk)
    if twin:
        e(f's_branch {Lst}')
        e(Ldma + ':')
        e(f'''s_lshl_b32 s16, s14, 2
        s_add_u32 s16, s16, s12
        s_mul_i32 s16, s16, 192
        s_mul_i32 s17, s13, 24
        s_add_u32 s16, s16, s17
        s_lshl_b32 s16, s16, 10
        s_add_u32 s16, s16, {L.OT}
        s_mul_i32 s17, s12, 24576
        v_add_u32 v{vT0}, {2*24576}, v{vL16}''')
        log = []
        def odma(c):
            for q in range(6):
                kk = 6 * c + q
                if q % 4 == 0: e(f's_add_u32 m0, s17, {kk*1024}\ns_add_u32 s18, s16, {kk*1024}')
                e(f'buffer_load_dwordx4 v{vL16}, {srd}, s18 offen offset:{(q%4)*1024} lds')
                log.append('O%d' % c)
        def wll(kk): wl(kk); log.extend(['W%d' % kk] * 10)
        def wait_for(tag):
            last = max(i for i, t in enumerate(log) if t == tag)
            n = len(log) - 1 - last
            assert n <= 63
            e(f's_waitcnt vmcnt({n})')
        odma(0); wll(0); wll(1); odma(1); wll(2)
        wait_for('O0'); e('s_barrier')
        k.ts(1)
        odma(2); wll(3)
        bl(0)
        for kk in range(24):
            if kk == 1: odma(3)
            if kk + 1 < 24 and (kk + 1) % 6 == 0:
                if (kk + 1) // 6 < 4:
                    tag = 'O%d' % ((kk + 1) // 6)
                    last = max(i for i, t in enumerate(log) if t == tag)
                    if len(log) - 1 - last <= 63: wait_for(tag)
                    e('s_barrier')
            wait_for('W%d' % kk)
            e('s_waitcnt lgkmcnt(0)')
            mm(kk)
            if kk + 4 < 24: log.extend(['W%d' % (kk + 4)] * 10)
    e(Lst + ':')
    k.ts(2)
    e(f'''s_lshl_b32 s16, s13, 7
    s_lshl_b32 s17, s14, 2
    s_add_u32 s16, s16, s17
    s_mul_i32 s16, s16, 20
    s_mul_i32 s17, s12, 5
    s_add_u32 s16, s16, s17
    s_lshl_b32 s16, s16, 10
    s_add_u32 s16, s16, {L.PARTO}
    s_nop 7''')
    n = 0
    for T in range(4):
        e(f's_add_u32 s17, s16, {T*20480}')
        for p in range(5):
            t = 24 + 12 * (n % 4); n += 1
            for q in range(8):
                src = 16 * (2 * p + q // 4) + 4 * T + q % 4
                e(f'v_accvgpr_read_b32 v{t+q}, a{src}')
            for q in range(4): e(f'v_cvt_pk_bf16_f32 v{t+8+q}, v{t+2*q}, v{t+2*q+1}')
            if p == 4: e('s_add_u32 s17, s17, 4096')
            e(f'buffer_store_dwordx4 {R(t+8)}, v{vL16}, {srd}, s17 offen offset:{(p%4)*1024} {"sc1" if fuse else stf("fin")}')
    k.ts(3)
    if fuse:
        Lw = k.label('w0'); Lp = k.label('cpoll'); Lpo = k.label('cok'); Lnr = k.label('nored')
        e(f'''s_load_dwordx2 s[40:41], s[0:1], 88
        s_waitcnt vmcnt(0) lgkmcnt(0)
        s_barrier
        s_mov_b32 s44, s40
        s_mov_b32 s45, s41
        s_mov_b32 s46, 256
        s_mov_b32 s47, 0x20000
        s_cmp_lg_u32 s12, 0
        s_cbranch_scc1 {Lw}
        v_and_b32 v2, 63, v0
        s_lshl_b32 s16, s14, 2
        v_mov_b32 v3, s16
        v_mov_b32 v4, {OOB:#x}
        v_cmp_eq_u32 vcc, 0, v2
        v_cndmask_b32 v4, v4, v3, vcc
        v_mov_b32 v5, 1
        buffer_atomic_add v5, v4, s[44:47], 0 offen
        s_cmp_ge_u32 s13, 4
        s_cbranch_scc1 {Lw}
        s_mov_b32 s17, 0x100000''')
        e(Lp + ':')
        e(f'''buffer_load_dword v5, v3, s[44:47], 0 offen sc1
        s_waitcnt vmcnt(0)
        v_readfirstlane_b32 s18, v5
        s_cmp_ge_u32 s18, 8
        s_cbranch_scc1 {Lpo}
        s_sleep 4
        s_sub_u32 s17, s17, 1
        s_cbranch_scc0 {Lp}''')
        e(Lpo + ':')
        e(Lw + ':')
        e(f'''s_cmp_ge_u32 s13, 4
        s_cbranch_scc1 {Lnr}
        s_barrier
        s_lshl_b32 s19, s14, 2
        s_add_u32 s19, s19, s13
        s_mov_b32 s16, s12
        s_mov_b32 s8, s4
        s_mov_b32 s9, s5
        s_mov_b32 s10, 0x10000000
        s_mov_b32 s11, 0x20000
        s_mov_b32 s20, {L.X1}''')
        redln.emit(k, 'sc1')
        e(Lnr + ':')
    k.ts(4)
    k.ts_flush(11, srd, v0=250)
    e(Lx + ':')
    e('s_endpgm')
    return k, LDS_SIZE
```

```python
import struct, math
from asmgen import *
import layout as L
OOB = 0x80000000
def fbits(x): return struct.unpack('<I', struct.pack('<f', x))[0]
LDS_SIZE = 4 * 20 * 1024
TILES = [[0, 1, 2, 3], [4, 5, 6, 7], [8, 9, 10, 11], [12, 13, 14]]

def gen(name='qkvb_kernel', prof=None):
    k = Kernel(name, vgpr=176, agpr=0, sgpr=102 if prof is not None else 64); e = k.e; k.prof = prof
    srd = 's[4:7]'
    R = lambda b, n=4: f'v[{b}:{b+n-1}]'
    vL16, vT0, vT1, vT2, vT3, vXr, vXr2 = 1, 2, 3, 4, 5, 6, 7
    vAcc = 8
    vA = 72
    vB = 136
    vAd = 168
    Lx = k.label('exit')
    e(f'''s_cmp_ge_u32 s2, 256
    s_cbranch_scc1 {Lx}
    s_load_dwordx2 s[12:13], s[0:1], 96''')
    k.ts(0)
    e(f'''v_lshrrev_b32 v{vT0}, 6, v0
    v_and_b32 v{vT1}, 63, v0
    s_and_b32 s17, s2, 7
    v_readfirstlane_b32 s16, v{vT0}
    v_lshlrev_b32 v{vL16}, 4, v{vT1}
    s_lshr_b32 s18, s2, 3
    s_waitcnt lgkmcnt(0)
    s_mov_b32 s4, s12
    s_mov_b32 s5, s13
    s_mov_b32 s6, 0x10000000
    s_mov_b32 s7, 0x20000''')
    e(f'''s_lshl_b32 s21, s18, 2
    s_add_u32 s21, s21, s16
    s_mul_i32 s21, s21, 20480
    s_add_u32 s21, s21, {L.XNB}
    s_mul_i32 s22, s16, 20480
    v_add_u32 v{vXr2}, {2*20480}, v{vL16}
    v_mov_b32 v{vXr}, v{vL16}''')
    def xdma(lo, hi):
        for q in range(lo, hi):
            if q % 4 == 0: e(f's_add_u32 m0, s22, {q*1024}\ns_add_u32 s23, s21, {q*1024}')
            e(f'buffer_load_dwordx4 v{vL16}, {srd}, s23 offen offset:{(q%4)*1024} lds')
    xdma(0, 4)
    Lw = [k.label('w%d_' % w) for w in range(4)]
    for w in range(3): e(f's_cmp_eq_u32 s16, {w}\ns_cbranch_scc1 {Lw[w]}')
    e(f's_branch {Lw[3]}')
    cq = (20 ** -0.5) * math.log2(math.e)
    for w in range(4):
        tiles = TILES[w]; nt = len(tiles)
        e(Lw[w] + ':')
        for i, t in enumerate(tiles):
            which, tt = t // 5, t % 5
            e(f'''s_mul_i32 s{30+i}, s17, 5
            s_add_u32 s{30+i}, s{30+i}, {which*40 + tt}
            s_mul_i32 s{30+i}, s{30+i}, 20480
            s_add_u32 s{30+i}, s{30+i}, {L.WB1}''')
        def wl(slot, off):
            for i in range(nt):
                e(f'buffer_load_dwordx4 {R(vA + 16*slot + 4*i)}, v{vL16}, {srd}, s{30+i} offen offset:{off}')
        wl(0, 0); wl(1, 1024); wl(2, 2048)
        xdma(4, 20)
        e(f's_waitcnt vmcnt({3*nt + 16})\ns_barrier')
        k.ts(1)
        def bl(buf, ks_off):
            for T in range(4):
                e(f'ds_read_b128 {R(vB + 16*buf + 4*T)}, v{vXr if T < 2 else vXr2} offset:{(T%2)*20480 + ks_off}')
        def mm(slot, buf, first, nxt_b=None, nxt_w=None):
            for i, t in enumerate(tiles):
                a = R(vA + 16*slot + 4*i)
                for T in range(4):
                    acc = R(vAcc + 16*i + 4*T); b = R(vB + 16*buf + 4*T)
                    c = '0' if first else acc
                    if t < 10: e(f'v_mfma_f32_16x16x32_bf16 {acc}, {a}, {b}, {c}')
                    else: e(f'v_mfma_f32_16x16x32_bf16 {acc}, {b}, {a}, {c}')
                    if nxt_b is not None and i == 0:
                        e(f'ds_read_b128 {R(vB + 16*nxt_b[0] + 4*T)}, v{vXr if T < 2 else vXr2} offset:{(T%2)*20480 + nxt_b[1]}')
                if nxt_w is not None:
                    if nxt_w[2]: e(f's_add_u32 s{30+i}, s{30+i}, 4096')
                    e(f'buffer_load_dwordx4 {R(vA + 16*nxt_w[0] + 4*i)}, v{vL16}, {srd}, s{30+i} offen offset:{nxt_w[1]}')
        wl(3, 3072)
        bl(0, 0)
        for ks in range(4):
            if ks == 0: e(f's_waitcnt vmcnt({3*nt + 16}) lgkmcnt(0)')
            elif ks < 3: e(f's_waitcnt vmcnt({min(63, 3*nt + 16)}) lgkmcnt(0)')
            else: e(f's_waitcnt vmcnt({3*nt}) lgkmcnt(0)\ns_barrier')
            mm(ks, ks % 2, ks == 0, nxt_b=((ks + 1) % 2, (ks + 1) * 1024), nxt_w=(ks, ks * 1024, ks == 0))
        k.ts(2)
        Ll = k.label('loop')
        e(f's_mov_b32 s40, 0\nv_add_u32 v{vXr}, 4096, v{vXr}\nv_add_u32 v{vXr2}, 4096, v{vXr2}')
        e(Ll + ':')
        for q in range(4):
            e(f's_waitcnt vmcnt({3*nt}) lgkmcnt(0)')
            mm(q, q % 2, False, nxt_b=((q + 1) % 2, (q + 1) * 1024), nxt_w=(q, q * 1024, q == 0))
        e(f'''v_add_u32 v{vXr}, 4096, v{vXr}
        v_add_u32 v{vXr2}, 4096, v{vXr2}
        s_add_u32 s40, s40, 1
        s_cmp_lt_u32 s40, 4
        s_cbranch_scc1 {Ll}''')
        k.ts(3)
        e(f'''s_waitcnt vmcnt(0) lgkmcnt(0)
        v_and_b32 v{vT0}, 63, v0
        v_and_b32 v{vT1}, 15, v{vT0}
        v_lshrrev_b32 v{vT2}, 4, v{vT0}
        s_lshl_b32 s41, s17, 19
        s_lshl_b32 s42, s18, 12
        s_add_u32 s41, s41, s42
        s_mov_b32 s46, {fbits(cq):#x}
        s_mov_b32 s47, {fbits(cq):#x}''')
        for i, t in enumerate(tiles):
            which, tt = t // 5, t % 5
            ad = vAd + i
            if which < 2:
                e(f'''v_lshlrev_b32 v{vT3}, 2, v{vT2}
                v_add_u32 v{vT3}, {16*tt}, v{vT3}
                v_mul_u32_u24 v{ad}, 205, v{vT3}
                v_lshrrev_b32 v{ad}, 12, v{ad}
                v_mul_u32_u24 v{vXr}, 20, v{ad}
                v_sub_u32 v{vT3}, v{vT3}, v{vXr}
                v_lshlrev_b32 v{ad}, 17, v{ad}
                v_lshrrev_b32 v{vXr}, 4, v{vT3}
                v_lshl_add_u32 v{ad}, v{vXr}, 10, v{ad}
                v_bfe_u32 v{vXr}, v{vT3}, 2, 1
                v_lshl_add_u32 v{ad}, v{vXr}, 9, v{ad}
                v_bfe_u32 v{vXr}, v{vT3}, 3, 1
                v_lshl_add_u32 v{ad}, v{vXr}, 3, v{ad}
                v_lshl_add_u32 v{ad}, v{vT1}, 4, v{ad}''')
            else:
                e(f'''v_add_u32 v{vT3}, {16*tt}, v{vT1}
                v_mul_u32_u24 v{ad}, 205, v{vT3}
                v_lshrrev_b32 v{ad}, 12, v{ad}
                v_mul_u32_u24 v{vXr}, 20, v{ad}
                v_sub_u32 v{vT3}, v{vT3}, v{vXr}
                v_lshlrev_b32 v{ad}, 17, v{ad}
                v_lshl_add_u32 v{ad}, v{vT3}, 4, v{ad}
                v_and_b32 v{vXr}, 1, v{vT2}
                v_lshl_add_u32 v{ad}, v{vXr}, 9, v{ad}
                v_lshrrev_b32 v{vXr}, 1, v{vT2}
                v_lshl_add_u32 v{ad}, v{vXr}, 3, v{ad}''')
        n = 0
        for i, t in enumerate(tiles):
            which, tt = t // 5, t % 5
            for T in range(4):
                a = vAcc + 16*i + 4*T; p = vB + 2 * (n % 8); n += 1
                if which == 0:
                    e(f'v_pk_mul_f32 {R(a,2)}, {R(a,2)}, s[46:47]\nv_pk_mul_f32 {R(a+2,2)}, {R(a+2,2)}, s[46:47]'.replace('s[46:47]', 's[46:47]'))
                e(f'v_cvt_pk_bf16_f32 v{p}, v{a}, v{a+1}\nv_cvt_pk_bf16_f32 v{p+1}, v{a+2}, v{a+3}')
                if which < 2:
                    off = (T >> 1) * 2048 + (T & 1) * 256
                    e(f's_add_u32 s43, s41, {(L.QB if which == 0 else L.KB) + off}')
                else:
                    e(f's_add_u32 s43, s41, {L.VB + T*1024}')
                e(f'buffer_store_dwordx2 {R(p,2)}, v{vAd+i}, {srd}, s43 offen {stf("qkvb")}')
        if w == 3:
            z = vA
            for r in range(4): e(f'v_mov_b32 v{z+r}, 0')
            e(f'''v_lshlrev_b32 v{vT3}, 17, v{vT2}
            v_lshl_add_u32 v{vT3}, v{vT1}, 4, v{vT3}
            v_add_u32 v{vXr}, {1024 + 8}, v{vT3}
            v_add_u32 v{vXr2}, {1024 + 512}, v{vT3}''')
            for base in (L.QB, L.KB):
                for T in range(4):
                    off = (T >> 1) * 2048 + (T & 1) * 256
                    e(f'''s_add_u32 s43, s41, {base + off}
                    buffer_store_dwordx2 {R(z,2)}, v{vXr}, {srd}, s43 offen {stf("qkvb")}
                    buffer_store_dwordx4 {R(z)}, v{vXr2}, {srd}, s43 offen {stf("qkvb")}''')
            e(f'''v_and_b32 v{vXr}, 1, v{vT2}
            v_lshlrev_b32 v{vXr}, 9, v{vXr}
            v_add_u32 v{vT3}, 20, v{vT1}
            v_lshl_add_u32 v{vXr}, v{vT3}, 4, v{vXr}
            v_lshrrev_b32 v{vT3}, 1, v{vT2}
            v_lshl_add_u32 v{vXr}, v{vT3}, 17, v{vXr}
            v_mov_b32 v{vT3}, {OOB:#x}
            v_cmp_gt_u32 vcc, 12, v{vT1}
            v_cndmask_b32 v{vXr}, v{vT3}, v{vXr}, vcc
            v_cmp_eq_u32 vcc, 0, v{vT1}
            v_mov_b32 v{vT3}, 0x3f803f80
            v_cndmask_b32 v{z+4}, 0, v{vT3}, vcc
            v_mov_b32 v{z+5}, v{z+4}
            v_mov_b32 v{z+6}, v{z+4}
            v_mov_b32 v{z+7}, v{z+4}''')
            for hp in range(2):
                for T in range(4):
                    e(f'''s_add_u32 s43, s41, {L.VB + T*1024 + hp*2*131072}
                    buffer_store_dwordx4 {R(z+4)}, v{vXr}, {srd}, s43 offen {stf("qkvb")}''')
        k.ts(4)
        k.ts_flush(5, srd, v0=170)
        e(f's_branch {Lx}')
    e(Lx + ':')
    e('s_endpgm')
    return k, LDS_SIZE
```

```python
from asmgen import *
import layout as L
import ln
OOB = 0x80000000
N1, N2, N3, N4 = 3 * 96 * 20, 10 * 192, 30 * 20, 10 * 20
NW = N1 + N2 + N3 + N4
NWG = NW // 4

def gen(name="prep_kernel", NT="", skip1=False, COPYX=False):
    global N1, NW, NWG
    N1 = 0 if skip1 else 3 * 96 * 20
    NW = N1 + N2 + N3 + N4
    NWG = NW // 4
    k = Kernel(name, vgpr=80, agpr=0, sgpr=64); e = k.e
    ws = 's[4:7]'; src = 's[8:11]'
    vL, vI, vG, vA, vL16, vT = 1, 2, 3, 4, 5, 6
    vD = 16
    vPk = 48
    Lx = k.label('exit'); S2 = k.label('s2'); S3 = k.label('s3'); S4 = k.label('s4')
    Lln = k.label('notln'); Lpk = k.label('pack')
    e(f's_cmp_ge_u32 s2, 128\ns_cbranch_scc1 {Lln}')
    ln.emit_ln(k, True, copy_x1=COPYX)
    e('s_endpgm')
    e(Lln + ':')
    e(f'''s_sub_u32 s2, s2, 128
    s_cmp_ge_u32 s2, {NWG}
    s_cbranch_scc1 {Lx}
    s_load_dwordx2 s[12:13], s[0:1], 96
    s_load_dwordx4 s[16:19], s[0:1], 16
    s_load_dwordx4 s[20:23], s[0:1], 32
    s_load_dwordx4 s[24:27], s[0:1], 64
    v_lshrrev_b32 v{vT}, 6, v0
    v_and_b32 v{vL}, 63, v0
    s_nop 0
    v_readfirstlane_b32 s14, v{vT}
    v_lshlrev_b32 v{vL16}, 4, v{vL}
    s_lshl_b32 s15, s2, 2
    s_add_u32 s15, s15, s14
    s_add_u32 s28, s15, {N1 + N2}
    s_sub_u32 s29, s15, {N3 + N4}
    s_cmp_lt_u32 s15, {N3 + N4}
    s_cselect_b32 s15, s28, s29
    s_waitcnt lgkmcnt(0)
    s_mov_b32 s4, s12
    s_mov_b32 s5, s13
    s_mov_b32 s6, 0x10000000
    s_mov_b32 s7, 0x20000
    s_mov_b32 s11, 0x20000
    v_and_b32 v{vI}, 15, v{vL}
    v_lshrrev_b32 v{vG}, 4, v{vL}''')
    def gather_pack_store(jj_off, frag_off, frag_dst, addr_regs=None):
        for i in range(4):
            for jj in range(8):
                off = frag_off[i] + jj_off[jj]
                va = vA if addr_regs is None else addr_regs[jj]
                e(f's_mov_b32 s29, {off}')
                e(f'buffer_load_ushort v{vD+8*i+jj}, v{va}, {src}, s29 offen')
        for i in range(4):
            e(f's_waitcnt vmcnt({8*(3-i) + i})')
            for q in range(4):
                e(f'v_lshl_or_b32 v{vPk+4*i+q}, v{vD+8*i+2*q+1}, 16, v{vD+8*i+2*q}')
            frag_dst(i)
            e(f'buffer_store_dwordx4 v[{vPk+4*i}:{vPk+4*i+3}], v{vL16}, {ws}, s30 offen {NT}')
    ROWS = 144
    LB = 512
    vLw, vR1, vR2 = 12, 13, 14
    def tr_block(rowstride, pi_rows, sigma_cols, dst):
        e(f'''v_lshrrev_b32 v{vT}, 3, v{vL}
        v_mul_u32_u24 v{vLw}, {ROWS}, v{vT}
        v_and_b32 v{vT}, 7, v{vL}
        v_lshl_add_u32 v{vLw}, v{vT}, 4, v{vLw}
        s_mul_i32 s36, s14, {32*ROWS}
        s_add_u32 s36, s36, {LB}
        v_add_u32 v{vLw}, s36, v{vLw}''')
        for q in range(4):
            e(f's_mov_b32 s29, {q*8*rowstride}')
            e(f'buffer_load_dwordx4 v[{vD+4*q}:{vD+4*q+3}], v{vA}, {src}, s29 offen')
        e(f'''v_bfe_u32 v{vT}, v{vL}, 2, 2
        v_lshlrev_b32 v{vR1}, {2 if pi_rows else 3}, v{vG}
        v_add_u32 v{vR1}, v{vR1}, v{vT}
        v_mul_u32_u24 v{vR1}, {ROWS}, v{vR1}
        v_and_b32 v{vT}, 3, v{vL}
        v_lshl_add_u32 v{vR1}, v{vT}, {4 if sigma_cols else 3}, v{vR1}
        v_add_u32 v{vR1}, s36, v{vR1}''')
        second = (16 if pi_rows else 4) * ROWS
        for q in range(4):
            e(f's_waitcnt vmcnt({3-q})')
            e(f'ds_write_b128 v{vLw}, v[{vD+4*q}:{vD+4*q+3}] offset:{q*8*ROWS}')
        e('s_waitcnt lgkmcnt(0)')
        for i in range(4):
            coff = (64 * (i >> 1) + 8 * (i & 1)) if sigma_cols else 32 * i
            e(f'ds_read_b64_tr_b16 v[{vPk+4*i}:{vPk+4*i+1}], v{vR1} offset:{coff}')
            e(f'ds_read_b64_tr_b16 v[{vPk+4*i+2}:{vPk+4*i+3}], v{vR1} offset:{coff+second}')
        for i in range(4):
            e(f's_waitcnt lgkmcnt({2*(3-i)})')
            dst(i)
            e(f'buffer_store_dwordx4 v[{vPk+4*i}:{vPk+4*i+3}], v{vL16}, {ws}, s30 offen {NT}')
    e(f'''s_cmp_ge_u32 s15, {N1}
    s_cbranch_scc1 {S2}''')
    e(f'''s_mul_hi_u32 s31, s15, {(1<<32)//1920 + 1}
    s_mul_i32 s32, s31, 1920
    s_sub_u32 s32, s15, s32
    s_mul_hi_u32 s34, s32, {(1<<32)//96 + 1}
    s_mul_i32 s33, s34, 96
    s_sub_u32 s33, s32, s33
    s_cmp_eq_u32 s31, 0
    s_cselect_b32 s8, s16, s18
    s_cselect_b32 s9, s17, s19
    s_cmp_eq_u32 s31, 2
    s_cselect_b32 s8, s20, s8
    s_cselect_b32 s9, s21, s9
    s_mov_b32 s10, {640*12288}
    s_mul_i32 s35, s31, {L.WKP - L.WQP}
    s_add_u32 s35, s35, {L.WQP}''')
    assert L.WVP - L.WKP == L.WKP - L.WQP
    e(f'''v_lshrrev_b32 v{vT}, 3, v{vL}
    s_lshl_b32 s36, s34, 5
    v_add_u32 v{vT}, s36, v{vT}
    s_mov_b32 s37, 12288
    v_mul_lo_u32 v{vA}, v{vT}, s37
    s_lshl_b32 s36, s33, 7
    v_and_b32 v{vT}, 7, v{vL}
    v_lshl_add_u32 v{vA}, v{vT}, 4, v{vA}
    v_add_u32 v{vA}, s36, v{vA}''')
    def d1(i):
        e(f'''s_lshl_b32 s30, s33, 2
        s_add_u32 s30, s30, {i}
        s_mul_i32 s30, s30, 20
        s_add_u32 s30, s30, s34
        s_lshl_b32 s30, s30, 10
        s_add_u32 s30, s30, s35''')
    tr_block(12288, False, False, d1)
    e(f's_branch {Lx}')
    e(S2 + ':')
    e(f'''s_sub_u32 s15, s15, {N1}
    s_cmp_ge_u32 s15, {N2}
    s_cbranch_scc1 {S3}''')
    e(f'''s_mul_hi_u32 s34, s15, {(1<<32)//10 + 1}
    s_mul_i32 s33, s34, 10
    s_sub_u32 s33, s15, s33
    s_mov_b32 s8, s22
    s_mov_b32 s9, s23
    s_mov_b32 s10, {6144*1280}''')
    e(f'''v_lshrrev_b32 v{vT}, 3, v{vL}
    s_lshl_b32 s36, s34, 5
    v_add_u32 v{vT}, s36, v{vT}
    v_mul_u32_u24 v{vA}, 1280, v{vT}
    s_lshl_b32 s36, s33, 7
    v_and_b32 v{vT}, 7, v{vL}
    v_lshl_add_u32 v{vA}, v{vT}, 4, v{vA}
    v_add_u32 v{vA}, s36, v{vA}''')
    def d2(i):
        e(f'''s_lshl_b32 s30, s33, 2
        s_add_u32 s30, s30, {i}
        s_mul_i32 s30, s30, 192
        s_add_u32 s30, s30, s34
        s_lshl_b32 s30, s30, 10
        s_add_u32 s30, s30, {L.WOP}''')
    tr_block(1280, True, True, d2)
    e(f's_branch {Lx}')
    e(S3 + ':')
    e(f'''s_sub_u32 s15, s15, {N2}
    s_cmp_ge_u32 s15, {N3}
    s_cbranch_scc1 {S4}''')
    e(f'''s_mul_hi_u32 s34, s15, {(1<<32)//30 + 1}
    s_mul_i32 s33, s34, 30
    s_sub_u32 s33, s15, s33
    s_mov_b32 s8, s24
    s_mov_b32 s9, s25
    s_mov_b32 s10, {640*3840}''')
    e(f'''v_lshrrev_b32 v{vT}, 3, v{vL}
    s_lshl_b32 s36, s34, 5
    v_add_u32 v{vT}, s36, v{vT}
    v_mul_u32_u24 v{vA}, 3840, v{vT}
    s_lshl_b32 s36, s33, 7
    v_and_b32 v{vT}, 7, v{vL}
    v_lshl_add_u32 v{vA}, v{vT}, 4, v{vA}
    v_add_u32 v{vA}, s36, v{vA}''')
    def d3(i):
        e(f'''s_lshl_b32 s30, s33, 2
        s_add_u32 s30, s30, {i}
        s_mul_i32 s30, s30, 20
        s_add_u32 s30, s30, s34
        s_lshl_b32 s30, s30, 10
        s_add_u32 s30, s30, {L.WB1}''')
    tr_block(3840, False, False, d3)
    e(f's_branch {Lx}')
    e(S4 + ':')
    e(f'''s_sub_u32 s15, s15, {N3}
    s_mul_hi_u32 s34, s15, {(1<<32)//10 + 1}
    s_mul_i32 s33, s34, 10
    s_sub_u32 s33, s15, s33
    s_mov_b32 s8, s26
    s_mov_b32 s9, s27
    s_mov_b32 s10, {640*1280}''')
    e(f'''v_lshrrev_b32 v{vT}, 3, v{vL}
    s_lshl_b32 s36, s34, 5
    v_add_u32 v{vT}, s36, v{vT}
    v_mul_u32_u24 v{vA}, 1280, v{vT}
    s_lshl_b32 s36, s33, 7
    v_and_b32 v{vT}, 7, v{vL}
    v_lshl_add_u32 v{vA}, v{vT}, 4, v{vA}
    v_add_u32 v{vA}, s36, v{vA}''')
    def d4(i):
        e(f'''s_lshl_b32 s30, s33, 2
        s_add_u32 s30, s30, {i}
        s_mul_i32 s30, s30, 20
        s_add_u32 s30, s30, s34
        s_lshl_b32 s30, s30, 10
        s_add_u32 s30, s30, {L.WB2}''')
    tr_block(1280, False, True, d4)
    e(Lx + ':')
    e('s_endpgm')
    return k, NWG + 128, 512 + 4 * 32 * 144
```

```python
import hazard

STF = {}
def stf(key): return STF.get(key, '')
NAME = 'interleave_layers__memory_aug_recurrent_mem_tr__softmax_full_mha__prompt'

def vr(base, n=1):
    return 'v%d' % base if n == 1 else 'v[%d:%d]' % (base, base + n - 1)
def ar(base, n=1):
    return 'a%d' % base if n == 1 else 'a[%d:%d]' % (base, base + n - 1)
def sr(base, n=1):
    return 's%d' % base if n == 1 else 's[%d:%d]' % (base, base + n - 1)

class Kernel:
    def __init__(self, name, vgpr=256, agpr=0, sgpr=102, wgy=False):
        self.name = name; self.lines = []; self.vgpr = vgpr; self.agpr = agpr; self.sgpr = sgpr
        self.nlabel = 0; self.wgy = wgy
    def e(self, s):
        for l in s.split('\n'):
            l = l.strip()
            if not l: continue
            if l.endswith(':'): self.lines.append(l)
            else: self.lines.append('  ' + l)
    def c(self, s): self.lines.append('  ; ' + s)
    def label(self, base='L'):
        self.nlabel += 1
        return '%s_%s%d' % (self.name.replace('_kernel', ''), base, self.nlabel)
    prof = None
    tsi = 's_memrealtime'
    def ts(self, i):
        if self.prof is None: return
        self.e(f'{self.tsi} s[{70+2*i}:{71+2*i}]')
        self.e(f's_waitcnt lgkmcnt(0)')
    def ts_flush(self, n, srd, v0=250):
        if self.prof is None: return
        import layout as L
        e = self.e
        for i in range(n): e(f'v_writelane_b32 v{v0}, s{70+2*i}, {i}')
        e(f'''v_and_b32 v{v0+1}, 63, v0
        v_lshlrev_b32 v{v0+1}, 2, v{v0+1}
        v_mov_b32 v{v0+2}, 0x80000000
        v_cmp_gt_u32 vcc, {4*n}, v{v0+1}
        v_cndmask_b32 v{v0+1}, v{v0+2}, v{v0+1}, vcc
        v_lshrrev_b32 v{v0+2}, 6, v0
        v_lshlrev_b32 v{v0+2}, 6, v{v0+2}
        v_add_u32 v{v0+1}, v{v0+1}, v{v0+2}
        s_lshl_b32 s69, s2, 8
        s_add_u32 s69, s69, {L.STAMP + self.prof}
        buffer_store_dword v{v0}, v{v0+1}, {srd}, s69 offen''')
    def finish(self, fix=True, verbose=False):
        lines = self.lines
        n = 0
        if fix:
            lines, n = hazard.fix(lines, verbose)
        head = ['.globl %s' % self.name, '.p2align 8', '.type %s,@function' % self.name, '%s:' % self.name]
        body = head + [l.strip() for l in lines if not l.strip().startswith(';')]
        acc = ((self.vgpr + 3) // 4) * 4
        nfv = acc + self.agpr if self.agpr else self.vgpr
        desc = ['.p2align 6', '.amdhsa_kernel %s' % self.name,
                '  .amdhsa_next_free_vgpr %d' % nfv,
                '  .amdhsa_next_free_sgpr %d' % self.sgpr,
                '  .amdhsa_accum_offset %d' % acc,
                '  .amdhsa_group_segment_fixed_size 0',
                '  .amdhsa_kernarg_size 104',
                '  .amdhsa_user_sgpr_count 2',
                '  .amdhsa_user_sgpr_kernarg_segment_ptr 1',
                '  .amdhsa_system_sgpr_workgroup_id_x 1']
        if self.wgy: desc.append('  .amdhsa_system_sgpr_workgroup_id_y 1')
        desc += ['  .amdhsa_float_denorm_mode_32 3', '.end_amdhsa_kernel']
        return body, desc, n

DESCRIPTION = """
; ---------------------------------------------------------------------------------------------------------------------------------
; Generated by the scripts in gen/ (build_all.py).  Pipeline: x += A(LN x); x += B(LN x); twice.
;  prep   : packs all weights into MFMA operand fragments, LayerNorm of the input, poisons the hand-off buffers of the recurrence
;  reca   : persistent layer-A kernel, one workgroup per CU.  group x = wg & 7 (32 WGs), c = wg >> 3.
;           c < 24: memory recurrence (head 4x + c/6, 32-wide slice c%6 of the head dimension, weights resident in AGPRs); per segment:
;                   gather mem -> q,k,v slices -> all-gather q|k -> scores, softmax (true max), P.V -> gather o -> partial out projection ->
;                   exchange of the 8 group partials -> reduce -> publish mem.  c = 20..23 also do the token attention of earlier segments.
;           c >= 24: just-in-time q/k/v projections of the token segments (weights resident in registers).
;           Hand-offs are tagged by data: the buffers hold the poison 0xFFFFFFFF until written and are re-poisoned by their producers.
;           A census at start tells whether a group sits on one XCD (plain stores through its L2) or not (write-through stores); results
;           never depend on the placement.  The s_sleep in front of a first poll and inside polling loops only keeps premature polls out
;           of the memory queue of the CU (a failed poll costs a whole round trip); every loop is bounded by a budget counter.
;  fin    : partial out projection of the tokens per head group (attention of the last 4 segments is done here), redln: reduce + residual + LN
;  qkvb, attnb, outb : layer B.  attnb shifts the scores by the true maximum of the first key tile and redoes the rows with the exact
;           row maximum whenever the row sum or an accumulator leaves the safe range.
; ---------------------------------------------------------------------------------------------------------------------------------""".strip('\n').split('\n')
HEADER = open('/code/' + NAME + '.s.ref').read().split('\n')

def build_file(launches, kernels, verbose=False):
    out = []
    for l in HEADER:
        if l.startswith('; @launch') or l.startswith('; Override') or l.startswith('; grid='): continue
        if not l.startswith(';'): break
        out.append(l)
    for (k, g, b, lds) in launches:
        out.append('; @launch kernel=%s grid=(%d,%d,%d) block=(%d,%d,%d) lds=%d' % (k, *g, *b, lds))
    out += DESCRIPTION
    out.append('.amdgcn_target "amdgcn-amd-amdhsa--gfx950"')
    out.append('.text')
    descs = []
    for k in kernels:
        body, desc, n = k.finish(verbose=verbose)
        if n: print('; %s: hazard fixer inserted %d wait states' % (k.name, n))
        out += body
        descs += desc
    out.append('.section .rodata,"a"')
    out += descs
    return '\n'.join(out) + '\n'
```

```python
import math, struct
from asmgen import *
import layout as L
import proj

OOB = 0x80000000
STAMPI = 's_memtime'
TWIN_DEFAULT = 1
DIRECT_DEFAULT = 0
sWS, sAUX = 4, 8
sW, sX, sC, sH, sJ, sS, sTO, sKH = 12, 13, 14, 15, 16, 17, 18, 19
sA, sB, sO_, sE, sPp = 20, 21, 22, 24, 25
sA2, sB2, sO2, sP2 = 26, 27, 28, 29
sKM, sVM, sKT, sVT = 30, 31, 32, 33
sT0, sT1, sT2, sT3 = 34, 35, 36, 37
sMEMBx, sQKh, sOBx = 38, 39, 40
sCexp, sXCC, sMODE = 41, 42, 43
sSTB = 46
sPTR = 48
sMASK = 54
sPARTB, sFLIP, sPAR = 56, 57, 58
sPRB, sPM0, sPM1 = 44, 45, 47
LDS_MEM, LDS_VP, LDS_KV, KVSZ = 0, 10240, 16384, 14336
LDS_SIZE = LDS_KV

def gen(name='reca_kernel', stamps=False, nsteps=64, D1=1, D2=3, D3=8, D4=2, PLEAD=3, TL=None, FORCE_SLOW=0, PROJ=1, PREREAD=0, PARX=0, DUAL=1, PACE=0, DS1=None, DS3=None, DS4=None, SPREAD=0, NEARF=None, PPROF=0, NPR=3, TLBW=0, DENSE=1, TWIN=None, D4T=4, PRE2=0, OTSC=1, DIRECT=None, DR=0, DRS=1):
    k = Kernel(name, vgpr=256, agpr=256)
    if TWIN is None: TWIN = TWIN_DEFAULT
    if DIRECT is None: DIRECT = DIRECT_DEFAULT
    e = k.e
    WS = f's[{sWS}:{sWS+3}]'
    vL16, vL16b, vL16c = 1, 2, 3
    vMld, vMld2, vMrdA, vMrdB = 4, 5, 6, 7
    vXst, vKMst, vVMst, vOst = 8, 9, 10, 11
    vOld, vOldb, vOldc = 12, 13, 14
    vPst, vMst, vVP, vKVrd, vZ = 15, 16, 17, 18, 19
    vPld = 20
    vT0, vT1, vT2, vT3 = 28, 29, 30, 31
    vNEG1, vONES, vCM = 32, 36, 40
    vACC, vACV, vQK = 44, 48, 52
    vVPr, vVMf, vS, vP = 56, 68, 72, 84
    vO, vLs, vOp = 92, 100, 104
    vD1, vD2, vR = 108, 112, 116
    MEMR = 128
    vH3 = MEMR; vKT = MEMR; vVT = MEMR + 48; vG2 = MEMR
    vX = 208
    vPst2, vFl = 232, 233
    vKV = 238
    vMdA, vMdB, vAC2 = 236, 237, 240
    aW1, aWV, aW2 = 0, 80, 120
    aKT, aVT = 120, 168
    NST = 14
    def R(b, n=4): return f'v[{b}:{b+n-1}]'

    def stamp(idx, wait=False):
        if not stamps: return
        e(f'{STAMPI} s[{64+2*idx}:{65+2*idx}]')
        if wait: e('s_waitcnt lgkmcnt(0)')
    def stamp_flush():
        if not stamps: return
        e('s_waitcnt lgkmcnt(0)')
        for i in range(NST): e(f'v_writelane_b32 v{vT0}, s{64+2*i}, {i}')
        e(f'''v_and_b32 v{vT1}, 63, v0
        v_lshlrev_b32 v{vT1}, 2, v{vT1}
        v_mov_b32 v{vT2}, {OOB:#x}
        v_cmp_gt_u32 vcc, {NST*4}, v{vT1}
        v_cndmask_b32 v{vT1}, v{vT2}, v{vT1}, vcc
        ''')
        if stamps == 2:
            e(f'''s_sub_u32 s{sT3}, s{sS}, 20
            s_cmp_lt_u32 s{sT3}, 8
            s_cselect_b32 s{sT3}, s{sT3}, 0x100000
            s_lshl_b32 s{sT3}, s{sT3}, 6
            s_add_u32 s{sT3}, s{sT3}, s{sSTB}''')
        else:
            e(f'''s_lshl_b32 s{sT3}, s{sS}, 8
            s_add_u32 s{sT3}, s{sT3}, s{sSTB}''')
        e(f'''buffer_store_dword v{vT0}, v{vT1}, {WS}, s{sT3} offen''')
        for i in range(NST): e(f's_mov_b32 s{64+2*i}, 0')
    def tl(i):
        if TL is None: return
        e(f's_memrealtime s[{92+2*i}:{93+2*i}]')
        if i >= 2: e(f's_memtime s[{84+2*(i-2)}:{85+2*(i-2)}]')
        if i == 0: e('s_mov_b32 s91, s2\ns_mov_b32 s94, 0\ns_mov_b32 s96, 0\ns_mov_b32 s99, 0')
        e('s_waitcnt lgkmcnt(0)')

    Lexit = k.label('exit'); Lproj = k.label('proj'); Lexit2 = k.label('exitb')
    e(f'''s_cmp_ge_u32 s2, 256
    s_cbranch_scc1 {Lexit2}
    s_load_dwordx2 s[{sPTR}:{sPTR+1}], s[0:1], 96
    s_load_dwordx2 s[{sPTR+2}:{sPTR+3}], s[0:1], 88
    s_load_dwordx2 s[{sPTR+4}:{sPTR+5}], s[0:1], 8''')
    tl(0)
    e(f'''s_getreg_b32 s{sXCC}, hwreg(HW_REG_XCC_ID, 0, 3)
    v_lshrrev_b32 v{vT0}, 6, v0
    v_and_b32 v{vT1}, 63, v0
    s_and_b32 s{sX}, s2, 7
    v_readfirstlane_b32 s{sW}, v{vT0}
    v_lshlrev_b32 v{vL16}, 4, v{vT1}
    s_lshr_b32 s{sC}, s2, 3
    s_mov_b32 s{sTO}, 0x100000
    s_waitcnt lgkmcnt(0)
    s_mov_b32 s{sFLIP}, 0
    s_mov_b32 s{sWS}, s{sPTR}
    s_mov_b32 s{sWS+1}, s{sPTR+1}
    s_mov_b32 s{sWS+2}, 0x10000000
    s_mov_b32 s{sWS+3}, 0x20000
    s_mov_b32 s{sAUX}, s{sPTR+2}
    s_mov_b32 s{sAUX+1}, s{sPTR+3}
    s_mov_b32 s{sAUX+2}, 256
    s_mov_b32 s{sAUX+3}, 0x20000
    v_add_u32 v{vL16b}, 0x1000, v{vL16}
    v_add_u32 v{vL16c}, 0x2000, v{vL16}
    v_mov_b32 v{vT3}, {OOB:#x}''')
    e(f'''s_lshl_b32 s{sT0}, s{sXCC}, 3
    s_lshl_b64 s[{sT2}:{sT2+1}], 1, s{sT0}
    s_lshl_b32 s{sT0}, s{sX}, 3
    v_cmp_eq_u32 vcc, 0, v0
    v_mov_b32 v{vT2}, s{sT0}
    v_cndmask_b32 v{vT2}, v{vT3}, v{vT2}, vcc
    v_mov_b32 v{vACC}, s{sT2}
    v_mov_b32 v{vACC+1}, s{sT2+1}
    buffer_atomic_add_x2 v[{vACC}:{vACC+1}], v{vT2}, s[{sAUX}:{sAUX+3}], 0 offen
    s_sub_u32 s{sPARTB}, 0, s{sPTR}
    s_and_b32 s{sPARTB}, s{sPARTB}, 0x1fffff
    s_add_u32 s{sPARTB}, s{sPARTB}, {L.PARTR}
    s_nop 0''')
    def census_wait():
        Lp = k.label('cens'); Lo = k.label('censok')
        e(f'''v_and_b32 v{vT2}, 7, v0
        v_lshlrev_b32 v{vT2}, 3, v{vT2}''')
        e(Lp + ':')
        e(f'''buffer_load_dwordx2 v[{vT0}:{vT0+1}], v{vT2}, s[{sAUX}:{sAUX+3}], 0 offen sc1
        s_waitcnt vmcnt(0)
        v_sad_u8 v{vT3}, v{vT0}, 0, 0
        v_sad_u8 v{vT3}, v{vT1}, 0, v{vT3}
        v_cmp_gt_u32 vcc, 32, v{vT3}
        s_cbranch_vccz {Lo}
        s_sleep 8
        s_sub_u32 s{sTO}, s{sTO}, 1
        s_cbranch_scc0 {Lp}
        s_mov_b32 s{sTO}, 0''')
        e(Lo + ':')
        e(f'''v_and_b32 v{vT0}, 0x20202020, v{vT0}
        v_and_b32 v{vT1}, 0x20202020, v{vT1}
        v_cmp_ne_u32 s[{sT0}:{sT0+1}], 0, v{vT0}
        v_cmp_ne_u32 s[{sT2}:{sT2+1}], 0, v{vT1}
        s_nop 3
        s_and_b32 s{sT0}, s{sT0}, 0xff
        s_and_b32 s{sT2}, s{sT2}, 0xff
        s_or_b32 s{sT1}, s{sT0}, s{sT2}
        s_lshr_b32 s{sT3}, s{sT1}, s{sX}
        s_and_b32 s{sT3}, s{sT3}, 1
        s_xor_b32 s{sMODE}, s{sT3}, 1
        s_cmp_eq_u32 s{sFLIP}, 0
        s_cselect_b32 s{sPAR}, s{sT2}, s{sT0}''')
        if FORCE_SLOW: e(f's_mov_b32 s{sMODE}, 1')
        if PARX: e(f's_xor_b32 s{sPAR}, s{sPAR}, {PARX}')
        e(f'v_mov_b32 v{vT3}, {OOB:#x}')
    e(f's_cmp_ge_u32 s{sC}, 24\ns_cbranch_scc1 {Lproj}')
    tl(1)
    e(f'''s_mul_i32 s{sT0}, s{sC}, 43
    s_lshr_b32 s{sT0}, s{sT0}, 8
    s_mul_i32 s{sT1}, s{sT0}, 6
    s_sub_u32 s{sJ}, s{sC}, s{sT1}
    s_lshl_b32 s{sH}, s{sX}, 2
    s_add_u32 s{sH}, s{sH}, s{sT0}
    s_lshr_b32 s{sKH}, s{sW}, 1''')
    e(f'''s_and_b32 s{sT3}, s{sW}, 1
    s_mul_i32 s{sT0}, s{sH}, 12
    s_lshl_b32 s{sT1}, s{sJ}, 1
    s_add_u32 s{sT0}, s{sT0}, s{sT1}
    s_add_u32 s{sT0}, s{sT0}, s{sT3}
    s_mul_i32 s{sT0}, s{sT0}, 20480
    s_mov_b32 s{sT1}, {L.WKP}
    s_cmp_eq_u32 s{sKH}, 0
    s_cselect_b32 s{sT1}, {L.WQP}, s{sT1}
    s_add_u32 s{sT1}, s{sT1}, s{sT0}
    s_mul_i32 s{sT2}, s{sKH}, 10240
    s_add_u32 s{sA}, s{sT1}, s{sT2}
    s_sub_u32 s{sT2}, 10240, s{sT2}
    s_add_u32 s{sB}, s{sT1}, s{sT2}
    s_add_u32 s{sO_}, s{sT0}, {L.WVP}
    s_mul_i32 s{sT2}, s{sKH}, 10240
    s_add_u32 s{sO_}, s{sO_}, s{sT2}''')
    vLs_ = [vL16, vL16b, vL16c]
    for b in range(20):
        bb = b % 10
        e(f'buffer_load_dwordx4 a[{aW1+4*b}:{aW1+4*b+3}], v{vLs_[bb//4]}, {WS}, s{sA if b < 10 else sB} offen offset:{(bb%4)*1024}')
    for b in range(10):
        e(f'buffer_load_dwordx4 a[{aWV+4*b}:{aWV+4*b+3}], v{vLs_[b//4]}, {WS}, s{sO_} offen offset:{(b%4)*1024}')
    Lnw2 = k.label('now2')
    e(f'''s_cmp_ge_u32 s{sC}, 20
    s_cbranch_scc1 {Lnw2}
    s_cmp_ge_u32 s{sW}, 2
    s_cbranch_scc1 {Lnw2}
    s_lshl_b32 s{sT0}, s{sC}, 1
    s_add_u32 s{sT0}, s{sT0}, s{sW}
    s_mul_i32 s{sT0}, s{sT0}, 192
    s_mul_i32 s{sT1}, s{sX}, 24
    s_add_u32 s{sT0}, s{sT0}, s{sT1}
    s_lshl_b32 s{sT0}, s{sT0}, 10
    s_add_u32 s{sT0}, s{sT0}, {L.WOP}''')
    for kk in range(24):
        if kk and kk % 12 == 0: e(f's_add_u32 s{sT0}, s{sT0}, 12288')
        q = kk % 12
        e(f'buffer_load_dwordx4 a[{aW2+4*kk}:{aW2+4*kk+3}], v{vLs_[q//4]}, {WS}, s{sT0} offen offset:{(q%4)*1024}')
    e(Lnw2 + ':')
    i16, g, lane = vT0, vT2, vT1
    t, u, a_ = vACC, vACC + 1, vACC + 2
    MK = f's[{sMASK}:{sMASK+1}]'
    e(f'''v_and_b32 v{lane}, 63, v0
    v_and_b32 v{i16}, 15, v{lane}
    v_lshrrev_b32 v{g}, 4, v{lane}
    v_mov_b32 v{vNEG1}, -1
    v_mov_b32 v{vNEG1+1}, -1
    v_mov_b32 v{vNEG1+2}, -1
    v_mov_b32 v{vNEG1+3}, -1
    s_mul_i32 s{sT0}, s{sW}, 2560
    v_add_u32 v{vMld}, s{sT0}, v{vL16}
    v_and_b32 v{t}, 31, v{lane}
    v_lshlrev_b32 v{t}, 4, v{t}
    s_add_u32 s{sT0}, s{sT0}, 2048
    v_add_u32 v{vMld2}, s{sT0}, v{t}
    v_and_b32 v{t}, 7, v{lane}
    v_lshlrev_b32 v{t}, 4, v{t}
    v_lshl_add_u32 v{t}, v{g}, 7, v{t}
    s_mul_i32 s{sT0}, s{sKH}, 5120
    v_add_u32 v{vMrdA}, s{sT0}, v{t}
    s_sub_u32 s{sT0}, 5120, s{sT0}
    v_add_u32 v{vMrdB}, s{sT0}, v{t}
    v_lshrrev_b32 v{u}, 3, v{i16}
    v_lshl_add_u32 v{vOld}, v{u}, 9, v{t}
    s_mul_i32 s{sT0}, s{sKH}, 5120
    v_add_u32 v{vMdA}, s{sT0}, v{vOld}
    s_sub_u32 s{sT0}, 5120, s{sT0}
    v_add_u32 v{vMdB}, s{sT0}, v{vOld}
    v_add_u32 v{vOldb}, 0x1000, v{vOld}
    v_add_u32 v{vOldc}, 0x2000, v{vOld}
    v_cmp_gt_u32 {MK}, 8, v{i16}
    s_lshl_b32 s{sT0}, s{sJ}, 10
    s_lshl_b32 s{sT1}, s{sKH}, 7
    s_add_u32 s{sT0}, s{sT0}, s{sT1}
    s_and_b32 s{sT1}, s{sW}, 1
    s_lshl_b32 s{sT2}, s{sT1}, 3
    s_add_u32 s{sT0}, s{sT0}, s{sT2}
    v_lshlrev_b32 v{t}, 4, v{i16}
    v_lshl_add_u32 v{u}, v{g}, 8, v{t}
    v_add_u32 v{u}, s{sT0}, v{u}
    v_cndmask_b32 v{vXst}, v{vT3}, v{u}, {MK}
    v_lshl_add_u32 v{t}, v{g}, 7, v{t}
    v_add_u32 v{u}, s{sT2}, v{t}
    v_cndmask_b32 v{vKMst}, v{vT3}, v{u}, {MK}
    s_lshl_b32 s{sT0}, s{sC}, 9
    v_add_u32 v{u}, s{sT0}, v{t}
    v_cndmask_b32 v{vOst}, v{vT3}, v{u}, {MK}
    s_mul_i32 s{sT0}, s{sX}, 49152
    s_lshr_b32 s{sT1}, s{sC}, 3
    s_lshl_b32 s{sT1}, s{sT1}, 14
    s_add_u32 s{sT0}, s{sT0}, s{sT1}
    s_and_b32 s{sT1}, s{sC}, 7
    s_lshl_b32 s{sT1}, s{sT1}, 10
    s_add_u32 s{sT0}, s{sT0}, s{sT1}
    s_lshl_b32 s{sT1}, s{sW}, 9
    s_add_u32 s{sT0}, s{sT0}, s{sT1}
    v_add_u32 v{u}, s{sT0}, v{t}
    v_cndmask_b32 v{vPst}, v{vT3}, v{u}, {MK}
    s_cmp_lt_u32 s{sC}, 20
    s_cselect_b32 s{sT0}, 0, {OOB:#x}
    v_or_b32 v{vPst}, s{sT0}, v{vPst}
    v_lshlrev_b32 v{u}, 3, v{lane}
    v_cmp_gt_u32 vcc, 32, v{lane}
    v_cndmask_b32 v{vVMst}, v{vT3}, v{u}, vcc
    s_sub_u32 s{sT1}, s{sC}, 4
    s_cmp_lt_u32 s{sC}, 20
    s_cselect_b32 s{sT0}, s{sC}, s{sT1}
    s_lshr_b32 s{sT1}, s{sT0}, 3
    s_lshl_b32 s{sT1}, s{sT1}, 14
    s_and_b32 s{sT0}, s{sT0}, 7
    s_lshl_b32 s{sT0}, s{sT0}, 10
    s_add_u32 s{sT0}, s{sT0}, s{sT1}
    v_add_u32 v{vPld}, s{sT0}, v{vL16}''')
    for xx in range(1, 8): e(f'v_add_u32 v{vPld+xx}, {xx*49152}, v{vPld}')
    e(f'''v_lshrrev_b32 v{t}, 3, v{lane}
    v_and_b32 v{t}, 3, v{t}
    v_lshlrev_b32 v{t}, 7, v{t}
    v_and_b32 v{u}, 7, v{lane}
    v_lshl_add_u32 v{t}, v{u}, 4, v{t}
    v_lshrrev_b32 v{u}, 5, v{lane}
    v_lshl_add_u32 v{t}, v{u}, 3, v{t}
    s_lshl_b32 s{sT0}, s{sC}, 9
    s_cmp_lt_u32 s{sC}, 20
    s_cselect_b32 s{sT0}, s{sT0}, {OOB:#x}
    v_add_u32 v{vMst}, s{sT0}, v{t}
    v_cmp_eq_u32 vcc, 0, v{lane}
    v_mov_b32 v{u}, 0
    v_cndmask_b32 v{vZ}, v{vT3}, v{u}, vcc
    s_lshl_b32 s{sT0}, s{sH}, 8
    s_add_u32 s{sT0}, s{sT0}, {L.PROG2}
    v_and_b32 v{u}, 1, v{lane}
    v_lshlrev_b32 v{u}, 7, v{u}
    v_add_u32 v{vFl}, s{sT0}, v{u}
    s_lshl_b32 s{sT0}, s{sW}, 10
    s_add_u32 s{sT0}, s{sT0}, {LDS_VP}
    v_add_u32 v{vVP}, s{sT0}, v{vL16}
    v_mov_b32 v{vONES}, 0x3f803f80
    v_mov_b32 v{vONES+1}, 0x3f803f80
    v_mov_b32 v{vONES+2}, 0x3f803f80
    v_mov_b32 v{vONES+3}, 0x3f803f80
    v_mov_b32 v{t}, 0xf149f2ca
    v_cmp_gt_u32 vcc, 2, v{g}
    v_cndmask_b32 v{vCM}, 0, v{t}, vcc
    v_mov_b32 v{vCM+1}, v{vCM}
    v_mov_b32 v{vCM+2}, v{vCM}
    v_mov_b32 v{vCM+3}, v{vCM}''')
    e(f'''v_and_b32 v{t}, 31, v{lane}
    v_lshlrev_b32 v{t}, 4, v{t}
    v_add_u32 v{u}, {L.VM}, v{t}
    v_add_u32 v{t}, {L.KM}, v{t}
    v_cmp_gt_u32 vcc, 32, v{lane}
    v_cndmask_b32 v{vKV}, v{u}, v{t}, vcc''')
    cexp = (192 ** -0.5) * math.log2(math.e)
    cbits = struct.unpack('<I', struct.pack('<f', cexp))[0]
    e(f'''s_mov_b32 s{sCexp}, {cbits:#x}
    s_mul_i32 s{sMEMBx}, s{sX}, 40960
    s_add_u32 s{sMEMBx}, s{sMEMBx}, {L.MEMB}
    s_mul_i32 s{sQKh}, s{sH}, 24576
    s_add_u32 s{sQKh}, s{sQKh}, {L.QK}
    s_mul_i32 s{sOBx}, s{sX}, 49152
    s_add_u32 s{sOBx}, s{sOBx}, {L.OB}''')
    if stamps == 2:
        e(f'''s_lshl_b32 s{sT0}, s2, 2
        s_add_u32 s{sT0}, s{sT0}, s{sW}
        s_lshl_b32 s{sT0}, s{sT0}, 9
        s_add_u32 s{sSTB}, s{sT0}, {L.STAMP}''')
        for i in range(NST): e(f's_mov_b32 s{64+2*i}, 0')
    elif stamps:
        e(f'''s_sub_u32 s{sT1}, s{sC}, 8
        s_cmp_ge_u32 s{sC}, 20
        s_cselect_b32 s{sT1}, s{sT1}, s{sC}
        s_lshl_b32 s{sT0}, s{sT1}, 2
        s_add_u32 s{sT0}, s{sT0}, s{sW}
        s_lshl_b32 s{sT0}, s{sT0}, 14
        s_add_u32 s{sSTB}, s{sT0}, {L.STAMP}
        s_cmp_eq_u32 s{sX}, 0
        s_cselect_b32 s{sSTB}, s{sSTB}, 0x7f000000
        s_cmp_lt_u32 s{sC}, 12
        s_cselect_b32 s{sT1}, s{sSTB}, 0x7f000000
        s_cmp_ge_u32 s{sC}, 20
        s_cselect_b32 s{sSTB}, s{sSTB}, s{sT1}''')
        for i in range(NST): e(f's_mov_b32 s{64+2*i}, 0')
    e(f'''s_mov_b32 s60, s{sPTR+4}
    s_mov_b32 s61, s{sPTR+5}
    s_mov_b32 s62, 10240
    s_mov_b32 s63, 0x20000
    v_and_b32 v{lane}, 63, v0
    v_and_b32 v{t}, 7, v{lane}
    v_mul_u32_u24 v{t}, 1280, v{t}
    v_lshrrev_b32 v{u}, 3, v{lane}
    v_and_b32 v{u}, 3, v{u}
    v_lshl_add_u32 v{t}, v{u}, 4, v{t}
    s_mul_i32 s{sT0}, s{sW}, 320
    v_add_u32 v{t}, s{sT0}, v{t}
    v_add_u32 v{a_}, 256, v{t}
    v_lshrrev_b32 v{u}, 5, v{lane}
    v_lshl_add_u32 v{t}, v{u}, 6, v{t}
    buffer_load_dwordx4 {R(MEMR)}, v{t}, s[60:63], 0 offen
    buffer_load_dwordx4 {R(MEMR+4)}, v{t}, s[60:63], 0 offen offset:128
    buffer_load_dwordx4 {R(MEMR+8)}, v{a_}, s[60:63], 0 offen''')
    if TLBW == 1:
        e(f'''v_and_b32 v{t}, 63, v0
        v_and_b32 v{u}, 3, v{t}
        v_lshlrev_b32 v{u}, 21, v{u}
        v_min_u32 v{u}, {L.RING*98304 - 64}, v{u}
        v_add_u32 v{a_}, {L.KM}, v{u}
        v_add_u32 v{u}, {L.VM}, v{u}
        v_cmp_gt_u32 vcc, 4, v{t}
        v_cndmask_b32 v{a_}, v{u}, v{a_}, vcc
        s_mul_i32 s{sT0}, s{sH}, {L.RING*12288}
        v_and_b32 v{u}, 1, v{t}
        v_mul_u32_u24 v{u}, {L.RING*12288 - 64}, v{u}
        v_add_u32 v{u}, s{sT0}, v{u}
        v_add_u32 v{vT0}, {L.KT}, v{u}
        v_add_u32 v{u}, {L.VT}, v{u}
        v_cmp_gt_u32 vcc, 10, v{t}
        v_cndmask_b32 v{u}, v{u}, v{vT0}, vcc
        v_cmp_gt_u32 vcc, 8, v{t}
        v_cndmask_b32 v{a_}, v{u}, v{a_}, vcc
        v_cmp_gt_u32 vcc, 12, v{t}
        v_cndmask_b32 v{a_}, v{vT3}, v{a_}, vcc
        buffer_load_dword v234, v{a_}, {WS}, 0 offen''')
    if TLBW and TWIN:
        e(f'''v_and_b32 v{t}, 63, v0
        v_lshlrev_b32 v{u}, 21, v{t}
        v_min_u32 v{u}, {128*192*1024 - 64}, v{u}
        v_add_u32 v{u}, {L.OT}, v{u}
        s_lshl_b32 s{sT0}, s{sX}, 2
        s_add_u32 s{sT0}, s{sT0}, s{sC}
        s_sub_u32 s{sT0}, s{sT0}, 20
        s_and_b32 s{sT0}, s{sT0}, 31
        s_mul_i32 s{sT0}, s{sT0}, {L.RING*12288}
        s_add_u32 s{sT0}, s{sT0}, {L.QT}
        v_and_b32 v{a_}, 1, v{t}
        v_mul_u32_u24 v{a_}, {L.RING*12288 - 64}, v{a_}
        v_add_u32 v{a_}, s{sT0}, v{a_}
        v_cmp_gt_u32 vcc, 13, v{t}
        v_cndmask_b32 v{a_}, v{a_}, v{u}, vcc
        v_cmp_gt_u32 vcc, 15, v{t}
        v_cndmask_b32 v{a_}, v{vT3}, v{a_}, vcc
        buffer_load_dword v235, v{a_}, {WS}, 0 offen''')
    if TLBW >= 2:
        e(f'''v_and_b32 v{t}, 63, v0
        v_and_b32 v{u}, 31, v{t}
        v_mul_u32_u24 v{a_}, {196608}, v{u}
        v_lshrrev_b32 v{vT0}, 5, v{t}
        v_mul_u32_u24 v{vT1}, {L.VM - L.KM}, v{vT0}
        v_add_u32 v{a_}, v{a_}, v{vT1}
        v_add_u32 v{a_}, {L.KM}, v{a_}
        buffer_load_dword v234, v{a_}, {WS}, 0 offen
        v_mul_u32_u24 v{a_}, {24576}, v{u}
        s_mov_b32 s{sT1}, {L.VT - L.KT}
        v_mul_lo_u32 v{vT1}, v{vT0}, s{sT1}
        v_add_u32 v{a_}, v{a_}, v{vT1}
        s_mul_i32 s{sT0}, s{sH}, {L.RING*12288}
        s_add_u32 s{sT0}, s{sT0}, {L.KT}
        buffer_load_dword v235, v{a_}, {WS}, s{sT0} offen''')
    census_wait()
    if DUAL:
        e(f'''v_add_u32 v{vPst2}, 0x2000, v{vPst}
        s_lshr_b32 s{sPRB}, s2, 4
        s_lshl_b32 s{sPRB}, s{sPRB}, 14
        s_and_b32 s{sT0}, s2, 15
        s_lshl_b32 s{sT0}, s{sT0}, 9
        s_add_u32 s{sPRB}, s{sPRB}, s{sT0}
        s_add_u32 s{sPRB}, s{sPRB}, {L.PROBE_OFF}
        s_add_u32 s{sPRB}, s{sPRB}, s{sPARTB}
        s_mov_b32 s{sPM0}, -1
        s_mov_b32 s{sPM1}, -1''')
        if NEARF is not None:
            e(f'''s_lshr_b32 s{sT0}, s{sXCC}, 2
            s_xor_b32 s{sT0}, s{sT0}, {NEARF}
            s_lshl_b32 s{sT0}, s{sT0}, 13''')
            for xx in range(8): e(f'v_add_u32 v{vPld+xx}, s{sT0}, v{vPld+xx}')
    else:
        for xx in range(8):
            e(f'''s_lshr_b32 s{sT0}, s{sPAR}, {xx}
            s_and_b32 s{sT0}, s{sT0}, 1
            s_lshl_b32 s{sT0}, s{sT0}, 13
            v_add_u32 v{vPld+xx}, s{sT0}, v{vPld+xx}''')
        e(f'''s_lshr_b32 s{sT0}, s{sPAR}, s{sX}
        s_and_b32 s{sT0}, s{sT0}, 1
        s_lshl_b32 s{sT0}, s{sT0}, 13
        v_add_u32 v{vPst}, s{sT0}, v{vPst}''')
    if stamps:
        for i in range(NST): e(f's_mov_b32 s{64+2*i}, 0')

    tS, tL, tO, tOp = MEMR, MEMR + 20, MEMR + 28, MEMR + 44
    tP, tInv, tCM, tCD, tKM, tVM = 72, 82, 84, 88, 92, 93
    LDS_TP = 16384
    aK_, aQ_, aKm_, aV_, aVm_ = 120, 168, 216, 120, 168
    sHT, sTA, sTB, sTC = 59, 23, 60, 61
    AR = lambda b, n=4: f'a[{b}:{b+n-1}]'
    def twin_consts():
        e(f"""s_lshl_b32 s{sHT}, s{sX}, 2
        s_add_u32 s{sHT}, s{sHT}, s{sC}
        s_sub_u32 s{sHT}, s{sHT}, 20
        v_and_b32 v{vT1}, 63, v0
        v_and_b32 v{vT0}, 15, v{vT1}
        v_lshrrev_b32 v{vT2}, 4, v{vT1}
        v_lshlrev_b32 v{tKM}, 4, v{vT0}
        v_lshl_add_u32 v{tKM}, v{vT2}, 7, v{tKM}
        v_cmp_gt_u32 vcc, 8, v{vT0}
        v_cndmask_b32 v{tKM}, v{vT3}, v{tKM}, vcc
        v_lshlrev_b32 v{tVM}, 3, v{vT1}
        v_cmp_gt_u32 vcc, 32, v{vT1}
        v_cndmask_b32 v{tVM}, v{vT3}, v{tVM}, vcc
        v_mov_b32 v{tInv}, 0xf149f2ca
        v_cmp_le_u32 vcc, 2, v{vT2}
        v_cndmask_b32 v{tCM}, 0, v{tInv}, vcc
        v_mov_b32 v{tCM+1}, v{tCM}
        v_mov_b32 v{tCM+2}, v{tCM}
        v_mov_b32 v{tCM+3}, v{tCM}
        v_lshlrev_b32 v{vT2}, 2, v{vT2}""")
        for r in range(4):
            e(f"""v_add_u32 v{vT1}, {r}, v{vT2}
            v_cmp_gt_u32 vcc, v{vT1}, v{vT0}
            v_cndmask_b32 v{tCD+r}, 0, v{tInv}, vcc""")
    SM0, S00, SM1, S10, S11 = tS, tS + 4, tS + 8, tS + 12, tS + 16
    PM0, PT0, PM1, PT1 = tP, tP + 2, tP + 4, tP + 6
    def twin_softmax(regs, mx, t_):
        e(f'v_max3_f32 v{mx}, v{regs[0]}, v{regs[1]}, v{regs[2]}')
        r = regs[3:]
        while r:
            if len(r) >= 2: e(f'v_max3_f32 v{mx}, v{mx}, v{r[0]}, v{r[1]}'); r = r[2:]
            else: e(f'v_max_f32 v{mx}, v{mx}, v{r[0]}'); r = r[1:]
        e(f"""v_mov_b32 v{t_}, v{mx}
        v_permlane32_swap_b32 v{mx}, v{t_}
        v_max_f32 v{mx}, v{mx}, v{t_}
        v_mov_b32 v{t_}, v{mx}
        v_permlane16_swap_b32 v{mx}, v{t_}
        v_max_f32 v{mx}, v{mx}, v{t_}
        v_mul_f32 v{mx}, s{sCexp}, v{mx}""")
        for x in regs: e(f'v_fma_f32 v{x}, v{x}, s{sCexp}, -v{mx}')
        for x in regs: e(f'v_exp_f32 v{x}, v{x}')
    def twin_partA():
        vv = [vL16, vL16b, vL16c]
        e(f"""s_sub_u32 s{sT2}, s{sS}, 2
        s_and_b32 s{sT2}, s{sT2}, {L.RING-1}
        s_lshl_b32 s{sT0}, s{sHT}, {L.RL}
        s_add_u32 s{sT0}, s{sT0}, s{sT2}
        s_mul_i32 s{sT0}, s{sT0}, 12288
        s_add_u32 s{sTA}, s{sT0}, {L.KT}
        s_add_u32 s{sTB}, s{sT0}, {L.QT}
        s_lshl_b32 s{sT1}, s{sT2}, 5
        s_add_u32 s{sT1}, s{sT1}, s{sHT}
        s_mul_i32 s{sT1}, s{sT1}, 3072
        s_add_u32 s{sTC}, s{sT1}, {L.KM}""")
        for i in range(12): e(f'buffer_load_dwordx4 {AR(aK_+4*i)}, v{vv[i//4]}, {WS}, s{sTA} offen offset:{(i%4)*1024} sc1')
        for j in range(6): e(f'buffer_load_dwordx4 {AR(aKm_+4*j)}, v{tKM}, {WS}, s{sTC} offen offset:{j*512} sc1')
        for i in range(12): e(f'buffer_load_dwordx4 {AR(aQ_+4*i)}, v{vv[i//4]}, {WS}, s{sTB} offen offset:{(i%4)*1024} sc1')
        for j in range(6):
            e(f's_waitcnt vmcnt({5-j})')
            q0 = AR(aQ_ + 4 * j); q1 = AR(aQ_ + 24 + 4 * j); k0 = AR(aK_ + 4 * j); k1 = AR(aK_ + 24 + 4 * j); km = AR(aKm_ + 4 * j)
            f = j == 0
            e(f'v_mfma_f32_16x16x32_bf16 {R(SM0)}, {km}, {q0}, {R(tCM) if f else R(SM0)}')
            e(f'v_mfma_f32_16x16x32_bf16 {R(S00)}, {k0}, {q0}, {R(tCD) if f else R(S00)}')
            e(f'v_mfma_f32_16x16x32_bf16 {R(SM1)}, {km}, {q1}, {R(tCM) if f else R(SM1)}')
            e(f'v_mfma_f32_16x16x32_bf16 {R(S10)}, {k0}, {q1}, ' + ('0' if f else R(S10)))
            e(f'v_mfma_f32_16x16x32_bf16 {R(S11)}, {k1}, {q1}, {R(tCD) if f else R(S11)}')
        twin_softmax(list(range(SM0, SM0 + 8)), vT0, vT1)
        twin_softmax(list(range(SM1, SM1 + 12)), vT2, vT1)
        for (dst, src) in ((PM0, SM0), (PT0, S00), (PM1, SM1), (PT1, S10), (PT1 + 2, S11)):
            e(f'v_cvt_pk_bf16_f32 v{dst}, v{src}, v{src+1}')
            e(f'v_cvt_pk_bf16_f32 v{dst+1}, v{src+2}, v{src+3}')
        L0, L1 = tL, tL + 4
        e(f"""v_mfma_f32_16x16x16_bf16 {R(L0)}, {R(vONES,2)}, {R(PM0,2)}, 0
        v_mfma_f32_16x16x16_bf16 {R(L1)}, {R(vONES,2)}, {R(PM1,2)}, 0
        v_mfma_f32_16x16x16_bf16 {R(L0)}, {R(vONES,2)}, {R(PT0,2)}, {R(L0)}
        v_mfma_f32_16x16x32_bf16 {R(L1)}, {R(vONES)}, {R(PT1)}, {R(L1)}
        v_rcp_f32 v{tInv}, v{L0}
        v_rcp_f32 v{tInv+1}, v{L1}
        s_and_b32 s{sT0}, s{sS}, 1
        s_mul_i32 s{sT0}, s{sT0}, 3072
        v_add_u32 v{vT0}, s{sT0}, v{vL16}
        ds_write_b128 v{vT0}, {R(tP)} offset:{LDS_TP}
        ds_write_b128 v{vT0}, {R(tP+4)} offset:{LDS_TP+1024}
        ds_write_b128 v{vT0}, {R(tP+8)} offset:{LDS_TP+2048}
        s_waitcnt lgkmcnt(0)""")
    def twin_partB(half):
        vv = [vL16, vL16b, vL16c]
        e(f"""s_sub_u32 s{sT2}, s{sS}, 3
        s_and_b32 s{sT3}, s{sT2}, {L.RING-1}
        s_lshl_b32 s{sT0}, s{sHT}, {L.RL}
        s_add_u32 s{sT0}, s{sT0}, s{sT3}
        s_mul_i32 s{sT0}, s{sT0}, 12288
        s_add_u32 s{sTA}, s{sT0}, {L.VT}
        s_lshl_b32 s{sT1}, s{sT3}, 5
        s_add_u32 s{sT1}, s{sT1}, s{sHT}
        s_mul_i32 s{sT1}, s{sT1}, 3072
        s_add_u32 s{sTC}, s{sT1}, {L.VM}
        s_mul_i32 s{sT0}, s{sT2}, {2*192*1024}
        s_mul_i32 s{sT1}, s{sHT}, 6144
        s_add_u32 s{sT0}, s{sT0}, s{sT1}
        s_add_u32 s{sTB}, s{sT0}, {L.OT}""")
        e(f"""s_add_u32 s{sT0}, s{sS}, 1
        s_and_b32 s{sT0}, s{sT0}, 1
        s_mul_i32 s{sT0}, s{sT0}, 3072
        v_add_u32 v{vT0}, s{sT0}, v{vL16}
        ds_read_b128 {R(tP)}, v{vT0} offset:{LDS_TP}
        ds_read_b128 {R(tP+4)}, v{vT0} offset:{LDS_TP+1024}
        ds_read_b128 {R(tP+8)}, v{vT0} offset:{LDS_TP+2048}""")
        for i in range(6 * half, 6 * half + 6):
            e(f'buffer_load_dwordx2 {AR(aVm_+2*i,2)}, v{tVM}, {WS}, s{sTC} offen offset:{i*256} sc1')
            e(f'buffer_load_dwordx4 {AR(aV_+4*i)}, v{vv[i//4]}, {WS}, s{sTA} offen offset:{(i%4)*1024} sc1')
        npre = 0
        if PRE2:
            for j in range(3 * half, 3 * half + 3):
                for Tq in range(2):
                    e(f's_add_u32 s{sT0}, s{sTB}, {(2 + Tq)*192*1024}')
                    e(f'buffer_load_dwordx4 a[240:243], v{[vL16, vL16b][j//4]}, {WS}, s{sT0} offen offset:{(j%4)*1024} sc1')
                    npre += 1
        e('s_waitcnt lgkmcnt(0)')
        for jn, j in enumerate(range(3 * half, 3 * half + 3)):
            e(f's_waitcnt vmcnt({8 - 4*jn + 2*jn + npre})')
            for t_ in range(2):
                et = 2 * j + t_
                o0 = tO + 8 * t_; o1 = o0 + 4
                vt = aV_ + 4 * et; vm = aVm_ + 2 * et
                e(f'v_mfma_f32_16x16x16_bf16 {R(o0)}, {AR(vm,2)}, {R(PM0,2)}, 0')
                e(f'v_mfma_f32_16x16x16_bf16 {R(o1)}, {AR(vm,2)}, {R(PM1,2)}, 0')
                e(f'v_mfma_f32_16x16x16_bf16 {R(o0)}, {AR(vt,2)}, {R(PT0,2)}, {R(o0)}')
                e(f'v_mfma_f32_16x16x32_bf16 {R(o1)}, {AR(vt)}, {R(PT1)}, {R(o1)}')
            for Tq in range(2):
                p = tOp + 4 * Tq
                for t_ in range(2):
                    o = tO + 8 * t_ + 4 * Tq
                    for r in range(4): e(f'v_mul_f32 v{o+r}, v{o+r}, v{tInv+Tq}')
                    e(f'v_cvt_pk_bf16_f32 v{p+2*t_}, v{o}, v{o+1}')
                    e(f'v_cvt_pk_bf16_f32 v{p+2*t_+1}, v{o+2}, v{o+3}')
                if Tq: e(f's_add_u32 s{sT0}, s{sTB}, {192*1024}')
                e(f'buffer_store_dwordx4 {R(p)}, v{[vL16, vL16b][j//4]}, {WS}, s{sTB if Tq == 0 else sT0} offen offset:{(j%4)*1024} {"sc1" if OTSC else ""}')

    def prefetch(seg):
        if PROJ:
            Lf = k.label('pf'); Lfo = k.label('pfok')
            e(f's_add_u32 s{sT3}, s{seg}, 1')
            e(Lf + ':')
            e(f'''buffer_load_dword v{vT0}, v{vFl}, {WS}, 0 offen sc1
            s_waitcnt vmcnt(0)
            v_cmp_gt_i32 vcc, s{sT3}, v{vT0}
            s_cbranch_vccz {Lfo}
            s_sleep 1
            s_sub_u32 s{sTO}, s{sTO}, 1
            s_cbranch_scc0 {Lf}
            s_mov_b32 s{sTO}, 0''')
            e(Lfo + ':')
        e(f'''s_lshl_b32 s{sT0}, s{sH}, {L.RL}
        s_and_b32 s{sT1}, s{seg}, {L.RING-1}
        s_add_u32 s{sT0}, s{sT0}, s{sT1}
        s_mul_i32 s{sT0}, s{sT0}, 12288
        s_add_u32 s{sKT}, s{sT0}, {L.KT}
        s_lshl_b32 s{sT1}, s{sJ}, 11
        s_add_u32 s{sT0}, s{sT0}, s{sT1}
        s_add_u32 s{sVT}, s{sT0}, {L.VT}''')
        vv = [vL16, vL16b, vL16c]
        for i in range(12):
            e(f'buffer_load_dwordx4 a[{aKT+4*i}:{aKT+4*i+3}], v{vv[i//4]}, {WS}, s{sKT} offen offset:{(i%4)*1024} sc1')
        for q in range(2):
            e(f'buffer_load_dwordx4 a[{aVT+4*q}:{aVT+4*q+3}], v{vL16}, {WS}, s{sVT} offen offset:{q*1024} sc1')
        if PRE2:
            e(f'''s_and_b32 s{sT0}, s{seg}, {L.RING-1}
            s_lshl_b32 s{sT0}, s{sT0}, 5
            s_add_u32 s{sT0}, s{sT0}, s{sH}
            s_mul_i32 s{sT0}, s{sT0}, 3072
            s_lshl_b32 s{sT1}, s{sJ}, 9
            s_add_u32 s{sT0}, s{sT0}, s{sT1}
            buffer_load_dwordx4 a[240:243], v{vKV}, {WS}, s{sT0} offen sc1''')

    if DUAL and NEARF is None:
        Lnpr = k.label('noprobe')
        e(f's_cmp_lg_u32 s{sW}, 2\ns_cbranch_scc1 {Lnpr}')
        for q in range(NPR):
            for par in range(2):
                e(f'''s_add_u32 s{sT1}, s{sPRB}, {par*8192 + q*128}
                s_memtime s[60:61]
                s_waitcnt lgkmcnt(0)
                buffer_load_dword v{vT0}, v{vZ}, {WS}, s{sT1} offen sc1
                s_waitcnt vmcnt(0)
                s_memtime s[62:63]
                s_waitcnt lgkmcnt(0)
                s_sub_u32 s{sT2}, s62, s60
                s_min_u32 s{sPM0 if par == 0 else sPM1}, s{sPM0 if par == 0 else sPM1}, s{sT2}''')
        e(f's_cmp_lt_u32 s{sPM1}, s{sPM0}\ns_cbranch_scc0 {Lnpr}')
        for xx in range(8): e(f'v_add_u32 v{vPld+xx}, 0x2000, v{vPld+xx}')
        e(Lnpr + ':')
    if TWIN: twin_consts()
    e(f's_mov_b32 s{sS}, 0')
    Lnp = k.label('nopf0')
    e(f's_cmp_lg_u32 s{sW}, 3\ns_cbranch_scc1 {Lnp}')
    prefetch(sS)
    e('s_waitcnt vmcnt(0)')
    e(Lnp + ':')
    tl(2)
    Lslow = k.label('slow')
    e(f's_cmp_lg_u32 s{sMODE}, 0\ns_cbranch_scc1 {Lslow}')

    def loop(SF, twin=False):
        ool = []
        def prog(n, load, chk, consume, cnt=None, second=None, dense=False):
            extra = n if second else 0
            def test(r):
                if len(r) == 1: return [f'v_cmp_eq_u32 vcc, -1, v{r[0]}']
                return [f'v_max_u32 v{vT1}, v{r[0]}, v{r[1]}', f'v_cmp_eq_u32 vcc, -1, v{vT1}']
            for i in range(n + 1):
                if i < n:
                    e(f's_waitcnt vmcnt({n - 1 - i + extra})')
                    r = chk(i)
                    for x in test(r): e(x)
                if i > 0: consume(i - 1)
                if i < n:
                    Lr = k.label('retry'); Lb = k.label('resume')
                    e(f's_cbranch_vccnz {Lr}')
                    e(Lb + ':')
                    blk = [Lr + ':']
                    if stamps and cnt is not None: blk.append(f's_add_u32 s{64+2*cnt}, s{64+2*cnt}, 1')
                    if second:
                        load2, ra, rb_ = second
                        A = ra(i); B = rb_(i)
                        d = B[0] - A[0]
                        blk += [f's_waitcnt vmcnt({n - 1 - i})'] + test([x + d for x in r]) + [f's_cbranch_vccnz {Lr}_2']
                        blk += [f'v_mov_b32 v{x}, v{y}' for x, y in zip(A, B)] + [f's_branch {Lb}', Lr + '_2:']
                        if stamps and cnt is not None: blk.append(f's_add_u32 s{64+2*cnt}, s{64+2*cnt}, 0x100')
                        blk += [f's_sub_u32 s{sTO}, s{sTO}, 1', f's_cbranch_scc1 {Lr}_to', load(i), 's_waitcnt vmcnt(0)'] + test(r)
                        blk += [f's_cbranch_vccnz {Lr}_2', f's_branch {Lb}']
                    elif dense:
                        blk += [load(q) for q in range(i, n)]
                        if n - i < 4: blk += [f's_sleep {DRS}'] if DRS else []
                        blk += [load(i), f's_waitcnt vmcnt({n - i})'] + test(r) + [f's_cbranch_vccz {Lb}', Lr + '_d:']
                        if stamps and cnt is not None: blk.append(f's_add_u32 s{64+2*cnt}, s{64+2*cnt}, 0x100')
                        blk += [f's_sub_u32 s{sTO}, s{sTO}, 1', f's_cbranch_scc1 {Lr}_to', load(i), 's_waitcnt vmcnt(1)'] + test(r)
                        blk += [f's_cbranch_vccnz {Lr}_d', f's_branch {Lb}']
                    else:
                        blk += [f's_sub_u32 s{sTO}, s{sTO}, 1', f's_cbranch_scc1 {Lr}_to'] + [load(q) for q in range(i, n)] + [f's_waitcnt vmcnt({n - 1 - i})'] + test(r)
                        blk += [f's_cbranch_vccnz {Lr}', f's_branch {Lb}']
                    blk += [Lr + '_to:', f's_mov_b32 s{sTO}, 0', 's_waitcnt vmcnt(0)', f's_branch {Lb}']
                    ool.append(blk)
        Ltop = k.label('step'); Lafter = k.label('gotmem'); Lafter2 = k.label('gotmem2')
        e(f's_branch {Lafter}')
        e(Ltop + ':')
        e(f'''s_and_b32 s{sT0}, s{sS}, 3
        s_mul_i32 s{sA}, s{sT0}, 10240
        s_add_u32 s{sA}, s{sA}, s{sMEMBx}''')
        if (D4T if twin else D4): e(f's_sleep {D4T if twin else D4}')
        MD = vX if (DR & 1) else MEMR
        mld = [f'buffer_load_dwordx4 {R(MD)}, v{vMld}, {WS}, s{sA} offen sc1',
               f'buffer_load_dwordx4 {R(MD+4)}, v{vMld}, {WS}, s{sA} offen offset:1024 sc1',
               f'buffer_load_dwordx4 {R(MD+8)}, v{vMld2}, {WS}, s{sA} offen sc1']
        mwr = [f'ds_write_b128 v{vMld}, {R(MD)}', f'ds_write_b128 v{vMld}, {R(MD+4)} offset:1024', f'ds_write_b128 v{vMld2}, {R(MD+8)}']
        mwr0 = [f'ds_write_b128 v{vMld}, {R(MEMR)}', f'ds_write_b128 v{vMld}, {R(MEMR+4)} offset:1024', f'ds_write_b128 v{vMld2}, {R(MEMR+8)}']
        for x in mld: e(x)
        sec = None
        if DS4 is not None:
            if DS4: e(f's_sleep {DS4}')
            for i, x in enumerate(mld): e(x.replace(R(MEMR+4*i), R(vX+4*i)))
            sec = (None, lambda i: list(range(MEMR+4*i, MEMR+4*i+4)), lambda i: list(range(vX+4*i, vX+4*i+4)))
        prog(3, lambda i: mld[i], lambda i: [MD+4*i, MD+4*i+2], lambda i: e(mwr[i]), cnt=13, second=sec, dense=bool(DR & 1))
        e(f's_branch {Lafter2}')
        e(Lafter + ':')
        for x in mwr0: e(x)
        e(Lafter2 + ':')
        stamp(0)
        e(f'''s_and_b32 s{sT0}, s{sS}, 3
        s_mul_i32 s{sB}, s{sT0}, 6144
        s_add_u32 s{sB}, s{sB}, s{sQKh}
        s_mul_i32 s{sO_}, s{sT0}, 12288
        s_add_u32 s{sO_}, s{sO_}, s{sOBx}
        s_mul_i32 s{sPp}, s{sT0}, 393216
        s_add_u32 s{sPp}, s{sPp}, s{sPARTB}
        s_add_u32 s{sT1}, s{sS}, 1
        s_and_b32 s{sT1}, s{sT1}, 3
        s_mul_i32 s{sE}, s{sT1}, 10240
        s_add_u32 s{sE}, s{sE}, s{sMEMBx}
        s_waitcnt lgkmcnt(0)
        s_barrier''')
        stamp(1, True)
        if DENSE:
            VR = MEMR + 40
            for i in range(10):
                e(f'ds_read_b128 {R(MEMR+4*i)}, v{vMdA if i < 5 else vMdB} offset:{(i%5)*1024}')
            for i in range(10):
                e('s_waitcnt lgkmcnt(9)')
                e(f'v_mfma_f32_16x16x32_bf16 {R(vACC)}, a[{aW1+8*i}:{aW1+8*i+3}], {R(MEMR+4*i)}, ' + ('0' if i == 0 else R(vACC)))
                e(f'ds_read_b128 {R(VR+4*i)}, v{vMrdA} offset:{i*512}')
                e(f'v_mfma_f32_16x16x32_bf16 {R(vAC2)}, a[{aW1+8*i+4}:{aW1+8*i+7}], {R(MEMR+4*i)}, ' + ('0' if i == 0 else R(vAC2)))
            e('s_waitcnt lgkmcnt(9)')
            e(f'v_mfma_f32_16x16x32_bf16 {R(vACV)}, {R(VR)}, a[{aWV}:{aWV+3}], 0')
        else:
            VR = MEMR
            def memrd(b): return f'ds_read_b128 {R(MEMR+4*b)}, v{vMrdA if b < 10 else vMrdB} offset:{(b%10)*512}'
            NPRE = 12
            for b in range(NPRE): e(memrd(b))
            for b in range(20):
                nxt = b + NPRE
                if nxt < 20: e(memrd(nxt)); e(f's_waitcnt lgkmcnt({NPRE})')
                else: e(f's_waitcnt lgkmcnt({19-b})')
                c = '0' if b == 0 else R(vACC)
                e(f'v_mfma_f32_16x16x32_bf16 {R(vACC)}, a[{aW1+4*b}:{aW1+4*b+3}], {R(MEMR+4*b)}, {c}')
            e(f'v_mfma_f32_16x16x32_bf16 {R(vACV)}, {R(MEMR)}, a[{aWV}:{aWV+3}], 0')
        e(f'''s_and_b32 s{sT0}, s{sS}, {L.RING-1}
        s_lshl_b32 s{sT0}, s{sT0}, 5
        s_add_u32 s{sT0}, s{sT0}, s{sH}
        s_mul_i32 s{sT0}, s{sT0}, 3072
        s_lshl_b32 s{sT1}, s{sJ}, 9
        s_add_u32 s{sT0}, s{sT0}, s{sT1}
        s_add_u32 s{sKM}, s{sT0}, {L.KM}
        s_add_u32 s{sVM}, s{sT0}, {L.VM}
''')
        if DENSE:
            for r in range(4): e(f'v_add_f32_dpp v{vACC+r}, v{vAC2+r}, v{vACC+r} row_ror:8 row_mask:0xf bank_mask:0xf')
        e(f'''v_cvt_pk_bf16_f32 v{vQK}, v{vACC}, v{vACC+1}
        v_cvt_pk_bf16_f32 v{vQK+1}, v{vACC+2}, v{vACC+3}
        buffer_store_dwordx2 {R(vQK,2)}, v{vXst}, {WS}, s{sB} offen {SF}''')
        stamp(2)
        for b in range(1, 10):
            if DENSE: e(f's_waitcnt lgkmcnt({9-b})')
            e(f'v_mfma_f32_16x16x32_bf16 {R(vACV)}, {R(VR+4*b)}, a[{aWV+4*b}:{aWV+4*b+3}], {R(vACV)}')
        LS = k.label('swave'); Lnk = k.label('nokm'); Llast = k.label('last')
        xloads = [f'buffer_load_dwordx4 {R(vX+4*i)}, v{[vL16, vL16b][i//4]}, {WS}, s{sB} offen offset:{(i%4)*1024} sc1' for i in range(6)]
        Lb3 = k.label('b3'); Lb4 = k.label('b4'); Lb5 = k.label('b5')
        def poison_soffsets():
            e(f"""s_add_u32 s{sT0}, s{sS}, 2
            s_and_b32 s{sT0}, s{sT0}, 3
            s_mul_i32 s{sA2}, s{sT0}, 10240
            s_add_u32 s{sA2}, s{sA2}, s{sMEMBx}
            s_mul_i32 s{sB2}, s{sT0}, 6144
            s_add_u32 s{sB2}, s{sB2}, s{sQKh}
            s_mul_i32 s{sO2}, s{sT0}, 12288
            s_add_u32 s{sO2}, s{sO2}, s{sOBx}
            s_mul_i32 s{sP2}, s{sT0}, 393216
            s_add_u32 s{sP2}, s{sP2}, s{sPARTB}""")
        def v_assemble():
            for r in range(4):
                e(f'v_add_f32 v{vVPr+r}, v{vVPr+r}, v{vVPr+8+r}')
                e(f'v_add_f32 v{vVPr+4+r}, v{vVPr+4+r}, v{vACV+r}')
            e(f"""v_cvt_pk_bf16_f32 v{vVMf}, v{vVPr}, v{vVPr+1}
            v_cvt_pk_bf16_f32 v{vVMf+1}, v{vVPr+2}, v{vVPr+3}
            v_cvt_pk_bf16_f32 v{vVMf+2}, v{vVPr+4}, v{vVPr+5}
            v_cvt_pk_bf16_f32 v{vVMf+3}, v{vVPr+6}, v{vVPr+7}""")
        vp_reads = f"""ds_read_b128 {R(vVPr)}, v{vL16} offset:{LDS_VP}
        ds_read_b128 {R(vVPr+4)}, v{vL16} offset:{LDS_VP+1024}
        ds_read_b128 {R(vVPr+8)}, v{vL16} offset:{LDS_VP+2048}"""
        e(f's_cmp_eq_u32 s{sW}, 3\ns_cbranch_scc1 {LS}')
        e(f'ds_write_b128 v{vVP}, {R(vACV)}')
        poison_soffsets()
        e(f"""s_waitcnt lgkmcnt(0)
        s_barrier
        s_cmp_eq_u32 s{sS}, {nsteps-1}
        s_cbranch_scc1 {Llast}
        buffer_store_dwordx2 {R(vNEG1,2)}, v{vXst}, {WS}, s{sB2} offen {SF}""")
        if twin:
            L1_ = k.label('tw1'); L2_ = k.label('tw2')
            e(f"""s_cmp_lg_u32 s{sW}, 2
            s_cbranch_scc1 {L1_}_n
            buffer_store_dwordx2 {R(vQK,2)}, v{vKMst}, {WS}, s{sKM} offen {SF}""")
            e(L1_ + '_n:')
            e(f"""s_barrier
            s_cmp_eq_u32 s{sW}, 1
            s_cbranch_scc1 {L1_}
            s_cmp_eq_u32 s{sW}, 2
            s_cbranch_scc1 {L2_}
            s_cmp_lt_u32 s{sS}, 2
            s_cbranch_scc1 {Lb5}
            s_cmp_gt_u32 s{sS}, {nsteps-3}
            s_cbranch_scc1 {Lb5}""")
            twin_partA()
            stamp(6)
            e(f's_branch {Lb5}')
            e(L1_ + ':')
            e(f's_cmp_lt_u32 s{sS}, 3\ns_cbranch_scc1 {Lb5}')
            twin_partB(0)
            stamp(7)
            e(f's_branch {Lb5}')
            e(L2_ + ':')
            e(f's_cmp_lt_u32 s{sS}, 3\ns_cbranch_scc1 {Lb5}')
            twin_partB(1)
            stamp(7)
            e(f's_branch {Lb5}')
        e(f"""s_cmp_lg_u32 s{sW}, 2
        s_cbranch_scc1 {Lb3}""")
        e(f"""buffer_store_dwordx2 {R(vQK,2)}, v{vKMst}, {WS}, s{sKM} offen {SF}
        buffer_store_dwordx2 {R(vNEG1,2)}, v{vMst}, {WS}, s{sA2} offen {SF}""")
        stamp_flush()
        e(f"""s_cmp_lg_u32 s{sC}, 0
        s_cbranch_scc1 {Lb3}
        v_mov_b32 v{vT0}, s{sS}
        s_lshl_b32 s{sT0}, s{sX}, 7
        s_add_u32 s{sT0}, s{sT0}, {L.PROG}
        buffer_store_dword v{vT0}, v{vZ}, {WS}, s{sT0} offen {SF}
        s_branch {Lb3}""")
        e(Llast + ':')
        e(f"""s_cmp_lg_u32 s{sW}, 2
        s_cbranch_scc1 {Lexit}
        buffer_store_dwordx2 {R(vQK,2)}, v{vKMst}, {WS}, s{sKM} offen
        s_branch {Lexit}""")
        e(LS + ':')
        Lvmst = k.label('vmst')
        e(f's_cmp_lg_u32 s{sS}, {nsteps-1}\ns_cbranch_scc1 {Lvmst}')
        e('s_barrier')
        e(vp_reads)
        e('s_waitcnt lgkmcnt(0)')
        v_assemble()
        e(f"""buffer_store_dwordx2 {R(vQK,2)}, v{vKMst}, {WS}, s{sKM} offen
        buffer_store_dwordx2 {R(vVMf,2)}, v{vVMst}, {WS}, s{sVM} offen
        buffer_store_dwordx2 {R(vVMf+2,2)}, v{vVMst}, {WS}, s{sVM} offen offset:256
        s_branch {Lexit}""")
        e(Lvmst + ':')
        if D1: e(f's_sleep {D1}')
        for x in xloads: e(x)
        SM, S0, S1 = vS, vS + 4, vS + 8
        def sc_consume(j):
            X = R(vX + 4 * j)
            e(f'v_mfma_f32_16x16x32_bf16 {R(S0)}, a[{aKT+4*j}:{aKT+4*j+3}], {X}, ' + ('0' if j == 0 else R(S0)))
            e(f'v_mfma_f32_16x16x32_bf16 {R(S1)}, a[{aKT+24+4*j}:{aKT+24+4*j+3}], {X}, ' + ('0' if j == 0 else R(S1)))
            e(f'v_mfma_f32_16x16x32_bf16 {R(SM)}, {X}, {X}, ' + (R(vCM) if j == 0 else R(SM)))
        sec = None
        if DS1 is not None:
            if DS1: e(f's_sleep {DS1}')
            for i, x in enumerate(xloads): e(x.replace(R(vX+4*i), R(MEMR+4*i)))
            sec = (None, lambda i: list(range(vX+4*i, vX+4*i+4)), lambda i: list(range(MEMR+4*i, MEMR+4*i+4)))
        prog(6, lambda j: xloads[j], lambda j: [vX+4*j, vX+4*j+2], sc_consume, cnt=10, second=sec, dense=bool(DR & 2))
        e('s_barrier')
        e(vp_reads)
        stamp(4)
        e(f"""v_max3_f32 v{vT0}, v{S0}, v{S0+1}, v{S0+2}
        v_max3_f32 v{vT1}, v{S1}, v{S1+1}, v{S1+2}
        v_max3_f32 v{vT0}, v{vT0}, v{S0+3}, v{S1+3}
        v_max3_f32 v{vT1}, v{vT1}, v{SM}, v{SM+1}
        v_max3_f32 v{vT0}, v{vT0}, v{SM+2}, v{SM+3}
        v_max_f32 v{vT0}, v{vT0}, v{vT1}
        v_mov_b32 v{vT1}, v{vT0}
        v_permlane32_swap_b32 v{vT0}, v{vT1}
        v_max_f32 v{vT0}, v{vT0}, v{vT1}
        v_mov_b32 v{vT1}, v{vT0}
        v_permlane16_swap_b32 v{vT0}, v{vT1}
        v_max_f32 v{vT0}, v{vT0}, v{vT1}
        v_mul_f32 v{vT0}, s{sCexp}, v{vT0}""")
        for r in list(range(4, 12)) + list(range(4)): e(f'v_fma_f32 v{vS+r}, v{vS+r}, s{sCexp}, -v{vT0}')
        for r in range(4, 12): e(f'v_exp_f32 v{vS+r}, v{vS+r}')
        PT = R(vP); PM = R(vP + 4, 2)
        e(f"""v_cvt_pk_bf16_f32 v{vP}, v{S0}, v{S0+1}
        v_cvt_pk_bf16_f32 v{vP+1}, v{S0+2}, v{S0+3}
        v_cvt_pk_bf16_f32 v{vP+2}, v{S1}, v{S1+1}
        v_cvt_pk_bf16_f32 v{vP+3}, v{S1+2}, v{S1+3}
        v_exp_f32 v{SM}, v{SM}
        v_exp_f32 v{SM+1}, v{SM+1}
        v_mfma_f32_16x16x32_bf16 {R(vLs)}, {R(vONES)}, {PT}, 0
        v_exp_f32 v{SM+2}, v{SM+2}
        v_exp_f32 v{SM+3}, v{SM+3}
        v_mfma_f32_16x16x32_bf16 {R(vO)}, a[{aVT}:{aVT+3}], {PT}, 0
        v_cvt_pk_bf16_f32 v{vP+4}, v{SM}, v{SM+1}
        v_cvt_pk_bf16_f32 v{vP+5}, v{SM+2}, v{SM+3}
        v_mfma_f32_16x16x32_bf16 {R(vO+4)}, a[{aVT+4}:{aVT+7}], {PT}, 0
        s_waitcnt lgkmcnt(0)
        v_mfma_f32_16x16x16_bf16 {R(vLs)}, {R(vONES,2)}, {PM}, {R(vLs)}""")
        v_assemble()
        e(f"""v_mfma_f32_16x16x16_bf16 {R(vO)}, {R(vVMf,2)}, {PM}, {R(vO)}
        v_rcp_f32 v{vT0}, v{vLs}
        v_mfma_f32_16x16x16_bf16 {R(vO+4)}, {R(vVMf+2,2)}, {PM}, {R(vO+4)}
        v_mov_b32 v{vT1}, v{vT0}""")
        for r in range(4): e(f'v_pk_mul_f32 {R(vO+2*r,2)}, {R(vO+2*r,2)}, v[{vT0}:{vT0+1}]')
        for r in range(4): e(f'v_cvt_pk_bf16_f32 v{vOp+r}, v{vO+2*r}, v{vO+2*r+1}')
        e(f'buffer_store_dwordx4 {R(vOp)}, v{vOst}, {WS}, s{sO_} offen {SF}')
        stamp(5)
        if twin:
            e('s_barrier')
            poison_soffsets()
            e(f'''buffer_store_dwordx2 {R(vNEG1,2)}, v{vXst}, {WS}, s{sB2} offen {SF}
            buffer_store_dwordx4 {R(vNEG1)}, v{vOst}, {WS}, s{sO2} offen {SF}''')
            Lnopf = k.label('nopf')
            e(f'''s_add_u32 s{sT2}, s{sS}, 1
            s_cmp_ge_u32 s{sT2}, {nsteps-1}
            s_cbranch_scc1 {Lnopf}''')
            prefetch(sT2)
            e(Lnopf + ':')
            e(f'''buffer_store_dwordx2 {R(vQK,2)}, v{vKMst}, {WS}, s{sKM} offen {SF}
            buffer_store_dwordx2 {R(vVMf,2)}, v{vVMst}, {WS}, s{sVM} offen {SF}
            buffer_store_dwordx2 {R(vVMf+2,2)}, v{vVMst}, {WS}, s{sVM} offen offset:256 {SF}''')
            stamp(8)
            e(Lb5 + ':')
            e('s_barrier')
            stamp(9)
            stamp_flush()
            e(f'''s_add_u32 s{sS}, s{sS}, 1
            s_branch {Ltop}''')
            e(Lb3 + ':')
            e('s_endpgm')
            for blk in ool:
                for x in blk: e(x)
            return
        e(Lb3 + ':')
        Lnotg2 = k.label('notg2')
        e(f's_barrier\ns_cmp_ge_u32 s{sW}, 2\ns_cbranch_scc1 {Lnotg2}')
        if D2: e(f's_sleep {D2}')
        vO_ = [vOld, vOldb, vOldc]
        oloads = [f'buffer_load_dwordx4 {R(vG2+4*i)}, v{vO_[i//4]}, {WS}, s{sO_} offen offset:{(i%4)*1024} sc1' for i in range(12)]
        for x in oloads: e(x)
        def g2_consume(i):
            e(f'v_mfma_f32_16x16x32_bf16 {R(vD1)}, a[{aW2+8*i}:{aW2+8*i+3}], {R(vG2+4*i)}, ' + ('0' if i == 0 else R(vD1)))
            e(f'v_mfma_f32_16x16x32_bf16 {R(vD2)}, a[{aW2+8*i+4}:{aW2+8*i+7}], {R(vG2+4*i)}, ' + ('0' if i == 0 else R(vD2)))
        prog(12, lambda i: oloads[i], lambda i: [vG2+4*i], g2_consume, cnt=11, dense=bool(DR & 4))
        for r in range(4): e(f'v_add_f32_dpp v{vR+r}, v{vD2+r}, v{vD1+r} row_ror:8 row_mask:0xf bank_mask:0xf')
        e(f'buffer_store_dwordx4 {R(vR)}, v{vPst}, {WS}, s{sPp} offen sc1')
        if DUAL: e(f'buffer_store_dwordx4 {R(vR)}, v{vPst2}, {WS}, s{sPp} offen sc1')
        stamp(7)
        e(f'buffer_store_dwordx4 {R(vNEG1)}, v{vPst}, {WS}, s{sP2} offen sc1')
        if DUAL: e(f'buffer_store_dwordx4 {R(vNEG1)}, v{vPst2}, {WS}, s{sP2} offen sc1')
        e(f's_branch {Lb4}')
        e(Lnotg2 + ':')
        e(f's_cmp_lg_u32 s{sW}, 3\ns_cbranch_scc1 {Lb4}')
        poison_soffsets()
        e(f'''buffer_store_dwordx2 {R(vNEG1,2)}, v{vXst}, {WS}, s{sB2} offen {SF}
        buffer_store_dwordx4 {R(vNEG1)}, v{vOst}, {WS}, s{sO2} offen {SF}''')
        e(Lb4 + ':')
        Lnot2 = k.label('not2')
        e(f's_barrier\ns_cmp_lg_u32 s{sW}, 2\ns_cbranch_scc1 {Lnot2}')
        if D3: e(f's_sleep {D3}')
        ploads = [f'buffer_load_dwordx4 {R(vH3+4*i)}, v{vPld+i}, {WS}, s{sPp} offen sc1' for i in range(8)]
        for x in ploads: e(x)
        def h3_consume(i):
            if i == 0: return
            e(f'v_pk_add_f32 {R(vR,2)}, ' + (R(vH3,2) if i == 1 else R(vR,2)) + f', {R(vH3+4*i,2)}')
            e(f'v_pk_add_f32 {R(vR+2,2)}, ' + (R(vH3+2,2) if i == 1 else R(vR+2,2)) + f', {R(vH3+4*i+2,2)}')
        sec = None
        if DS3 is not None:
            if DS3: e(f's_sleep {DS3}')
            for i, x in enumerate(ploads): e(x.replace(R(vH3+4*i), R(vH3+32+4*i)))
            sec = (None, lambda i: list(range(vH3+4*i, vH3+4*i+4)), lambda i: list(range(vH3+32+4*i, vH3+32+4*i+4)))
        prog(8, lambda i: ploads[i], lambda i: [vH3+4*i], h3_consume, cnt=12, second=sec, dense=bool(DR & 8))
        e(f'''v_cvt_pk_bf16_f32 v{vH3+4}, v{vR}, v{vR+1}
        v_cvt_pk_bf16_f32 v{vH3+5}, v{vR+2}, v{vR+3}
        buffer_store_dwordx2 {R(vH3+4,2)}, v{vMst}, {WS}, s{sE} offen {SF}''')
        stamp(9)
        e(f's_branch {Lb5}')
        e(Lnot2 + ':')
        stamp_flush()
        e(f'''s_cmp_lg_u32 s{sW}, 3
        s_cbranch_scc1 {Lb5}''')
        Lnopf = k.label('nopf')
        e(f'''s_add_u32 s{sT2}, s{sS}, 1
        s_cmp_ge_u32 s{sT2}, {nsteps-1}
        s_cbranch_scc1 {Lnopf}''')
        prefetch(sT2)
        e(Lnopf + ':')
        e(f'''buffer_store_dwordx2 {R(vQK,2)}, v{vKMst}, {WS}, s{sKM} offen {SF}
        buffer_store_dwordx2 {R(vVMf,2)}, v{vVMst}, {WS}, s{sVM} offen {SF}
        buffer_store_dwordx2 {R(vVMf+2,2)}, v{vVMst}, {WS}, s{sVM} offen offset:256 {SF}''')
        e(Lb5 + ':')
        e(f'''s_barrier
        s_add_u32 s{sS}, s{sS}, 1
        s_branch {Ltop}''')
        for blk in ool:
            for x in blk: e(x)
    if TWIN:
        Ltw = k.label('twinf'); Ltw2 = k.label('twins')
        e(f's_cmp_ge_u32 s{sC}, 20\ns_cbranch_scc1 {Ltw}')
        loop('')
        e(Ltw + ':')
        loop('', twin=True)
        e(Lslow + ':')
        e(f's_cmp_ge_u32 s{sC}, 20\ns_cbranch_scc1 {Ltw2}')
        loop('sc1')
        e(Ltw2 + ':')
        loop('sc1', twin=True)
    else:
        loop('')
        e(Lslow + ':')
        loop('sc1')
    e(Lproj + ':')
    if PROJ:
        proj.emit(k, sWS, sX, sC, sW, sTO, Lexit, nsteps, LEAD=PLEAD, census_wait=census_wait, sMODE=sMODE, preread=PREREAD, pre_ot=not OTSC, pace=PACE, spread=SPREAD, prof=(TL is not None and PPROF), tlbw=(TLBW >= 2))
    e(Lexit + ':')
    if TL is not None:
        if PPROF:
            Lsk = k.label('sk3')
            e(f's_cmp_eq_u32 s99, 0x12345\ns_cbranch_scc1 {Lsk}')
            tl(3)
            e(Lsk + ':')
        else: tl(3)
        Lw2 = k.label('notw2')
        e(f'''s_cmp_lg_u32 s{sW}, 2
        s_cbranch_scc1 {Lw2}
        s_and_b32 s94, s{sPM0}, 0xffff
        s_lshl_b32 s96, s{sPM1}, 16
        s_or_b32 s94, s94, s96
        s_mov_b32 s96, s{sXCC}''')
        e(Lw2 + ':')
        e(f'''v_mov_b32 v10, s92
        v_mov_b32 v11, s94
        v_mov_b32 v12, s96
        v_mov_b32 v13, s98
        v_lshrrev_b32 v14, 6, v0
        v_and_b32 v15, 63, v0
        s_lshl_b32 s90, s91, 6
        v_lshlrev_b32 v14, 4, v14
        v_add_u32 v14, s90, v14
        v_cmp_eq_u32 vcc, 0, v15
        v_mov_b32 v15, 0x80000000
        v_cndmask_b32 v14, v15, v14, vcc
        s_mov_b32 s90, {L.STAMP + TL}
        buffer_store_dwordx4 v[10:13], v14, s[4:7], s90 offen
        s_sub_u32 s86, s86, s84
        v_mov_b32 v10, s86
        s_add_u32 s90, s90, 32768
        buffer_store_dword v10, v14, s[4:7], s90 offen''')
    e(Lexit2 + ':')
    e('s_endpgm')
    return k, max(LDS_SIZE, proj.LDS_SIZE if PROJ else 0)
```
